```python
import torch

def _softmax(x, axis=-1):
    return torch.softmax(x, dim=axis)
def _gelu(x):
    return torch.nn.functional.gelu(x, approximate="tanh")
def _silu(x):
    return torch.nn.functional.silu(x)
def _sigmoid(x):
    return torch.sigmoid(x)
def _layernorm(x, axis=-1, eps=1e-5):
    m = x.mean(dim=axis, keepdim=True)
    v = x.var(dim=axis, keepdim=True, unbiased=False)
    return (x - m) / torch.sqrt(v + eps)
def _scatter_add(tgt, idx, src, axis=0):
    return tgt.clone().index_add_(axis, idx, src)
def _segment_sum(src, seg, n):
    out = torch.zeros((n,) + src.shape[1:], dtype=src.dtype)
    return out.index_add_(0, seg, src)
def _pad(x, pw):
    flat = tuple(v for pair in reversed(pw) for v in pair)
    return torch.nn.functional.pad(x, flat)

kernel_name = 'concat_heads__sliding_block_cached__mha_block_cached__decode'

def setup_inputs():

    _w = (lambda a: (lambda t: t.to(torch.bfloat16) if t.is_floating_point() else t)(torch.as_tensor(a)))
    def _A_setup():
        B, Sq, D = 8, 1, 512
        Hq, Hkv, Sk, Dh = 32, 8, 4096, 128
        assert Hq % Hkv == 0, (Hq, Hkv)
        return {
            "x": _w((lambda *s: torch.randn(*s, dtype=torch.bfloat16) * 0.8)(B, Sq, D)),
            "k_cache": _w((lambda *s: torch.randn(*s, dtype=torch.bfloat16) * 1.6)(B, Hkv, Sk, Dh)),
            "v_cache": _w((lambda *s: torch.randn(*s, dtype=torch.bfloat16) * 0.2)(B, Hkv, Sk, Dh)),
            "wq": _w((lambda *s: torch.randn(*s, dtype=torch.bfloat16) * 1.6)(D, Hq * Dh) * (D ** -0.5)),
            "wo": _w((lambda *s: torch.randn(*s, dtype=torch.bfloat16) * 0.2)(Hq * Dh, D) * ((Hq * Dh) ** -0.5)),
        }
    _A_in = _A_setup()

    def _B_setup():
        B, Sq, D = 8, 1, 512
        H, Sk, Dh = 32, 4096, 128
        return {
            "x": _w((lambda *s: torch.randn(*s, dtype=torch.bfloat16) * 0.8)(B, Sq, D)),
            "k_cache": _w((lambda *s: torch.randn(*s, dtype=torch.bfloat16) * 1.6)(B, H, Sk, Dh)),
            "v_cache": _w((lambda *s: torch.randn(*s, dtype=torch.bfloat16) * 0.2)(B, H, Sk, Dh)),
            "wq": _w((lambda *s: torch.randn(*s, dtype=torch.bfloat16) * 1.6)(D, H * Dh) * (D ** -0.5)),
            "wo": _w((lambda *s: torch.randn(*s, dtype=torch.bfloat16) * 0.2)(H * Dh, D) * ((H * Dh) ** -0.5)),
        }
    _B_in = _B_setup()

    return {
        "A_x": _A_in["x"],
        "A_k_cache": _A_in["k_cache"],
        "A_v_cache": _A_in["v_cache"],
        "A_wq": _A_in["wq"],
        "A_wo": _A_in["wo"],
        "B_x": _B_in["x"],
        "B_k_cache": _B_in["k_cache"],
        "B_v_cache": _B_in["v_cache"],
        "B_wq": _B_in["wq"],
        "B_wo": _B_in["wo"],
    }

def reference(A_x, A_k_cache, A_v_cache, A_wq, A_wo, B_x, B_k_cache, B_v_cache, B_wq, B_wo):
    def _A_ref(x, k_cache, v_cache, wq, wo):
        B, Sq, D = x.shape
        Hq, Dh = 32, 128
        Hkv, Sk = k_cache.shape[1], k_cache.shape[2]
        W = min(4096, max(256, Sk // 4))
        rep = Hq // Hkv
        q = (lambda x, *d: x.permute(*d))((x @ wq).reshape(B, Sq, Hq, Dh), 0, 2, 1, 3)
        k = (lambda x, n, axis: torch.repeat_interleave(x, n, dim=axis))(k_cache[:, :, Sk - W:, :], rep, axis=1)
        v = (lambda x, n, axis: torch.repeat_interleave(x, n, dim=axis))(v_cache[:, :, Sk - W:, :], rep, axis=1)
        scores = torch.einsum("bhqd,bhkd->bhqk", q, k) * (Dh ** -0.5)
        p = _softmax(scores, axis=-1)
        o = torch.einsum("bhqk,bhkd->bhqd", p, v)
        return (lambda x, *d: x.permute(*d))(o, 0, 2, 1, 3).reshape(B, Sq, Hq * Dh) @ wo

    def _B_ref(x, k_cache, v_cache, wq, wo):
        B, Sq, D = x.shape
        H, Dh = 32, 128
        q = (lambda x, *d: x.permute(*d))((x @ wq).reshape(B, Sq, H, Dh), 0, 2, 1, 3)
        scores = torch.einsum("bhqd,bhkd->bhqk", q, k_cache) * (Dh ** -0.5)
        p = _softmax(scores, axis=-1)
        o = torch.einsum("bhqk,bhkd->bhqd", p, v_cache)
        return (lambda x, *d: x.permute(*d))(o, 0, 2, 1, 3).reshape(B, Sq, H * Dh) @ wo

    a = _A_ref(A_x, A_k_cache, A_v_cache, A_wq, A_wo)
    b = _B_ref(B_x, B_k_cache, B_v_cache, B_wq, B_wo)
    return torch.concatenate([a, b], axis=-1)
```

```python
import sys, math, struct, re

NAME = "concat_heads__sliding_block_cached__mha_block_cached__decode"
REF = f"cdna_kernels/{NAME}.s.ref"

QWS, PREC, HDR, CNT, YWS, WSEND = 0x100000, 0x180000, 0x200000, 0x280000, 0x300000, 0x400000
STAMP = 0x10000
L_QRED, L_FLC, L_REQ, L_WOC = 0, 4, 8, 12
L_QUEUE = 0x40
L_QA, L_QB = 0x400, 0x800
L_FL = 0x1000
L_ST = 0x4000
LDS_SIZE = 0x14000


def f2u(x):
    return struct.unpack("<I", struct.pack("<f", x))[0]


CSC = 128 ** -0.5 * math.log2(math.e)
BIG = 0x7FFFFFFF
OOB = 0x10000000


class G:
    def __init__(self, stamps=False, static_rounds=40, levels=(8, 6, 4, 2, 2, 1, 1), LA=1,
                 masks=(5, 6, 7, 5), nt="nt", sleep_grid=64, codepf=True):
        self.L = []
        self.tail = []
        self.stamps = stamps
        self.SR = static_rounds
        self.levels = levels
        assert static_rounds + sum(levels) == 64
        self.LA = LA
        self.masks = masks
        self.nt = nt
        self.sleep_grid = sleep_grid
        self.codepf = codepf
        self.uid = 0

    def A(self, s):
        for line in s.strip("\n").split("\n"):
            line = line.strip()
            if not line:
                continue
            self.L.append(line if line.endswith(":") else "    " + line)

    def lab(self, p):
        self.uid += 1
        return f"L_{p}_{self.uid}"

    def stamp(self, k):
        if self.stamps:
            self.A(f"s_memrealtime s[{84 + 2 * k}:{85 + 2 * k}]\ns_waitcnt lgkmcnt(0)")

    def write_stamps(self, with_main=False):
        if not self.stamps:
            return
        A = self.A
        A("s_mov_b64 exec, 1")
        A("s_lshl_b32 s4, s2, 8\ns_lshl_b32 s5, s3, 5\ns_add_u32 s4, s4, s5")
        A(f"s_add_u32 s4, s4, {STAMP}")
        A("v_mov_b32 v4, s4")
        for k in range(8):
            A(f"v_mov_b32 v{8 + k}, s{84 + 2 * k}")
        A("buffer_store_dwordx4 v[8:11], v4, s[24:27], 0 offen")
        A("buffer_store_dwordx4 v[12:15], v4, s[24:27], 0 offen offset:16")
        if with_main:
            A("s_memrealtime s[6:7]\ns_waitcnt lgkmcnt(0)")
            A("s_lshl_b32 s4, s2, 4\nv_mov_b32 v5, s4")
            A("v_mov_b32 v16, s84\nv_mov_b32 v17, s85\nv_mov_b32 v18, s6\nv_mov_b32 v19, s7")
            A("buffer_store_dwordx4 v[16:19], v5, s[24:27], 0 offen")

    def srd(self, d, lo, size):
        self.A(f"s_mov_b32 s{d}, s{lo}\ns_and_b32 s{d + 1}, s{lo + 1}, 0xffff\n"
               f"s_mov_b32 s{d + 2}, {size:#x}\ns_mov_b32 s{d + 3}, 0x20000")

    def srd_sel(self, d, loA, loB, size):
        self.A(f"s_cselect_b32 s{d}, s{loB}, s{loA}\ns_cselect_b32 s{d + 1}, s{loB + 1}, s{loA + 1}\n"
               f"s_and_b32 s{d + 1}, s{d + 1}, 0xffff\n"
               f"s_mov_b32 s{d + 2}, {size:#x}\ns_mov_b32 s{d + 3}, 0x20000")

    def budget(self, retry):
        self.A(f"s_sub_u32 s82, s82, 1\ns_cmp_lg_u32 s82, 0\ns_cbranch_scc1 {retry}\ns_endpgm")

    def tile(self, X, Q, acc, m, R, l, bias, kwait, vwait, issueK=None):
        A = self.A
        D, S, T = 40, 56, 60
        if kwait is not None:
            A(f"s_waitcnt vmcnt({kwait})")
        for t in range(4):
            A(f"v_mfma_f32_16x16x32_bf16 v[{D + 4 * t}:{D + 4 * t + 3}], v[{X + 4 * t}:{X + 4 * t + 3}], v[{Q}:{Q + 3}], 0")
        if issueK:
            issueK()
            A("s_nop 1")
        else:
            A("s_nop 5")
        for c in range(4):
            for t in range(4):
                dpp = f"quad_perm:[{c},{c},{c},{c}] row_mask:0xf bank_mask:0xf"
                if c == 0 and bias is None:
                    A(f"v_mov_b32_dpp v{S + t}, v{D + 4 * t} {dpp}")
                else:
                    A(f"v_add_f32_dpp v{S + t}, v{D + 4 * t + c}, v{bias if c == 0 else S + t} {dpp}")
        rs, back = self.lab("rs"), self.lab("bk")
        A(f"v_max3_f32 v{T}, v{S}, v{S + 1}, v{S + 2}")
        A(f"v_max_f32 v{T}, v{T}, v{S + 3}")
        A(f"v_cmp_gt_f32 vcc, v{T}, v{m}")
        A(f"s_cbranch_vccnz {rs}")
        A(f"{back}:")
        for t in range(4):
            A(f"v_fma_f32 v{S + t}, v{S + t}, s77, -v{R}")
        for t in range(4):
            A(f"v_exp_f32 v{S + t}, v{S + t}")
        A(f"v_add_f32 v{T}, v{S}, v{S + 1}")
        A(f"v_cvt_pk_bf16_f32 v{S}, v{S}, v{S}")
        A(f"v_add_f32 v{T + 1}, v{S + 2}, v{S + 3}")
        for t in range(1, 4):
            A(f"v_cvt_pk_bf16_f32 v{S + t}, v{S + t}, v{S + t}")
        for t in range(4):
            A(f"v_and_b32 v{D + 2 * t}, v{S + t}, v4")
            A(f"v_and_b32 v{D + 2 * t + 1}, v{S + t}, v5")
        A(f"v_add_f32 v{l}, v{l}, v{T}")
        A(f"v_add_f32 v{l}, v{l}, v{T + 1}")
        if vwait is not None:
            A(f"s_waitcnt vmcnt({vwait})")
        for t in range(4):
            V = X + 16 + 4 * t
            A(f"v_mfma_f32_16x16x16_bf16 v[{acc}:{acc + 3}], v[{V}:{V + 1}], v[{D + 2 * t}:{D + 2 * t + 1}], v[{acc}:{acc + 3}]")
            A(f"v_mfma_f32_16x16x16_bf16 v[{acc + 4}:{acc + 7}], v[{V + 2}:{V + 3}], v[{D + 2 * t}:{D + 2 * t + 1}], v[{acc + 4}:{acc + 7}]")
        o = [f"{rs}:",
             f"v_mov_b32 v{T + 1}, v{T}", "s_nop 1",
             f"v_permlane32_swap_b32 v{T + 1}, v{T}", "s_nop 0",
             f"v_max_f32 v{T}, v{T}, v{T + 1}",
             f"v_mov_b32 v{T + 1}, v{T}", "s_nop 1",
             f"v_permlane16_swap_b32 v{T + 1}, v{T}", "s_nop 0",
             f"v_max3_f32 v{m}, v{m}, v{T}, v{T + 1}",
             f"v_mul_f32 v{T}, s77, v{m}",
             f"v_sub_f32 v{T + 1}, v{R}, v{T}",
             f"v_exp_f32 v{T + 1}, v{T + 1}",
             f"v_mov_b32 v{R}, v{T}",
             f"v_mul_f32 v{l}, v{l}, v{T + 1}"]
        for i in range(8):
            o.append(f"v_mul_f32 v{acc + i}, v{acc + i}, v{T + 1}")
        o.append(f"s_branch {back}")
        self.tail.append("\n".join(o))

    def loads(self, dst, voff, srd, soff):
        for t in range(4):
            self.A(f"buffer_load_dwordx4 v[{dst + 4 * t}:{dst + 4 * t + 3}], v{voff}, s[{srd}:{srd + 3}], s{soff} offen offset:{1024 * t} {self.nt}")

    def flush_write(self, acc, R):
        A = self.A
        A(f"s_mul_i32 s4, s3, 0xc00\ns_add_u32 s4, s4, {L_FL}")
        A("v_lshlrev_b32 v60, 4, v0\nv_lshlrev_b32 v61, 3, v0")
        A("v_add_u32 v60, s4, v60\nv_add_u32 v61, s4, v61")
        A("s_nop 3")
        A(f"ds_write_b128 v60, v[{acc}:{acc + 3}]")
        A(f"ds_write_b128 v60, v[{acc + 4}:{acc + 7}] offset:1024")
        A(f"ds_write_b64 v61, v[{R}:{R + 1}] offset:2048")

    def combine(self, b, vrec, vhdr, srec, shdr):
        A = self.A
        a = lambda w: b + 12 * w
        t = b + 48
        A(f"v_lshlrev_b32 v{t}, 4, v0\nv_lshlrev_b32 v{t + 1}, 3, v0")
        for w in range(4):
            A(f"ds_read_b64 v[{a(w) + 8}:{a(w) + 9}], v{t + 1} offset:{L_FL + 0xc00 * w + 2048}")
        for w in range(4):
            A(f"ds_read_b128 v[{a(w)}:{a(w) + 3}], v{t} offset:{L_FL + 0xc00 * w}")
            A(f"ds_read_b128 v[{a(w) + 4}:{a(w) + 7}], v{t} offset:{L_FL + 0xc00 * w + 1024}")
        A("s_waitcnt lgkmcnt(8)")
        Rm, Ls = t + 2, t + 3
        A(f"v_max3_f32 v{Rm}, v{a(0) + 8}, v{a(1) + 8}, v{a(2) + 8}")
        A(f"v_max_f32 v{Rm}, v{Rm}, v{a(3) + 8}")
        for w in range(4):
            A(f"v_sub_f32 v{a(w) + 8}, v{a(w) + 8}, v{Rm}")
        for w in range(4):
            A(f"v_exp_f32 v{a(w) + 8}, v{a(w) + 8}")
        A(f"v_mul_f32 v{Ls}, v{a(0) + 8}, v{a(0) + 9}")
        for w in range(1, 4):
            A(f"v_fmac_f32 v{Ls}, v{a(w) + 8}, v{a(w) + 9}")
        A(f"v_mov_b32 v{t}, v{Ls}")
        A("s_waitcnt lgkmcnt(6)")
        for i in range(8):
            A(f"v_mul_f32 v{a(0) + i}, v{a(0) + 8}, v{a(0) + i}")
        A(f"v_permlane32_swap_b32 v{t}, v{Ls}")
        A("s_waitcnt lgkmcnt(4)")
        A(f"v_add_f32 v{Ls}, v{Ls}, v{t}")
        A(f"v_mov_b32 v{t}, v{Ls}")
        for i in range(8):
            A(f"v_fmac_f32 v{a(0) + i}, v{a(1) + 8}, v{a(1) + i}")
        A(f"v_permlane16_swap_b32 v{t}, v{Ls}")
        A("s_waitcnt lgkmcnt(2)")
        A(f"v_add_f32 v{Ls}, v{Ls}, v{t}")
        for i in range(8):
            A(f"v_fmac_f32 v{a(0) + i}, v{a(2) + 8}, v{a(2) + i}")
        A("s_waitcnt lgkmcnt(0)")
        for i in range(8):
            A(f"v_fmac_f32 v{a(0) + i}, v{a(3) + 8}, v{a(3) + i}")
        o = t + 4
        for k in range(4):
            A(f"v_cvt_pk_bf16_f32 v{o + k}, v{a(0) + 2 * k}, v{a(0) + 2 * k + 1}")
        for k in range(4):
            A(f"v_min_u32 v{o + k}, -2, v{o + k}")
        A(f"v_min_u32 v{Rm}, -2, v{Rm}\nv_min_u32 v{Ls}, -2, v{Ls}")
        A(f"buffer_store_dwordx4 v[{o}:{o + 3}], v{vrec}, s[24:27], s{srec} offen sc1")
        A("s_mov_b64 exec, 0x1111")
        A(f"buffer_store_dwordx2 v[{Rm}:{Ls}], v{vhdr}, s[24:27], s{shdr} offen sc1")
        A("s_mov_b64 exec, -1")

    def brec_addr(self, vrec, vhdr, srec, shdr):
        A = self.A
        A(f"v_lshrrev_b32 v{vrec}, 4, v0\nv_and_b32 v{vhdr}, 15, v0")
        A(f"v_lshlrev_b32 v{vrec}, 10, v{vrec}")
        A(f"v_lshl_add_u32 v{vrec}, v{vhdr}, 4, v{vrec}")
        A(f"v_lshlrev_b32 v{vhdr}, 1, v{vhdr}")
        A(f"s_lshl_b32 s{srec}, s63, 13\ns_lshl_b32 s4, s64, 12\ns_add_u32 s{srec}, s{srec}, s4")
        A(f"s_lshl_b32 s4, s65, 8\ns_add_u32 s{srec}, s{srec}, s4\ns_add_u32 s{srec}, s{srec}, {PREC + 0x40000}")
        A(f"s_lshl_b32 s{shdr}, s63, 8\ns_lshl_b32 s4, s64, 7\ns_add_u32 s{shdr}, s{shdr}, s4")
        A(f"s_lshl_b32 s4, s65, 5\ns_add_u32 s{shdr}, s{shdr}, s4\ns_add_u32 s{shdr}, s{shdr}, {HDR + 0x2000}")

    def y_voff(self, v, t):
        A = self.A
        A(f"v_lshrrev_b32 v{v}, 4, v0\nv_lshlrev_b32 v{v}, 16, v{v}")
        A(f"v_bfe_u32 v{t}, v0, 2, 2\nv_lshl_add_u32 v{v}, v{t}, 11, v{v}")
        A(f"v_and_b32 v{t}, 3, v0\nv_lshl_add_u32 v{v}, v{t}, 4, v{v}")

    def gen(self):
        A = self.A
        hdr = open(REF).read().split("\n")
        for line in hdr:
            if line.startswith("; @launch"):
                self.L.append(f"; @launch grid=(256,1,1) block=(512,1,1) lds={LDS_SIZE}")
                break
            self.L.append(line)
        self.L += ['.amdgcn_target "amdgcn-amd-amdhsa--gfx950"', ".text", f".globl {NAME}_kernel", ".p2align 8",
                   f".type {NAME}_kernel,@function", f"{NAME}_kernel:"]
        A("s_cmp_ge_u32 s2, 256\ns_cbranch_scc1 L_end")
        A("s_load_dwordx16 s[36:51], s[0:1], 0")
        A("s_load_dwordx8 s[52:59], s[0:1], 64")
        A("s_load_dwordx2 s[60:61], s[0:1], 96")
        A("s_memrealtime s[84:85]")
        A("v_lshrrev_b32 v1, 6, v0\nv_and_b32 v0, 63, v0")
        A("v_mov_b32 v2, 0")
        A("v_readfirstlane_b32 s3, v1")
        A("v_lshlrev_b32 v1, 2, v0")
        A("s_and_b32 s62, s2, 7\ns_lshr_b32 s63, s2, 3")
        tab = sum(mk << (4 * k) for k, mk in enumerate(self.masks))
        A(f"s_and_b32 s4, s63, 3\ns_lshl_b32 s4, s4, 2\ns_lshr_b32 s4, {tab:#x}, s4")
        A("s_and_b32 s4, s4, s62\ns_bcnt1_i32_b32 s4, s4\ns_and_b32 s64, s4, 1")
        A("s_and_b32 s65, s62, 3")
        A("s_lshr_b32 s67, s2, 5\ns_bfe_u32 s68, s2, 0x30002\ns_and_b32 s69, s2, 3")
        A(f"s_mov_b32 s77, {f2u(CSC):#x}")
        A("s_mov_b32 s82, 0x400000")
        A("s_cmp_lg_u32 s3, 0\ns_cbranch_scc1 L_noinit")
        A("ds_write_b32 v1, v2")
        A("L_noinit:")
        A("s_waitcnt lgkmcnt(0)")
        if self.stamps:
            for k in range(1, 8):
                A(f"s_mov_b32 s{84 + 2 * k}, 0")
        self.srd(24, 60, WSEND)
        A("s_cmp_ge_u32 s3, 4\ns_cbranch_scc1 L_helper")
        self.stream()
        A("L_helper:")
        self.helper()
        A("L_end:\ns_endpgm")
        for blk in self.tail:
            A(blk)
        A("L_code_end:")
        self.L += ['.section .rodata,"a"', ".p2align 6", f".amdhsa_kernel {NAME}_kernel",
                   "  .amdhsa_next_free_vgpr 256", "  .amdhsa_next_free_sgpr 102", "  .amdhsa_accum_offset 256",
                   "  .amdhsa_group_segment_fixed_size 0", "  .amdhsa_kernarg_size 104",
                   "  .amdhsa_user_sgpr_count 2", "  .amdhsa_user_sgpr_kernarg_segment_ptr 1",
                   "  .amdhsa_system_sgpr_workgroup_id_x 1", ".end_amdhsa_kernel"]
        return "\n".join(self.L) + "\n"

    def stream(self):
        A = self.A
        self.srd(8, 48, 0x10000000)
        self.srd(12, 50, 0x10000000)
        self.srd(16, 38, 0x4000000)
        self.srd(20, 40, 0x4000000)
        A("s_or_b32 s4, s2, s3\ns_cmp_lg_u32 s4, 0\ns_cbranch_scc1 L_notag")
        A("s_or_b32 s4, s84, 1\nv_mov_b32 v3, s4")
        A("s_mov_b64 exec, 1\nglobal_store_dword v2, v3, s[58:59] sc1\ns_mov_b64 exec, -1")
        A("L_notag:")
        A("v_lshrrev_b32 v3, 4, v0\nv_bfe_u32 v4, v0, 2, 2\nv_and_b32 v5, 3, v0")
        A("v_lshlrev_b32 v1, 8, v4\nv_lshl_add_u32 v1, v3, 6, v1\nv_lshl_add_u32 v1, v5, 4, v1")
        A("v_lshlrev_b32 v2, 4, v0")
        A("s_lshl_b32 s78, s3, 12")
        A("s_lshl_b32 s4, s64, 2\ns_add_u32 s4, s4, s65\ns_lshl_b32 s4, s4, 5\ns_add_u32 s4, s4, s63")
        A("s_lshl_b32 s70, s4, 20\ns_add_u32 s70, s70, s78")
        A("s_lshr_b32 s4, s2, 2\ns_lshl_b32 s4, s4, 20\ns_lshl_b32 s5, s69, 16\ns_add_u32 s79, s4, s5")
        A("s_add_u32 s79, s79, s78\ns_add_u32 s79, s79, 0xc0000")
        A("s_barrier")
        for sl in range(2):
            self.loads(64 + 32 * sl, 1, 8, 70)
            self.loads(80 + 32 * sl, 2, 12, 70)
            A("s_add_u32 s70, s70, 0x4000")
        for a in range(4):
            self.loads(128 + 32 * a, 1, 16, 79)
            self.loads(144 + 32 * a, 2, 20, 79)
            if a < 3:
                A("s_add_u32 s79, s79, 0x4000")
        A("v_mov_b32 v3, v4")
        A("v_and_b32 v6, 1, v5\nv_lshlrev_b32 v6, 4, v6\nv_mov_b32 v7, 0xffff\nv_lshlrev_b32 v6, v6, v7")
        A("v_cmp_le_u32 vcc, 2, v5\ns_nop 1")
        A("v_cndmask_b32 v5, 0, v6, vcc\nv_xor_b32 v4, v5, v6")
        A("v_mov_b32 v7, 0xff800000")
        for r in list(range(16, 24)) + list(range(28, 36)) + [27, 39]:
            A(f"v_mov_b32 v{r}, 0")
        A("v_mov_b32 v24, 0xff7fffff\nv_mov_b32 v36, 0xff7fffff")
        A("v_mul_f32 v26, s77, v24\nv_mul_f32 v38, s77, v36")
        A(f"s_mov_b32 s71, {self.SR - 2}")
        A("s_mov_b32 s72, s65\ns_mov_b32 s73, s65\ns_mov_b32 s74, s65")
        A(f"s_mov_b32 s75, {L_QUEUE}\ns_mov_b32 s76, 0")
        self.brec_addr(25, 37, 80, 81)
        self.stamp(1)
        A("s_barrier")
        A(f"ds_read_b128 v[8:11], v2 offset:{L_QB}")
        A(f"ds_read_b128 v[12:15], v2 offset:{L_QA}")
        A("s_waitcnt lgkmcnt(0)")
        self.stamp(2)
        A("L_loop:")
        for sl in range(2):
            X = 64 + 32 * sl
            A(f"v_cmp_ne_u32 vcc, s{73 + sl}, v3")
            A(f"s_cmp_le_u32 s71, {self.LA}\ns_cbranch_scc1 L_slow{sl}")
            A(f"L_cont{sl}:")
            A("v_cndmask_b32 v6, 0, v7, vcc")
            A(f"s_mov_b32 s{73 + sl}, s72")
            self.tile(X, 8, 16, 24, 26, 27, 6, 12, 12, issueK=lambda: self.loads(X, 1, 8, 70))
            A(f"s_cmp_eq_u32 s71, {BIG - 1}\ns_cbranch_scc1 L_exit")
            self.loads(X + 16, 2, 12, 70)
            A("s_add_u32 s70, s70, 0x4000\ns_sub_u32 s71, s71, 1")
            sp, got, dn, rq = f"L_spin{sl}", f"L_got{sl}", f"L_done{sl}", f"L_req{sl}"
            o = [f"L_slow{sl}:",
                 "s_cmp_lg_u32 s71, 0", f"s_cbranch_scc1 {rq}",
                 "v_mov_b32 v60, s75",
                 f"{sp}:",
                 "ds_read_b32 v61, v60", "s_waitcnt lgkmcnt(0)",
                 "v_readfirstlane_b32 s4, v61",
                 "s_nop 0",
                 "s_cmp_lg_u32 s4, 0", f"s_cbranch_scc1 {got}",
                 "s_sub_u32 s82, s82, 1", "s_cmp_lg_u32 s82, 0", f"s_cbranch_scc1 {sp}", "s_endpgm",
                 f"{got}:",
                 "s_add_u32 s75, s75, 4",
                 "s_cmp_eq_u32 s4, 0x80", f"s_cbranch_scc1 {dn}",
                 "s_and_b32 s71, s4, 0x7f", "s_bfe_u32 s72, s4, 0x20008",
                 "s_and_b32 s70, s4, 0xffffc000", "s_add_u32 s70, s70, s78", "s_mov_b32 s76, 0",
                 f"s_cmp_le_u32 s71, {self.LA}", f"s_cbranch_scc0 L_cont{sl}",
                 f"{rq}:",
                 "s_cmp_lg_u32 s76, 0", f"s_cbranch_scc1 L_cont{sl}",
                 "s_mov_b32 s76, 1", "s_add_u32 s4, s75, 4",
                 f"v_mov_b32 v60, {L_REQ}", "v_mov_b32 v61, s4",
                 "s_mov_b64 exec, 1", "ds_max_u32 v60, v61", "s_mov_b64 exec, -1",
                 f"s_branch L_cont{sl}",
                 f"{dn}:",
                 f"s_mov_b32 s70, {OOB:#x}", f"s_mov_b32 s71, {BIG:#x}"]
            if self.stamps:
                o += ["s_memrealtime s[92:93]", "s_waitcnt lgkmcnt(0)"]
            o += ["s_barrier",
                  f"s_branch L_cont{sl}"]
            self.tail.append("\n".join(o))
        A(f"s_cmp_lg_u32 s71, {self.SR - 4}\ns_cbranch_scc1 L_loop")
        A("s_waitcnt vmcnt(16)")
        for a in range(4):
            self.tile(128 + 32 * a, 12, 28, 36, 38, 39, None, None, None)
        self.flush_write(28, 38)
        A("s_waitcnt lgkmcnt(0)")
        self.stamp(3)
        A("s_barrier")
        A("s_branch L_loop")
        A("L_exit:")
        self.flush_write(16, 26)
        A(f"v_mov_b32 v62, {L_FLC}\nv_mov_b32 v63, 1")
        A("s_mov_b64 exec, 1\nds_add_rtn_u32 v62, v62, v63\ns_mov_b64 exec, -1")
        A("s_waitcnt lgkmcnt(0)")
        A("v_readfirstlane_b32 s4, v62")
        self.stamp(5)
        A("s_nop 0\ns_cmp_lg_u32 s4, 3\ns_cbranch_scc1 L_sfin")
        self.combine(128, 25, 37, 80, 81)
        self.stamp(6)
        A("L_sfin:")
        self.write_stamps()
        A("s_endpgm")

    def helper(self):
        A = self.A
        A("s_setprio 3")
        A("s_sub_u32 s66, s3, 4")
        A("s_bitcmp1_b32 s2, 3\ns_cbranch_scc1 L_noprod")
        A("s_lshr_b32 s4, s2, 4\ns_lshl_b32 s4, s4, 3\ns_or_b32 s4, s4, s62")
        A("s_and_b32 s70, s4, 63\ns_lshr_b32 s71, s4, 6")
        A("s_cmp_eq_u32 s71, 1")
        A("s_cselect_b32 s12, s46, s36\ns_cselect_b32 s13, s47, s37")
        self.srd_sel(8, 42, 52, 0x400000)
        A("s_and_b32 s13, s13, 0xffff\ns_mov_b32 s14, 0x2000\ns_mov_b32 s15, 0x20000")
        A("v_lshrrev_b32 v3, 4, v0\nv_and_b32 v4, 7, v0")
        A("v_lshlrev_b32 v5, 10, v4\nv_lshl_add_u32 v5, v3, 4, v5")
        A("s_lshl_b32 s72, s66, 8")
        A("v_lshrrev_b32 v6, 3, v0\nv_lshlrev_b32 v6, 13, v6")
        A("v_and_b32 v7, 1, v3\nv_lshlrev_b32 v7, 1, v7\nv_xor_b32 v7, v7, v4")
        A("v_lshl_add_u32 v6, v7, 4, v6\nv_xor_b32 v7, 64, v6")
        A("s_lshl_b32 s73, s66, 20\ns_lshl_b32 s4, s70, 7\ns_add_u32 s73, s73, s4")
        A(f"s_lshl_b32 s74, s66, 14\ns_add_u32 s74, s74, {L_ST}")
        A("s_mov_b32 m0, s74")
        A("s_barrier")
        for ks in range(4):
            A(f"buffer_load_dwordx4 v[{16 + 4 * ks}:{19 + 4 * ks}], v5, s[12:15], s72 offen offset:{64 * ks}")
        for i in range(16):
            A(f"buffer_load_dwordx4 v{6 + (i & 1)}, s[8:11], s73 offen {self.nt} lds")
            if i < 15:
                A("s_add_u32 m0, m0, 0x400\ns_add_u32 s73, s73, 0x10000")
        A("global_load_dword v12, v2, s[58:59] sc1")
        A("v_bfe_u32 v4, v0, 2, 2\nv_and_b32 v5, 3, v0")
        A("v_lshl_add_u32 v6, v3, 3, v4\nv_lshlrev_b32 v6, 7, v6\nv_lshl_add_u32 v6, v5, 3, v6")
        A("v_lshrrev_b32 v4, 1, v4\nv_and_b32 v5, 1, v3\nv_lshl_add_u32 v4, v5, 1, v4")
        A("v_lshl_add_u32 v6, v4, 5, v6\nv_add_u32 v8, s74, v6")
        for nb in range(1, 4):
            A(f"v_xor_b32 v{8 + nb}, {nb << 5}, v8")
        for ks in range(4):
            A(f"s_waitcnt vmcnt({13 - 4 * ks})")
            for nb in range(4):
                for hf in range(2):
                    r = 64 + 16 * ks + 4 * nb + 2 * hf
                    A(f"ds_read_b64_tr_b16 v[{r}:{r + 1}], v{8 + nb} offset:{ks * 4096 + hf * 512}")
            A("s_waitcnt lgkmcnt(0)")
            for nb in range(4):
                r = 64 + 16 * ks + 4 * nb
                c = "0" if ks == 0 else f"v[{32 + 4 * nb}:{35 + 4 * nb}]"
                A(f"v_mfma_f32_16x16x32_bf16 v[{32 + 4 * nb}:{35 + 4 * nb}], v[{r}:{r + 3}], v[{16 + 4 * ks}:{19 + 4 * ks}], {c}")
        A("v_lshlrev_b32 v4, 4, v0\nv_add_u32 v5, s74, v4")
        A(f"s_lshl_b32 s4, s66, 10\ns_add_u32 s4, s4, {L_ST}\nv_add_u32 v4, s4, v4")
        A(f"v_mov_b32 v6, {L_QRED}\nv_mov_b32 v7, 1\ns_nop 3")
        for nb in range(4):
            A(f"ds_write_b128 v5, v[{32 + 4 * nb}:{35 + 4 * nb}] offset:{1024 * nb}")
        A("s_mov_b64 exec, 1\nds_add_u32 v6, v7\ns_mov_b64 exec, -1")
        A("L_qr_spin:")
        A("ds_read_b32 v7, v6\ns_waitcnt lgkmcnt(0)\nv_readfirstlane_b32 s4, v7\ns_nop 0")
        A("s_cmp_eq_u32 s4, 4\ns_cbranch_scc1 L_qr_ok")
        self.budget("L_qr_spin")
        A("L_qr_ok:")
        for w in range(4):
            A(f"ds_read_b128 v[{32 + 4 * w}:{35 + 4 * w}], v4 offset:{0x4000 * w}")
        A("v_and_b32 v5, 15, v0\nv_lshlrev_b32 v5, 14, v5")
        A("v_and_b32 v6, 1, v3\nv_lshl_add_u32 v5, v6, 8, v5")
        A("v_lshrrev_b32 v6, 1, v3\nv_lshl_add_u32 v5, v6, 4, v5")
        A("s_lshl_b32 s72, s71, 17\ns_lshr_b32 s4, s70, 1\ns_lshl_b32 s4, s4, 9\ns_add_u32 s72, s72, s4")
        A("s_and_b32 s4, s70, 1\ns_lshl_b32 s4, s4, 7\ns_add_u32 s72, s72, s4")
        A(f"s_lshl_b32 s4, s66, 5\ns_add_u32 s72, s72, s4\ns_add_u32 s72, s72, {QWS}")
        A("s_waitcnt lgkmcnt(0)")
        for r in range(4):
            A(f"v_add_f32 v{32 + r}, v{32 + r}, v{36 + r}\nv_add_f32 v{40 + r}, v{40 + r}, v{44 + r}")
        for r in range(4):
            A(f"v_add_f32 v{32 + r}, v{32 + r}, v{40 + r}")
        A("v_cvt_pk_bf16_f32 v36, v32, v33\nv_cvt_pk_bf16_f32 v38, v34, v35")
        A("L_tag_chk:")
        A("s_waitcnt vmcnt(0)\nv_readfirstlane_b32 s4, v12\ns_nop 0")
        A("s_cmp_lg_u32 s4, 0\ns_cbranch_scc1 L_tag_ok")
        A("global_load_dword v12, v2, s[58:59] sc1")
        self.budget("L_tag_chk")
        A("L_tag_ok:")
        A("v_mov_b32 v37, v12\nv_mov_b32 v39, v12")
        A("s_mov_b32 exec_lo, 0x00ff00ff\ns_mov_b32 exec_hi, 0x00ff00ff")
        A("buffer_store_dwordx4 v[36:39], v5, s[24:27], s72 offen sc1")
        A("s_mov_b64 exec, -1")
        self.stamp(1)
        A("s_branch L_prod_done")
        A("L_noprod:")
        A("s_barrier")
        if self.codepf:
            A("s_cmp_lg_u32 s66, 2\ns_cbranch_scc1 L_prod_done")
            A("s_getpc_b64 s[4:5]")
            A("L_pc:")
            A(f"s_sub_u32 s4, s4, L_pc-{NAME}_kernel\ns_subb_u32 s5, s5, 0")
            A("v_lshlrev_b32 v3, 7, v0\nv_mov_b32 v5, s5")
            A(f"v_add_u32 v8, 0x2000, v3\nv_min_u32 v8, L_code_end-{NAME}_kernel-4, v8")
            A(f"v_min_u32 v3, L_code_end-{NAME}_kernel-4, v3")
            A("v_add_co_u32 v4, vcc, s4, v3\ns_nop 1\nv_addc_co_u32 v5, vcc, 0, v5, vcc")
            A("v_mov_b32 v7, s5\nglobal_load_dword v10, v[4:5], off")
            A("v_add_co_u32 v6, vcc, s4, v8\ns_nop 1\nv_addc_co_u32 v7, vcc, 0, v7, vcc")
            A("global_load_dword v11, v[6:7], off")
        A("L_prod_done:")
        A("s_cmp_eq_u32 s66, 0\ns_cbranch_scc1 L_qpoll")
        A("s_cmp_lg_u32 s66, 1\ns_cbranch_scc1 L_h_b1")
        for r in range(20, 24):
            A(f"v_mov_b32 v{r}, -1")
        self.y_voff(24, 25)
        A(f"s_lshl_b32 s72, s62, 13\ns_lshl_b32 s4, s63, 6\ns_add_u32 s72, s72, s4\ns_add_u32 s72, s72, {YWS}")
        for k in range(4):
            A("buffer_store_dwordx4 v[20:23], v24, s[24:27], s72 offen sc1")
            A("s_add_u32 s72, s72, 0x40000")
        self.brec_addr(26, 27, 80, 81)
        A("buffer_store_dwordx4 v[20:23], v26, s[24:27], s80 offen sc1")
        A("s_mov_b64 exec, 0x1111")
        A("buffer_store_dwordx2 v[20:21], v27, s[24:27], s81 offen sc1")
        A("s_mov_b64 exec, -1")
        A("s_cmp_lg_u32 s65, 0\ns_cbranch_scc1 L_h_b1")
        A(f"s_lshl_b32 s72, s63, 1\ns_add_u32 s72, s72, s64\ns_lshl_b32 s72, s72, 8\ns_add_u32 s72, s72, {CNT}")
        A("s_mov_b64 exec, 1")
        A("buffer_store_dword v2, v2, s[24:27], s72 offen sc1")
        A("s_mov_b64 exec, -1")
        A("s_branch L_h_b1")
        A("L_qpoll:")
        A("v_lshrrev_b32 v3, 4, v0\nv_bfe_u32 v4, v0, 2, 2\nv_and_b32 v5, 3, v0")
        A("v_lshl_add_u32 v5, v3, 2, v5\nv_lshlrev_b32 v5, 4, v5")
        A("v_lshl_add_u32 v6, v4, 14, v5\nv_lshl_add_u32 v7, v4, 9, v5")
        A(f"s_lshl_b32 s72, s64, 16\ns_lshl_b32 s4, s63, 9\ns_add_u32 s72, s72, s4\ns_add_u32 s72, s72, {QWS + 0x20000}")
        A(f"s_lshl_b32 s73, s67, 14\ns_lshl_b32 s4, s68, 11\ns_add_u32 s73, s73, s4\ns_add_u32 s73, s73, {QWS}")
        A("L_qp_loop:")
        A("global_load_dword v12, v2, s[58:59] sc1")
        A("buffer_load_dwordx4 v[40:43], v6, s[24:27], s72 offen sc1")
        A("buffer_load_dwordx4 v[44:47], v6, s[24:27], s72 offen offset:256 sc1")
        A("buffer_load_dwordx4 v[48:51], v7, s[24:27], s73 offen sc1")
        A("buffer_load_dwordx4 v[52:55], v7, s[24:27], s73 offen offset:256 sc1")
        if self.stamps:
            A("s_add_u32 s98, s98, 1")
        A("s_waitcnt vmcnt(0)")
        for k in range(8):
            A(f"v_xor_b32 v{41 + 2 * k}, v{41 + 2 * k}, v12")
        A("v_or3_b32 v41, v41, v43, v45\nv_or3_b32 v47, v47, v49, v51\nv_or3_b32 v41, v41, v53, v55")
        A("v_or_b32 v41, v41, v47")
        A("v_readfirstlane_b32 s4, v12")
        A("v_cmp_ne_u32 vcc, 0, v41")
        A("s_cbranch_vccnz L_qp_retry")
        A("s_cmp_lg_u32 s4, 0\ns_cbranch_scc1 L_qp_ok")
        A("L_qp_retry:")
        self.budget("L_qp_loop")
        A("L_qp_ok:")
        A("v_mov_b32 v41, v42\nv_mov_b32 v42, v44\nv_mov_b32 v43, v46")
        A("v_mov_b32 v49, v50\nv_mov_b32 v50, v52\nv_mov_b32 v51, v54")
        A("v_lshlrev_b32 v5, 4, v0")
        A(f"ds_write_b128 v5, v[40:43] offset:{L_QB}\nds_write_b128 v5, v[48:51] offset:{L_QA}")
        A("s_waitcnt lgkmcnt(0)")
        self.stamp(2)
        A("L_h_b1:")
        A("s_barrier")
        A("s_waitcnt vmcnt(0)")
        A("s_barrier")
        A("s_cmp_lg_u32 s66, 0\ns_cbranch_scc1 L_h_b3")
        A("v_lshrrev_b32 v3, 4, v0\nv_bfe_u32 v4, v0, 2, 2\nv_and_b32 v5, 3, v0")
        A("v_lshlrev_b32 v6, 13, v4\nv_lshl_add_u32 v6, v3, 10, v6\nv_lshl_add_u32 v6, v5, 4, v6")
        A("v_lshlrev_b32 v7, 8, v4")
        A("s_lshl_b32 s72, s68, 15\ns_lshr_b32 s4, s67, 2\ns_lshl_b32 s5, s4, 12\ns_add_u32 s72, s72, s5")
        A("s_lshl_b32 s73, s68, 10\ns_lshl_b32 s5, s4, 7\ns_add_u32 s73, s73, s5")
        A("s_lshl_b32 s5, s69, 8\ns_add_u32 s72, s72, s5\ns_lshl_b32 s5, s69, 5\ns_add_u32 s73, s73, s5")
        A("s_and_b32 s4, s67, 3\ns_lshl_b32 s5, s4, 6\ns_add_u32 s72, s72, s5")
        A("s_lshl_b32 s5, s4, 3\ns_add_u32 s73, s73, s5")
        A(f"s_add_u32 s72, s72, {PREC}\ns_add_u32 s73, s73, {HDR}")
        self.combine(128, 6, 7, 72, 73)
        A("v_mov_b32 v3, 1")
        A("s_waitcnt vmcnt(0)")
        A("s_mov_b64 exec, 1\nglobal_atomic_add v2, v3, s[58:59] offset:128 sc1\ns_mov_b64 exec, -1")
        A("L_grid:")
        A(f"s_sleep {self.sleep_grid}")
        A("global_load_dword v12, v2, s[58:59] offset:128 sc1")
        A("s_waitcnt vmcnt(0)\nv_readfirstlane_b32 s4, v12\ns_nop 0")
        A("s_cmp_ge_u32 s4, 256\ns_cbranch_scc1 L_grid_ok")
        A("s_sub_u32 s82, s82, 63")
        A("s_cmp_gt_i32 s82, 0\ns_cbranch_scc1 L_grid\ns_endpgm")
        A("L_grid_ok:")
        self.stamp(4)
        nun = 4 * len(self.levels)
        starts, s = [], self.SR
        for n in self.levels:
            starts.append(s)
            s += n
        st64 = sum(v << (8 * k) for k, v in enumerate(starts))
        ln32 = sum(v << (4 * k) for k, v in enumerate(self.levels))
        assert len(self.levels) <= 8 and all(n < 16 for n in self.levels) and nun + 1 <= 48
        A(f"s_mov_b32 s70, {st64 & 0xffffffff:#x}\ns_mov_b32 s71, {st64 >> 32:#x}\ns_mov_b32 s72, {ln32:#x}")
        A(f"s_lshl_b32 s73, s63, 1\ns_add_u32 s73, s73, s64\ns_lshl_b32 s73, s73, 8\ns_add_u32 s73, s73, {CNT}")
        A("s_lshl_b32 s74, s64, 7\ns_add_u32 s74, s74, s63\ns_lshl_b32 s74, s74, 20")
        A(f"s_mov_b32 s75, {L_QUEUE}\nv_mov_b32 v3, {L_REQ}")
        A("L_cl:")
        A("ds_read_b32 v4, v3\ns_waitcnt lgkmcnt(0)\nv_readfirstlane_b32 s4, v4\ns_nop 0")
        A("s_cmp_gt_u32 s4, s75\ns_cbranch_scc1 L_claim")
        A("s_sleep 1")
        self.budget("L_cl")
        A("L_claim:")
        if nun:
            A("s_mov_b32 s76, 1\ns_atomic_add s76, s[60:61], s73 glc\ns_waitcnt lgkmcnt(0)")
        else:
            A("s_mov_b32 s76, 0")
        A("s_lshr_b32 s78, s76, 2\ns_and_b32 s79, s76, 3")
        A("s_lshl_b32 s4, s78, 3\ns_lshr_b64 s[4:5], s[70:71], s4\ns_and_b32 s4, s4, 0xff\ns_lshl_b32 s4, s4, 14")
        A("s_lshl_b32 s5, s78, 2\ns_lshr_b32 s5, s72, s5\ns_and_b32 s5, s5, 15\ns_or_b32 s4, s4, s5")
        A("s_mul_i32 s5, s79, 0x2000100\ns_add_u32 s4, s4, s5\ns_add_u32 s4, s4, s74")
        A(f"s_cmp_ge_u32 s76, {nun}\ns_cselect_b32 s4, 0x80, s4")
        A("v_mov_b32 v5, s75\nv_mov_b32 v6, s4")
        A("s_mov_b64 exec, 1\nds_write_b32 v5, v6\ns_mov_b64 exec, -1")
        A("s_add_u32 s75, s75, 4")
        A("s_cmp_lg_u32 s4, 0x80\ns_cbranch_scc1 L_cl")
        A("L_h_b3:")
        A("s_lshr_b32 s70, s66, 1\ns_xor_b32 s70, s70, 1\ns_and_b32 s71, s66, 1")
        A("s_cmp_eq_u32 s70, 1")
        self.srd_sel(8, 44, 54, 0x400000)
        self.srd(12, 56, 0x4000)
        A("v_lshrrev_b32 v4, 3, v0\nv_and_b32 v5, 7, v0\nv_lshlrev_b32 v4, 10, v4\nv_lshl_add_u32 v4, v5, 4, v4")
        for k in range(1, 4):
            A(f"v_xor_b32 v{4 + k}, {k << 5}, v4")
        A("s_lshl_b32 s72, s63, 17\ns_lshl_b32 s4, s71, 16\ns_add_u32 s72, s72, s4")
        A("s_lshl_b32 s4, s62, 7\ns_add_u32 s72, s72, s4")
        A(f"s_lshl_b32 s73, s70, 14\ns_add_u32 s73, s73, {L_ST}")
        A("s_lshl_b32 s4, s71, 13\ns_add_u32 s4, s4, s73\ns_mov_b32 m0, s4")
        A("v_lshrrev_b32 v3, 4, v0\nv_bfe_u32 v12, v0, 2, 2\nv_and_b32 v13, 3, v0")
        A("v_lshl_add_u32 v8, v12, 3, v3\nv_lshlrev_b32 v8, 7, v8\nv_lshl_add_u32 v8, v13, 3, v8")
        A("v_lshl_add_u32 v8, v12, 5, v8\nv_add_u32 v8, s73, v8")
        for nb in range(1, 4):
            A(f"v_xor_b32 v{8 + nb}, {nb << 5}, v8")
        A("v_lshlrev_b32 v14, 8, v13\nv_lshl_add_u32 v14, v12, 6, v14\nv_lshl_add_u32 v14, v3, 4, v14")
        A("v_lshlrev_b32 v15, 5, v13\nv_lshl_add_u32 v15, v3, 3, v15")
        A("s_lshl_b32 s74, s70, 18\ns_lshl_b32 s4, s63, 13\ns_add_u32 s74, s74, s4")
        A(f"s_lshl_b32 s4, s71, 12\ns_add_u32 s74, s74, s4\ns_add_u32 s74, s74, {PREC}")
        A("s_lshl_b32 s75, s70, 13\ns_lshl_b32 s4, s63, 8\ns_add_u32 s75, s75, s4")
        A(f"s_lshl_b32 s4, s71, 7\ns_add_u32 s75, s75, s4\ns_add_u32 s75, s75, {HDR}")
        self.y_voff(60, 61)
        A("s_lshl_b32 s76, s70, 19\ns_lshl_b32 s4, s62, 13\ns_add_u32 s76, s76, s4")
        A(f"s_add_u32 s78, s76, {YWS}")
        A("s_lshl_b32 s4, s71, 18\ns_add_u32 s76, s78, s4\ns_lshl_b32 s4, s63, 6\ns_add_u32 s76, s76, s4")
        A("s_lshr_b32 s4, s63, 2\ns_lshl_b32 s5, s4, 16\ns_add_u32 s78, s78, s5")
        A("s_lshl_b32 s79, s4, 11\ns_and_b32 s4, s63, 3\ns_lshl_b32 s5, s4, 11\ns_add_u32 s78, s78, s5")
        A("s_lshl_b32 s5, s4, 3\ns_add_u32 s79, s79, s5\ns_lshl_b32 s5, s70, 10\ns_add_u32 s79, s79, s5")
        A("s_lshl_b32 s5, s62, 7\ns_add_u32 s79, s79, s5")
        A("v_lshlrev_b32 v61, 4, v0")
        A("v_lshlrev_b32 v62, 5, v3\nv_lshl_add_u32 v62, v13, 1, v62")
        A(f"s_lshl_b32 s4, s70, 2\ns_add_u32 s4, s4, {L_WOC}\nv_mov_b32 v63, s4\nv_mov_b32 v59, 1")
        A("s_waitcnt lgkmcnt(0)")
        A("s_barrier")
        self.stamp(5)
        for i in range(8):
            A(f"buffer_load_dwordx4 v{4 + (i & 3)}, s[8:11], s72 offen {self.nt} lds")
            if i < 7:
                A("s_add_u32 m0, m0, 0x400\ns_add_u32 s72, s72, 0x2000")
        A("s_waitcnt vmcnt(0)")
        A("s_mov_b64 exec, 1\nds_add_u32 v63, v59\ns_mov_b64 exec, -1")
        A("L_wo_spin:")
        A("ds_read_b32 v59, v63\ns_waitcnt lgkmcnt(0)\nv_readfirstlane_b32 s4, v59\ns_nop 0")
        A("s_cmp_eq_u32 s4, 2\ns_cbranch_scc1 L_wo_ok")
        self.budget("L_wo_spin")
        A("L_wo_ok:")
        for ks in range(4):
            if ks >= 1:
                A("s_waitcnt lgkmcnt(7)")
            for nb in range(4):
                for hf in range(2):
                    r = 64 + 16 * ks + 4 * nb + 2 * hf
                    A(f"ds_read_b64_tr_b16 v[{r}:{r + 1}], v{8 + nb} offset:{ks * 4096 + hf * 512}")
        self.stamp(3)
        A("L_h1:")
        for ks in range(4):
            A(f"buffer_load_dwordx4 v[{16 + 4 * ks}:{19 + 4 * ks}], v14, s[24:27], s74 offen offset:{1024 * ks} sc1")
        A("buffer_load_dwordx2 v[32:33], v15, s[24:27], s75 offen sc1")
        if self.stamps:
            A("s_add_u32 s98, s98, 0x100")
        A("s_waitcnt vmcnt(0)")
        A("v_max3_u32 v34, v16, v17, v18\nv_max3_u32 v35, v19, v20, v21\nv_max3_u32 v36, v22, v23, v24")
        A("v_max3_u32 v37, v25, v26, v27\nv_max3_u32 v34, v34, v28, v29\nv_max3_u32 v35, v35, v30, v31")
        A("v_max3_u32 v36, v36, v32, v33\nv_max3_u32 v34, v34, v35, v37\nv_max_u32 v34, v34, v36")
        A("v_cmp_eq_u32 vcc, -1, v34\ns_cbranch_vccz L_h1_ok")
        self.budget("L_h1")
        A("L_h1_ok:")
        A("s_waitcnt lgkmcnt(0)")
        for ks in range(4):
            for nb in range(4):
                r = 64 + 16 * ks + 4 * nb
                c = "0" if ks == 0 else f"v[{40 + 4 * nb}:{43 + 4 * nb}]"
                A(f"v_mfma_f32_16x16x32_bf16 v[{40 + 4 * nb}:{43 + 4 * nb}], v[{16 + 4 * ks}:{19 + 4 * ks}], v[{r}:{r + 3}], {c}")
        q1 = "quad_perm:[1,0,3,2] row_mask:0xf bank_mask:0xf"
        q2 = "quad_perm:[2,3,0,1] row_mask:0xf bank_mask:0xf"
        A(f"v_max_f32_dpp v34, v32, v32 {q1}\ns_nop 1\nv_max_f32_dpp v35, v34, v34 {q2}")
        A("v_sub_f32 v32, v32, v35\nv_exp_f32 v32, v32\ns_nop 0\nv_mul_f32 v33, v33, v32\ns_nop 1")
        A(f"v_add_f32_dpp v34, v33, v33 {q1}\ns_nop 1\nv_add_f32_dpp v35, v34, v34 {q2}")
        A("v_rcp_f32 v35, v35\ns_nop 0\nv_mul_f32 v32, v32, v35\ns_nop 1")
        for s in range(4):
            for nb in range(4):
                op = "v_mul_f32_dpp" if s == 0 else "v_fmac_f32_dpp"
                A(f"{op} v{36 + nb}, v32, v{40 + 4 * nb + s} quad_perm:[{s},{s},{s},{s}] row_mask:0xf bank_mask:0xf")
        for nb in range(4):
            A(f"v_min_u32 v{36 + nb}, -2, v{36 + nb}")
        A("buffer_store_dwordx4 v[36:39], v60, s[24:27], s76 offen sc1")
        self.stamp(6)
        A("s_cmp_lg_u32 s71, 0\ns_cbranch_scc1 L_hfin")
        A("L_h2:")
        A("buffer_load_dwordx4 v[16:19], v61, s[24:27], s78 offen sc1")
        A("buffer_load_dwordx4 v[20:23], v61, s[24:27], s78 offen offset:1024 sc1")
        if self.stamps:
            A("s_add_u32 s98, s98, 0x10000")
        A("s_waitcnt vmcnt(0)")
        A("v_max3_u32 v24, v16, v17, v18\nv_max3_u32 v25, v19, v20, v21\nv_max3_u32 v24, v24, v22, v23")
        A("v_max_u32 v24, v24, v25")
        A("v_cmp_eq_u32 vcc, -1, v24\ns_cbranch_vccz L_h2_ok")
        self.budget("L_h2")
        A("L_h2_ok:")
        for r in range(4):
            A(f"v_add_f32 v{16 + r}, v{16 + r}, v{20 + r}")
        A("s_nop 1\nv_permlane32_swap_b32 v16, v18\nv_permlane32_swap_b32 v17, v19\ns_nop 0")
        A("v_add_f32 v16, v16, v18\nv_add_f32 v17, v17, v19")
        A("s_nop 1\nv_permlane16_swap_b32 v16, v17\ns_nop 0\nv_add_f32 v16, v16, v17\ns_nop 1")
        A("v_add_f32_dpp v17, v16, v16 row_ror:4 row_mask:0xf bank_mask:0xf\ns_nop 1")
        A("v_add_f32_dpp v16, v17, v17 row_ror:8 row_mask:0xf bank_mask:0xf")
        A("v_cvt_pk_bf16_f32 v16, v16, v16")
        A("s_mov_b32 exec_lo, 0x000f000f\ns_mov_b32 exec_hi, 0x000f000f")
        A("buffer_store_short v16, v62, s[12:15], s79 offen")
        if self.stamps:
            A("s_cmp_lg_u32 s66, 0\ns_cbranch_scc1 L_hfin")
            A("s_waitcnt vmcnt(0)")
            self.write_stamps(with_main=True)
            A("s_endpgm")
        A("L_hfin:")
        self.write_stamps()


if __name__ == "__main__":
    out = sys.argv[1]
    kw = eval("dict(" + (sys.argv[2] if len(sys.argv) > 2 else "") + ")")
    open(out, "w").write(G(**kw).gen())
```

```python
import sys, math, struct, re

NAME = "concat_heads__sliding_block_cached__mha_block_cached__decode"
REF = f"cdna_kernels/{NAME}.s.ref"

QWS, PREC, HDR, CNT, YWS, WSEND = 0x100000, 0x180000, 0x200000, 0x280000, 0x300000, 0x400000
STAMP = 0x10000
L_QRED, L_FLC, L_REQ, L_WOC, L_PROG = 0, 4, 8, 12, 20
L_QUEUE = 0x40
L_QA, L_QB = 0x400, 0x800
L_FL = 0x1000
L_ST = 0x4000
LDS_SIZE = 0x14000


def f2u(x):
    return struct.unpack("<I", struct.pack("<f", x))[0]


CSC = 128 ** -0.5 * math.log2(math.e)
BIG = 0x7FFFFFFF
OOB = 0x10000000


class G:
    def __init__(self, stamps=False, static_rounds=40, levels=(8, 6, 4, 2, 2, 1, 1), LA=1,
                 masks=(5, 6, 7, 5), nt="nt", sleep_grid=64, codepf=True, steps=False, nocomp=False, hprio=3, clsleep=1, qmode='full', gridat=30, noclear=False, amap=0):
        self.L = []
        self.tail = []
        self.stamps = stamps
        self.SR = static_rounds
        self.levels = levels
        assert static_rounds + sum(levels) == 64
        self.LA = LA
        self.masks = masks
        self.nt = nt
        self.sleep_grid = sleep_grid
        self.codepf = codepf
        self.uid = 0
        self.qmode = qmode
        self.gridat = gridat
        self.noclear = noclear
        self.amap = amap
        self.steps = steps
        self.nocomp = nocomp
        self.hprio = hprio
        self.clsleep = clsleep

    def A(self, s):
        for line in s.strip("\n").split("\n"):
            line = line.strip()
            if not line:
                continue
            self.L.append(line if line.endswith(":") else "    " + line)

    def lab(self, p):
        self.uid += 1
        return f"L_{p}_{self.uid}"

    def stamp(self, k):
        if self.stamps:
            self.A(f"s_memrealtime s[{84 + 2 * k}:{85 + 2 * k}]\ns_waitcnt lgkmcnt(0)")

    def write_stamps(self, with_main=False):
        if not self.stamps:
            return
        A = self.A
        A("s_mov_b64 exec, 1")
        A("s_lshl_b32 s4, s2, 8\ns_lshl_b32 s5, s3, 5\ns_add_u32 s4, s4, s5")
        A(f"s_add_u32 s4, s4, {STAMP}")
        A("v_mov_b32 v4, s4")
        for k in range(8):
            A(f"v_mov_b32 v{8 + k}, s{84 + 2 * k}")
        A("buffer_store_dwordx4 v[8:11], v4, s[24:27], 0 offen")
        A("buffer_store_dwordx4 v[12:15], v4, s[24:27], 0 offen offset:16")
        if with_main:
            A("s_memrealtime s[6:7]\ns_waitcnt lgkmcnt(0)")
            A("s_lshl_b32 s4, s2, 4\nv_mov_b32 v5, s4")
            A("v_mov_b32 v16, s84\nv_mov_b32 v17, s85\nv_mov_b32 v18, s6\nv_mov_b32 v19, s7")
            A("buffer_store_dwordx4 v[16:19], v5, s[24:27], 0 offen")

    def srd(self, d, lo, size):
        self.A(f"s_mov_b32 s{d}, s{lo}\ns_and_b32 s{d + 1}, s{lo + 1}, 0xffff\n"
               f"s_mov_b32 s{d + 2}, {size:#x}\ns_mov_b32 s{d + 3}, 0x20000")

    def srd_sel(self, d, loA, loB, size):
        self.A(f"s_cselect_b32 s{d}, s{loB}, s{loA}\ns_cselect_b32 s{d + 1}, s{loB + 1}, s{loA + 1}\n"
               f"s_and_b32 s{d + 1}, s{d + 1}, 0xffff\n"
               f"s_mov_b32 s{d + 2}, {size:#x}\ns_mov_b32 s{d + 3}, 0x20000")

    def budget(self, retry):
        self.A(f"s_sub_u32 s82, s82, 1\ns_cmp_lg_u32 s82, 0\ns_cbranch_scc1 {retry}\ns_endpgm")

    def tile(self, X, Q, acc, m, R, l, bias, kwait, vwait, issueK=None):
        A = self.A
        D, S, T = 40, 56, 60
        if kwait is not None:
            A(f"s_waitcnt vmcnt({kwait})")
        for t in range(4):
            A(f"v_mfma_f32_16x16x32_bf16 v[{D + 4 * t}:{D + 4 * t + 3}], v[{X + 4 * t}:{X + 4 * t + 3}], v[{Q}:{Q + 3}], 0")
        if issueK:
            issueK()
            A("s_nop 1")
        else:
            A("s_nop 5")
        if self.nocomp and issueK:
            A(f"s_waitcnt vmcnt({vwait})")
            return
        for c in range(4):
            for t in range(4):
                dpp = f"quad_perm:[{c},{c},{c},{c}] row_mask:0xf bank_mask:0xf"
                if c == 0 and bias is None:
                    A(f"v_mov_b32_dpp v{S + t}, v{D + 4 * t} {dpp}")
                else:
                    A(f"v_add_f32_dpp v{S + t}, v{D + 4 * t + c}, v{bias if c == 0 else S + t} {dpp}")
        rs, back = self.lab("rs"), self.lab("bk")
        A(f"v_max3_f32 v{T}, v{S}, v{S + 1}, v{S + 2}")
        A(f"v_max_f32 v{T}, v{T}, v{S + 3}")
        A(f"v_cmp_gt_f32 vcc, v{T}, v{m}")
        A(f"s_cbranch_vccnz {rs}")
        A(f"{back}:")
        for t in range(4):
            A(f"v_fma_f32 v{S + t}, v{S + t}, s77, -v{R}")
        for t in range(4):
            A(f"v_exp_f32 v{S + t}, v{S + t}")
        A(f"v_add_f32 v{T}, v{S}, v{S + 1}")
        A(f"v_cvt_pk_bf16_f32 v{S}, v{S}, v{S}")
        A(f"v_add_f32 v{T + 1}, v{S + 2}, v{S + 3}")
        for t in range(1, 4):
            A(f"v_cvt_pk_bf16_f32 v{S + t}, v{S + t}, v{S + t}")
        for t in range(4):
            A(f"v_and_b32 v{D + 2 * t}, v{S + t}, v4")
            A(f"v_and_b32 v{D + 2 * t + 1}, v{S + t}, v5")
        A(f"v_add_f32 v{l}, v{l}, v{T}")
        A(f"v_add_f32 v{l}, v{l}, v{T + 1}")
        if vwait is not None:
            A(f"s_waitcnt vmcnt({vwait})")
        for t in range(4):
            V = X + 16 + 4 * t
            A(f"v_mfma_f32_16x16x16_bf16 v[{acc}:{acc + 3}], v[{V}:{V + 1}], v[{D + 2 * t}:{D + 2 * t + 1}], v[{acc}:{acc + 3}]")
            A(f"v_mfma_f32_16x16x16_bf16 v[{acc + 4}:{acc + 7}], v[{V + 2}:{V + 3}], v[{D + 2 * t}:{D + 2 * t + 1}], v[{acc + 4}:{acc + 7}]")
        o = [f"{rs}:",
             f"v_mov_b32 v{T + 1}, v{T}", "s_nop 1",
             f"v_permlane32_swap_b32 v{T + 1}, v{T}", "s_nop 0",
             f"v_max_f32 v{T}, v{T}, v{T + 1}",
             f"v_mov_b32 v{T + 1}, v{T}", "s_nop 1",
             f"v_permlane16_swap_b32 v{T + 1}, v{T}", "s_nop 0",
             f"v_max3_f32 v{m}, v{m}, v{T}, v{T + 1}",
             f"v_mul_f32 v{T}, s77, v{m}",
             f"v_sub_f32 v{T + 1}, v{R}, v{T}",
             f"v_exp_f32 v{T + 1}, v{T + 1}",
             f"v_mov_b32 v{R}, v{T}",
             f"v_mul_f32 v{l}, v{l}, v{T + 1}"]
        for i in range(8):
            o.append(f"v_mul_f32 v{acc + i}, v{acc + i}, v{T + 1}")
        o.append(f"s_branch {back}")
        self.tail.append("\n".join(o))

    def loads(self, dst, voff, srd, soff):
        for t in range(4):
            self.A(f"buffer_load_dwordx4 v[{dst + 4 * t}:{dst + 4 * t + 3}], v{voff}, s[{srd}:{srd + 3}], s{soff} offen offset:{1024 * t} {self.nt}")

    def flush_write(self, acc, R):
        A = self.A
        A(f"s_mul_i32 s4, s3, 0xc00\ns_add_u32 s4, s4, {L_FL}")
        A("v_lshlrev_b32 v60, 4, v0\nv_lshlrev_b32 v61, 3, v0")
        A("v_add_u32 v60, s4, v60\nv_add_u32 v61, s4, v61")
        A("s_nop 3")
        A(f"ds_write_b128 v60, v[{acc}:{acc + 3}]")
        A(f"ds_write_b128 v60, v[{acc + 4}:{acc + 7}] offset:1024")
        A(f"ds_write_b64 v61, v[{R}:{R + 1}] offset:2048")

    def combine(self, b, vrec, vhdr, srec, shdr):
        A = self.A
        a = lambda w: b + 12 * w
        t = b + 48
        A(f"v_lshlrev_b32 v{t}, 4, v0\nv_lshlrev_b32 v{t + 1}, 3, v0")
        for w in range(4):
            A(f"ds_read_b64 v[{a(w) + 8}:{a(w) + 9}], v{t + 1} offset:{L_FL + 0xc00 * w + 2048}")
        for w in range(4):
            A(f"ds_read_b128 v[{a(w)}:{a(w) + 3}], v{t} offset:{L_FL + 0xc00 * w}")
            A(f"ds_read_b128 v[{a(w) + 4}:{a(w) + 7}], v{t} offset:{L_FL + 0xc00 * w + 1024}")
        A("s_waitcnt lgkmcnt(8)")
        Rm, Ls = t + 2, t + 3
        A(f"v_max3_f32 v{Rm}, v{a(0) + 8}, v{a(1) + 8}, v{a(2) + 8}")
        A(f"v_max_f32 v{Rm}, v{Rm}, v{a(3) + 8}")
        for w in range(4):
            A(f"v_sub_f32 v{a(w) + 8}, v{a(w) + 8}, v{Rm}")
        for w in range(4):
            A(f"v_exp_f32 v{a(w) + 8}, v{a(w) + 8}")
        A(f"v_mul_f32 v{Ls}, v{a(0) + 8}, v{a(0) + 9}")
        for w in range(1, 4):
            A(f"v_fmac_f32 v{Ls}, v{a(w) + 8}, v{a(w) + 9}")
        A(f"v_mov_b32 v{t}, v{Ls}")
        A("s_waitcnt lgkmcnt(6)")
        for i in range(8):
            A(f"v_mul_f32 v{a(0) + i}, v{a(0) + 8}, v{a(0) + i}")
        A(f"v_permlane32_swap_b32 v{t}, v{Ls}")
        A("s_waitcnt lgkmcnt(4)")
        A(f"v_add_f32 v{Ls}, v{Ls}, v{t}")
        A(f"v_mov_b32 v{t}, v{Ls}")
        for i in range(8):
            A(f"v_fmac_f32 v{a(0) + i}, v{a(1) + 8}, v{a(1) + i}")
        A(f"v_permlane16_swap_b32 v{t}, v{Ls}")
        A("s_waitcnt lgkmcnt(2)")
        A(f"v_add_f32 v{Ls}, v{Ls}, v{t}")
        for i in range(8):
            A(f"v_fmac_f32 v{a(0) + i}, v{a(2) + 8}, v{a(2) + i}")
        A("s_waitcnt lgkmcnt(0)")
        for i in range(8):
            A(f"v_fmac_f32 v{a(0) + i}, v{a(3) + 8}, v{a(3) + i}")
        o = t + 4
        for k in range(4):
            A(f"v_cvt_pk_bf16_f32 v{o + k}, v{a(0) + 2 * k}, v{a(0) + 2 * k + 1}")
        for k in range(4):
            A(f"v_min_u32 v{o + k}, -2, v{o + k}")
        A(f"v_min_u32 v{Rm}, -2, v{Rm}\nv_min_u32 v{Ls}, -2, v{Ls}")
        A(f"buffer_store_dwordx4 v[{o}:{o + 3}], v{vrec}, s[24:27], s{srec} offen sc1")
        A("s_mov_b64 exec, 0x1111")
        A(f"buffer_store_dwordx2 v[{Rm}:{Ls}], v{vhdr}, s[24:27], s{shdr} offen sc1")
        A("s_mov_b64 exec, -1")

    def brec_addr(self, vrec, vhdr, srec, shdr):
        A = self.A
        A(f"v_lshrrev_b32 v{vrec}, 4, v0\nv_and_b32 v{vhdr}, 15, v0")
        A(f"v_lshlrev_b32 v{vrec}, 10, v{vrec}")
        A(f"v_lshl_add_u32 v{vrec}, v{vhdr}, 4, v{vrec}")
        A(f"v_lshlrev_b32 v{vhdr}, 1, v{vhdr}")
        A(f"s_lshl_b32 s{srec}, s63, 13\ns_lshl_b32 s4, s64, 12\ns_add_u32 s{srec}, s{srec}, s4")
        A(f"s_lshl_b32 s4, s65, 8\ns_add_u32 s{srec}, s{srec}, s4\ns_add_u32 s{srec}, s{srec}, {PREC + 0x40000}")
        A(f"s_lshl_b32 s{shdr}, s63, 8\ns_lshl_b32 s4, s64, 7\ns_add_u32 s{shdr}, s{shdr}, s4")
        A(f"s_lshl_b32 s4, s65, 5\ns_add_u32 s{shdr}, s{shdr}, s4\ns_add_u32 s{shdr}, s{shdr}, {HDR + 0x2000}")

    def y_voff(self, v, t):
        A = self.A
        A(f"v_lshrrev_b32 v{v}, 4, v0\nv_lshlrev_b32 v{v}, 16, v{v}")
        A(f"v_bfe_u32 v{t}, v0, 2, 2\nv_lshl_add_u32 v{v}, v{t}, 11, v{v}")
        A(f"v_and_b32 v{t}, 3, v0\nv_lshl_add_u32 v{v}, v{t}, 4, v{v}")

    def gen(self):
        A = self.A
        hdr = open(REF).read().split("\n")
        for line in hdr:
            if line.startswith("; @launch"):
                self.L.append(f"; @launch grid=(256,1,1) block=(512,1,1) lds={LDS_SIZE}")
                break
            self.L.append(line)
        self.L += ['.amdgcn_target "amdgcn-amd-amdhsa--gfx950"', ".text", f".globl {NAME}_kernel", ".p2align 8",
                   f".type {NAME}_kernel,@function", f"{NAME}_kernel:"]
        A("s_cmp_ge_u32 s2, 256\ns_cbranch_scc1 L_end")
        A("s_load_dwordx16 s[36:51], s[0:1], 0")
        A("s_load_dwordx8 s[52:59], s[0:1], 64")
        A("s_load_dwordx2 s[60:61], s[0:1], 96")
        A("s_memrealtime s[84:85]")
        A("v_lshrrev_b32 v1, 6, v0\nv_and_b32 v0, 63, v0")
        A("v_mov_b32 v2, 0")
        A("v_readfirstlane_b32 s3, v1")
        A("v_lshlrev_b32 v1, 2, v0")
        A("s_and_b32 s62, s2, 7\ns_lshr_b32 s63, s2, 3")
        tab = sum(mk << (4 * k) for k, mk in enumerate(self.masks))
        A(f"s_and_b32 s4, s63, 3\ns_lshl_b32 s4, s4, 2\ns_lshr_b32 s4, {tab:#x}, s4")
        A("s_and_b32 s4, s4, s62\ns_bcnt1_i32_b32 s4, s4\ns_and_b32 s64, s4, 1")
        A("s_and_b32 s65, s62, 3")
        A("s_lshr_b32 s67, s2, 5\ns_bfe_u32 s68, s2, 0x30002\ns_and_b32 s69, s2, 3")
        A(f"s_mov_b32 s77, {f2u(CSC):#x}")
        A("s_mov_b32 s82, 0x400000")
        A("s_cmp_lg_u32 s3, 0\ns_cbranch_scc1 L_noinit")
        A("ds_write_b32 v1, v2")
        A("L_noinit:")
        A("s_waitcnt lgkmcnt(0)")
        if self.stamps:
            for k in range(1, 8):
                A(f"s_mov_b32 s{84 + 2 * k}, 0")
        self.srd(24, 60, WSEND)
        A("s_cmp_ge_u32 s3, 4\ns_cbranch_scc1 L_helper")
        self.stream()
        A("L_helper:")
        self.helper()
        A("L_end:\ns_endpgm")
        for blk in self.tail:
            A(blk)
        A("L_code_end:")
        self.L += ['.section .rodata,"a"', ".p2align 6", f".amdhsa_kernel {NAME}_kernel",
                   "  .amdhsa_next_free_vgpr 256", "  .amdhsa_next_free_sgpr 102", "  .amdhsa_accum_offset 256",
                   "  .amdhsa_group_segment_fixed_size 0", "  .amdhsa_kernarg_size 104",
                   "  .amdhsa_user_sgpr_count 2", "  .amdhsa_user_sgpr_kernarg_segment_ptr 1",
                   "  .amdhsa_system_sgpr_workgroup_id_x 1", ".end_amdhsa_kernel"]
        return "\n".join(self.L) + "\n"

    def stream(self):
        A = self.A
        self.srd(8, 48, 0x10000000)
        self.srd(12, 50, 0x10000000)
        self.srd(16, 38, 0x4000000)
        self.srd(20, 40, 0x4000000)
        A("s_or_b32 s4, s2, s3\ns_cmp_lg_u32 s4, 0\ns_cbranch_scc1 L_notag")
        A("s_or_b32 s4, s84, 1\nv_mov_b32 v3, s4")
        A("s_mov_b64 exec, 1\nglobal_store_dword v2, v3, s[58:59] sc1\ns_mov_b64 exec, -1")
        A("L_notag:")
        A("v_lshrrev_b32 v3, 4, v0\nv_bfe_u32 v4, v0, 2, 2\nv_and_b32 v5, 3, v0")
        A("v_lshlrev_b32 v1, 8, v4\nv_lshl_add_u32 v1, v3, 6, v1\nv_lshl_add_u32 v1, v5, 4, v1")
        A("v_lshlrev_b32 v2, 4, v0")
        A("s_lshl_b32 s78, s3, 12")
        A("s_lshl_b32 s4, s64, 2\ns_add_u32 s4, s4, s65\ns_lshl_b32 s4, s4, 5\ns_add_u32 s4, s4, s63")
        A("s_lshl_b32 s70, s4, 20\ns_add_u32 s70, s70, s78")
        A("s_lshr_b32 s4, s2, 2\ns_lshl_b32 s4, s4, 20\ns_lshl_b32 s5, s69, 16\ns_add_u32 s79, s4, s5")
        A("s_add_u32 s79, s79, s78\ns_add_u32 s79, s79, 0xc0000")
        A("s_barrier")
        for sl in range(2):
            self.loads(64 + 32 * sl, 1, 8, 70)
            self.loads(80 + 32 * sl, 2, 12, 70)
            A("s_add_u32 s70, s70, 0x4000")
        for a in range(4):
            self.loads(128 + 32 * a, 1, 16, 79)
            self.loads(144 + 32 * a, 2, 20, 79)
            if a < 3:
                A("s_add_u32 s79, s79, 0x4000")
        A("v_mov_b32 v3, v4")
        A("v_and_b32 v6, 1, v5\nv_lshlrev_b32 v6, 4, v6\nv_mov_b32 v7, 0xffff\nv_lshlrev_b32 v6, v6, v7")
        A("v_cmp_le_u32 vcc, 2, v5\ns_nop 1")
        A("v_cndmask_b32 v5, 0, v6, vcc\nv_xor_b32 v4, v5, v6")
        A("v_mov_b32 v7, 0xff800000")
        for r in list(range(16, 24)) + list(range(28, 36)) + [27, 39]:
            A(f"v_mov_b32 v{r}, 0")
        A("v_mov_b32 v24, 0xff7fffff\nv_mov_b32 v36, 0xff7fffff")
        A("v_mul_f32 v26, s77, v24\nv_mul_f32 v38, s77, v36")
        A(f"s_mov_b32 s71, {self.SR - 2}")
        A("s_mov_b32 s72, s65\ns_mov_b32 s73, s65\ns_mov_b32 s74, s65")
        A(f"s_mov_b32 s75, {L_QUEUE}\ns_mov_b32 s76, 0")
        self.brec_addr(25, 37, 80, 81)
        if self.steps:
            A("v_mov_b32 v62, 0\nv_mov_b32 v63, 0\ns_mov_b32 s83, 0")
        self.stamp(1)
        A("s_barrier")
        A(f"ds_read_b128 v[8:11], v2 offset:{L_QB}")
        A(f"ds_read_b128 v[12:15], v2 offset:{L_QA}")
        A("s_waitcnt lgkmcnt(0)")
        self.stamp(2)
        A("L_loop:")
        for sl in range(2):
            X = 64 + 32 * sl
            A(f"v_cmp_ne_u32 vcc, s{73 + sl}, v3")
            A(f"s_cmp_le_u32 s71, {self.LA}\ns_cbranch_scc1 L_slow{sl}")
            A(f"L_cont{sl}:")
            A("v_cndmask_b32 v6, 0, v7, vcc")
            A(f"s_mov_b32 s{73 + sl}, s72")
            if self.steps:
                A("s_memrealtime s[6:7]")
            self.tile(X, 8, 16, 24, 26, 27, 6, 12, 12, issueK=lambda: self.loads(X, 1, 8, 70))
            if self.steps:
                A(f"s_waitcnt lgkmcnt(0)\ns_mov_b32 m0, s83\nv_writelane_b32 v{62 + sl}, s6, m0")
                if sl == 1:
                    A("s_add_u32 s83, s83, 1")
            A(f"s_cmp_eq_u32 s71, {BIG - 1}\ns_cbranch_scc1 L_exit")
            self.loads(X + 16, 2, 12, 70)
            A("s_add_u32 s70, s70, 0x4000\ns_sub_u32 s71, s71, 1")
            sp, got, dn, rq = f"L_spin{sl}", f"L_got{sl}", f"L_done{sl}", f"L_req{sl}"
            o = [f"L_slow{sl}:",
                 "s_cmp_lg_u32 s71, 0", f"s_cbranch_scc1 {rq}",
                 "v_mov_b32 v60, s75",
                 f"{sp}:",
                 "ds_read_b32 v61, v60", "s_waitcnt lgkmcnt(0)",
                 "v_readfirstlane_b32 s4, v61",
                 "s_nop 0",
                 "s_cmp_lg_u32 s4, 0", f"s_cbranch_scc1 {got}",
                 "s_sub_u32 s82, s82, 1", "s_cmp_lg_u32 s82, 0", f"s_cbranch_scc1 {sp}", "s_endpgm",
                 f"{got}:",
                 "s_add_u32 s75, s75, 4",
                 "s_cmp_eq_u32 s4, 0x80", f"s_cbranch_scc1 {dn}",
                 "s_and_b32 s71, s4, 0x7f", "s_bfe_u32 s72, s4, 0x20008",
                 "s_and_b32 s70, s4, 0xffffc000", "s_add_u32 s70, s70, s78", "s_mov_b32 s76, 0",
                 f"s_cmp_le_u32 s71, {self.LA}", f"s_cbranch_scc0 L_cont{sl}",
                 f"{rq}:",
                 "s_cmp_lg_u32 s76, 0", f"s_cbranch_scc1 L_cont{sl}",
                 "s_mov_b32 s76, 1", "s_add_u32 s4, s75, 4",
                 f"v_mov_b32 v60, {L_REQ}", "v_mov_b32 v61, s4",
                 "s_mov_b64 exec, 1", "ds_max_u32 v60, v61", "s_mov_b64 exec, -1",
                 f"s_branch L_cont{sl}",
                 f"{dn}:",
                 f"s_mov_b32 s70, {OOB:#x}", f"s_mov_b32 s71, {BIG:#x}"]
            if self.stamps:
                o += ["s_memrealtime s[92:93]", "s_waitcnt lgkmcnt(0)"]
            o += ["s_barrier",
                  f"s_branch L_cont{sl}"]
            self.tail.append("\n".join(o))
        assert (self.SR - self.gridat) % 2 == 0 and self.SR - self.gridat >= 2
        A(f"s_cmp_eq_u32 s71, {self.SR - self.gridat}\ns_cbranch_scc1 L_sigprog")
        self.tail.append(f"L_sigprog:\nv_mov_b32 v60, {L_PROG}\nds_write_b32 v60, v60\ns_branch L_loop")
        A(f"s_cmp_lg_u32 s71, {self.SR - 4}\ns_cbranch_scc1 L_loop")
        A("s_waitcnt vmcnt(16)")
        for a in range(4):
            self.tile(128 + 32 * a, 12, 28, 36, 38, 39, None, None, None)
        self.flush_write(28, 38)
        A("s_waitcnt lgkmcnt(0)")
        self.stamp(3)
        A("s_barrier")
        A("s_branch L_loop")
        A("L_exit:")
        if self.steps:
            A(f"s_lshl_b32 s4, s2, 2\ns_add_u32 s4, s4, s3\ns_lshl_b32 s4, s4, 9\ns_add_u32 s4, s4, 0x20000")
            A("v_lshlrev_b32 v60, 3, v0\nbuffer_store_dwordx2 v[62:63], v60, s[24:27], s4 offen\ns_nop 2")
        self.flush_write(16, 26)
        A(f"v_mov_b32 v62, {L_FLC}\nv_mov_b32 v63, 1")
        A("s_mov_b64 exec, 1\nds_add_rtn_u32 v62, v62, v63\ns_mov_b64 exec, -1")
        A("s_waitcnt lgkmcnt(0)")
        A("v_readfirstlane_b32 s4, v62")
        self.stamp(5)
        A("s_nop 0\ns_cmp_lg_u32 s4, 3\ns_cbranch_scc1 L_sfin")
        self.combine(128, 25, 37, 80, 81)
        self.stamp(6)
        A("L_sfin:")
        self.write_stamps()
        A("s_endpgm")

    def helper(self):
        A = self.A
        A(f"s_setprio {self.hprio}")
        A("s_sub_u32 s66, s3, 4")
        if self.qmode == 'none':
            A("s_branch L_noprod")
        A("s_xor_b32 s4, s62, s63\ns_bitcmp1_b32 s4, 0\ns_cbranch_scc1 L_noprod")
        A("s_lshr_b32 s4, s2, 1")
        A("s_and_b32 s70, s4, 63\ns_lshr_b32 s71, s4, 6")
        A("s_cmp_eq_u32 s71, 1")
        A("s_cselect_b32 s12, s46, s36\ns_cselect_b32 s13, s47, s37")
        self.srd_sel(8, 42, 52, 0x400000)
        A("s_and_b32 s13, s13, 0xffff\ns_mov_b32 s14, 0x2000\ns_mov_b32 s15, 0x20000")
        A("v_lshrrev_b32 v3, 4, v0\nv_and_b32 v4, 7, v0")
        A("v_lshlrev_b32 v5, 10, v4\nv_lshl_add_u32 v5, v3, 4, v5")
        A("s_lshl_b32 s72, s66, 8")
        A("v_lshrrev_b32 v6, 3, v0\nv_lshlrev_b32 v6, 13, v6")
        A("v_and_b32 v7, 1, v3\nv_lshlrev_b32 v7, 1, v7\nv_xor_b32 v7, v7, v4")
        A("v_lshl_add_u32 v6, v7, 4, v6\nv_xor_b32 v7, 64, v6")
        A("s_lshl_b32 s73, s66, 20\ns_lshl_b32 s4, s70, 7\ns_add_u32 s73, s73, s4")
        A(f"s_lshl_b32 s74, s66, 14\ns_add_u32 s74, s74, {L_ST}")
        A("s_mov_b32 m0, s74")
        A("s_barrier")
        for ks in range(4):
            A(f"buffer_load_dwordx4 v[{16 + 4 * ks}:{19 + 4 * ks}], v5, s[12:15], s72 offen offset:{64 * ks}")
        for i in range(16):
            A(f"buffer_load_dwordx4 v{6 + (i & 1)}, s[8:11], s73 offen {self.nt} lds")
            if i < 15:
                A("s_add_u32 m0, m0, 0x400\ns_add_u32 s73, s73, 0x10000")
        A("global_load_dword v12, v2, s[58:59] sc1")
        A("v_bfe_u32 v4, v0, 2, 2\nv_and_b32 v5, 3, v0")
        A("v_lshl_add_u32 v6, v3, 3, v4\nv_lshlrev_b32 v6, 7, v6\nv_lshl_add_u32 v6, v5, 3, v6")
        A("v_lshrrev_b32 v4, 1, v4\nv_and_b32 v5, 1, v3\nv_lshl_add_u32 v4, v5, 1, v4")
        A("v_lshl_add_u32 v6, v4, 5, v6\nv_add_u32 v8, s74, v6")
        for nb in range(1, 4):
            A(f"v_xor_b32 v{8 + nb}, {nb << 5}, v8")
        for ks in range(4):
            A(f"s_waitcnt vmcnt({13 - 4 * ks})")
            for nb in range(4):
                for hf in range(2):
                    r = 64 + 16 * ks + 4 * nb + 2 * hf
                    A(f"ds_read_b64_tr_b16 v[{r}:{r + 1}], v{8 + nb} offset:{ks * 4096 + hf * 512}")
            A("s_waitcnt lgkmcnt(0)")
            for nb in range(4):
                r = 64 + 16 * ks + 4 * nb
                c = "0" if ks == 0 else f"v[{32 + 4 * nb}:{35 + 4 * nb}]"
                A(f"v_mfma_f32_16x16x32_bf16 v[{32 + 4 * nb}:{35 + 4 * nb}], v[{r}:{r + 3}], v[{16 + 4 * ks}:{19 + 4 * ks}], {c}")
        A("v_lshlrev_b32 v4, 4, v0\nv_add_u32 v5, s74, v4")
        A(f"s_lshl_b32 s4, s66, 10\ns_add_u32 s4, s4, {L_ST}\nv_add_u32 v4, s4, v4")
        A(f"v_mov_b32 v6, {L_QRED}\nv_mov_b32 v7, 1\ns_nop 3")
        for nb in range(4):
            A(f"ds_write_b128 v5, v[{32 + 4 * nb}:{35 + 4 * nb}] offset:{1024 * nb}")
        A("s_mov_b64 exec, 1\nds_add_u32 v6, v7\ns_mov_b64 exec, -1")
        A("L_qr_spin:")
        A("ds_read_b32 v7, v6\ns_waitcnt lgkmcnt(0)\nv_readfirstlane_b32 s4, v7\ns_nop 0")
        A("s_cmp_eq_u32 s4, 4\ns_cbranch_scc1 L_qr_ok")
        self.budget("L_qr_spin")
        A("L_qr_ok:")
        for w in range(4):
            A(f"ds_read_b128 v[{32 + 4 * w}:{35 + 4 * w}], v4 offset:{0x4000 * w}")
        A("v_and_b32 v5, 15, v0\nv_lshlrev_b32 v5, 14, v5")
        A("v_and_b32 v6, 1, v3\nv_lshl_add_u32 v5, v6, 8, v5")
        A("v_lshrrev_b32 v6, 1, v3\nv_lshl_add_u32 v5, v6, 4, v5")
        A("s_lshl_b32 s72, s71, 17\ns_lshr_b32 s4, s70, 1\ns_lshl_b32 s4, s4, 9\ns_add_u32 s72, s72, s4")
        A("s_and_b32 s4, s70, 1\ns_lshl_b32 s4, s4, 7\ns_add_u32 s72, s72, s4")
        A(f"s_lshl_b32 s4, s66, 5\ns_add_u32 s72, s72, s4\ns_add_u32 s72, s72, {QWS}")
        A("s_waitcnt lgkmcnt(0)")
        for r in range(4):
            A(f"v_add_f32 v{32 + r}, v{32 + r}, v{36 + r}\nv_add_f32 v{40 + r}, v{40 + r}, v{44 + r}")
        for r in range(4):
            A(f"v_add_f32 v{32 + r}, v{32 + r}, v{40 + r}")
        A("v_cvt_pk_bf16_f32 v36, v32, v33\nv_cvt_pk_bf16_f32 v38, v34, v35")
        A("L_tag_chk:")
        A("s_waitcnt vmcnt(0)\nv_readfirstlane_b32 s4, v12\ns_nop 0")
        A("s_cmp_lg_u32 s4, 0\ns_cbranch_scc1 L_tag_ok")
        A("global_load_dword v12, v2, s[58:59] sc1")
        self.budget("L_tag_chk")
        A("L_tag_ok:")
        A("v_mov_b32 v37, v12\nv_mov_b32 v39, v12")
        A("s_mov_b32 exec_lo, 0x00ff00ff\ns_mov_b32 exec_hi, 0x00ff00ff")
        A("buffer_store_dwordx4 v[36:39], v5, s[24:27], s72 offen sc1")
        A("s_mov_b64 exec, -1")
        self.stamp(1)
        A("s_branch L_prod_done")
        A("L_noprod:")
        A("s_barrier")
        if self.codepf:
            A("s_cmp_lg_u32 s66, 2\ns_cbranch_scc1 L_prod_done")
            A("s_getpc_b64 s[4:5]")
            A("L_pc:")
            A(f"s_sub_u32 s4, s4, L_pc-{NAME}_kernel\ns_subb_u32 s5, s5, 0")
            A("v_lshlrev_b32 v3, 7, v0\nv_mov_b32 v5, s5")
            A(f"v_add_u32 v8, 0x2000, v3\nv_min_u32 v8, L_code_end-{NAME}_kernel-4, v8")
            A(f"v_min_u32 v3, L_code_end-{NAME}_kernel-4, v3")
            A("v_add_co_u32 v4, vcc, s4, v3\ns_nop 1\nv_addc_co_u32 v5, vcc, 0, v5, vcc")
            A("v_mov_b32 v7, s5\nglobal_load_dword v10, v[4:5], off")
            A("v_add_co_u32 v6, vcc, s4, v8\ns_nop 1\nv_addc_co_u32 v7, vcc, 0, v7, vcc")
            A("global_load_dword v11, v[6:7], off")
        A("L_prod_done:")
        A("s_cmp_eq_u32 s66, 0\ns_cbranch_scc1 L_qpoll")
        if self.noclear:
            A("s_branch L_h_b1")
        A("s_cmp_lg_u32 s66, 1\ns_cbranch_scc1 L_h_b1")
        for r in range(20, 24):
            A(f"v_mov_b32 v{r}, -1")
        self.y_voff(24, 25)
        A(f"s_lshl_b32 s72, s62, 13\ns_lshl_b32 s4, s63, 6\ns_add_u32 s72, s72, s4\ns_add_u32 s72, s72, {YWS}")
        for k in range(4):
            A("buffer_store_dwordx4 v[20:23], v24, s[24:27], s72 offen sc1")
            A("s_add_u32 s72, s72, 0x40000")
        self.brec_addr(26, 27, 80, 81)
        A("buffer_store_dwordx4 v[20:23], v26, s[24:27], s80 offen sc1")
        A("s_mov_b64 exec, 0x1111")
        A("buffer_store_dwordx2 v[20:21], v27, s[24:27], s81 offen sc1")
        A("s_mov_b64 exec, -1")
        A("s_cmp_lg_u32 s65, 0\ns_cbranch_scc1 L_h_b1")
        A(f"s_lshl_b32 s72, s63, 1\ns_add_u32 s72, s72, s64\ns_lshl_b32 s72, s72, 8\ns_add_u32 s72, s72, {CNT}")
        A("s_mov_b64 exec, 1")
        A("buffer_store_dword v2, v2, s[24:27], s72 offen sc1")
        A("s_mov_b64 exec, -1")
        A("s_branch L_h_b1")
        A("L_qpoll:")
        A("v_lshrrev_b32 v3, 4, v0\nv_bfe_u32 v4, v0, 2, 2\nv_and_b32 v5, 3, v0")
        A("v_lshl_add_u32 v5, v3, 2, v5\nv_lshlrev_b32 v5, 4, v5")
        A("v_lshl_add_u32 v6, v4, 14, v5\nv_lshl_add_u32 v7, v4, 9, v5")
        A(f"s_lshl_b32 s72, s64, 16\ns_lshl_b32 s4, s63, 9\ns_add_u32 s72, s72, s4\ns_add_u32 s72, s72, {QWS + 0x20000}")
        A(f"s_lshl_b32 s73, s67, 14\ns_lshl_b32 s4, s68, 11\ns_add_u32 s73, s73, s4\ns_add_u32 s73, s73, {QWS}")
        if self.qmode != 'full':
            A("s_branch L_h_b1")
        A("L_qp_loop:")
        A("global_load_dword v12, v2, s[58:59] sc1")
        A("buffer_load_dwordx4 v[40:43], v6, s[24:27], s72 offen sc1")
        A("buffer_load_dwordx4 v[44:47], v6, s[24:27], s72 offen offset:256 sc1")
        A("buffer_load_dwordx4 v[48:51], v7, s[24:27], s73 offen sc1")
        A("buffer_load_dwordx4 v[52:55], v7, s[24:27], s73 offen offset:256 sc1")
        if self.stamps:
            A("s_add_u32 s98, s98, 1")
        A("s_waitcnt vmcnt(0)")
        for k in range(8):
            A(f"v_xor_b32 v{41 + 2 * k}, v{41 + 2 * k}, v12")
        A("v_or3_b32 v41, v41, v43, v45\nv_or3_b32 v47, v47, v49, v51\nv_or3_b32 v41, v41, v53, v55")
        A("v_or_b32 v41, v41, v47")
        A("v_readfirstlane_b32 s4, v12")
        A("v_cmp_ne_u32 vcc, 0, v41")
        A("s_cbranch_vccnz L_qp_retry")
        A("s_cmp_lg_u32 s4, 0\ns_cbranch_scc1 L_qp_ok")
        A("L_qp_retry:")
        self.budget("L_qp_loop")
        A("L_qp_ok:")
        A("v_mov_b32 v41, v42\nv_mov_b32 v42, v44\nv_mov_b32 v43, v46")
        A("v_mov_b32 v49, v50\nv_mov_b32 v50, v52\nv_mov_b32 v51, v54")
        A("v_lshlrev_b32 v5, 4, v0")
        A(f"ds_write_b128 v5, v[40:43] offset:{L_QB}\nds_write_b128 v5, v[48:51] offset:{L_QA}")
        A("s_waitcnt lgkmcnt(0)")
        self.stamp(2)
        A("L_h_b1:")
        A("s_barrier")
        A("s_waitcnt vmcnt(0)")
        A("s_barrier")
        A("s_cmp_lg_u32 s66, 0\ns_cbranch_scc1 L_h_b3")
        A("v_lshrrev_b32 v3, 4, v0\nv_bfe_u32 v4, v0, 2, 2\nv_and_b32 v5, 3, v0")
        A("v_lshlrev_b32 v6, 13, v4\nv_lshl_add_u32 v6, v3, 10, v6\nv_lshl_add_u32 v6, v5, 4, v6")
        A("v_lshlrev_b32 v7, 8, v4")
        A("s_lshl_b32 s72, s68, 15\ns_lshr_b32 s4, s67, 2\ns_lshl_b32 s5, s4, 12\ns_add_u32 s72, s72, s5")
        A("s_lshl_b32 s73, s68, 10\ns_lshl_b32 s5, s4, 7\ns_add_u32 s73, s73, s5")
        A("s_lshl_b32 s5, s69, 8\ns_add_u32 s72, s72, s5\ns_lshl_b32 s5, s69, 5\ns_add_u32 s73, s73, s5")
        A("s_and_b32 s4, s67, 3\ns_lshl_b32 s5, s4, 6\ns_add_u32 s72, s72, s5")
        A("s_lshl_b32 s5, s4, 3\ns_add_u32 s73, s73, s5")
        A(f"s_add_u32 s72, s72, {PREC}\ns_add_u32 s73, s73, {HDR}")
        self.combine(128, 6, 7, 72, 73)
        A("s_mov_b32 s6, 1")
        A("s_waitcnt vmcnt(0)")
        A("s_atomic_add s6, s[58:59], 128")
        A(f"v_mov_b32 v3, {L_PROG}")
        A("L_prog:")
        A("s_sleep 8")
        A("ds_read_b32 v4, v3\ns_waitcnt lgkmcnt(0)\nv_readfirstlane_b32 s4, v4\ns_nop 0")
        A("s_cmp_lg_u32 s4, 0\ns_cbranch_scc1 L_grid1")
        self.budget("L_prog")
        A("L_grid:")
        A(f"s_sleep {self.sleep_grid}")
        A("L_grid1:")
        A("global_load_dword v12, v2, s[58:59] offset:128 sc1")
        A("s_waitcnt vmcnt(0)\nv_readfirstlane_b32 s4, v12\ns_nop 0")
        A("s_cmp_ge_u32 s4, 256\ns_cbranch_scc1 L_grid_ok")
        A("s_sub_u32 s82, s82, 63")
        A("s_cmp_gt_i32 s82, 0\ns_cbranch_scc1 L_grid\ns_endpgm")
        A("L_grid_ok:")
        self.stamp(4)
        nun = 4 * len(self.levels)
        starts, s = [], self.SR
        for n in self.levels:
            starts.append(s)
            s += n
        st64 = sum(v << (8 * k) for k, v in enumerate(starts))
        ln32 = sum(v << (4 * k) for k, v in enumerate(self.levels))
        assert len(self.levels) <= 8 and all(n < 16 for n in self.levels) and nun + 1 <= 48
        A(f"s_mov_b32 s70, {st64 & 0xffffffff:#x}\ns_mov_b32 s71, {st64 >> 32:#x}\ns_mov_b32 s72, {ln32:#x}")
        A(f"s_lshl_b32 s73, s63, 1\ns_add_u32 s73, s73, s64\ns_lshl_b32 s73, s73, 8\ns_add_u32 s73, s73, {CNT}")
        A("s_lshl_b32 s74, s64, 7\ns_add_u32 s74, s74, s63\ns_lshl_b32 s74, s74, 20")
        A(f"s_mov_b32 s75, {L_QUEUE}\nv_mov_b32 v3, {L_REQ}")
        A("L_cl:")
        A("ds_read_b32 v4, v3\ns_waitcnt lgkmcnt(0)\nv_readfirstlane_b32 s4, v4\ns_nop 0")
        A("s_cmp_gt_u32 s4, s75\ns_cbranch_scc1 L_claim")
        A(f"s_sleep {self.clsleep}")
        self.budget("L_cl")
        A("L_claim:")
        if nun:
            A("s_mov_b32 s76, 1\ns_atomic_add s76, s[60:61], s73 glc\ns_waitcnt lgkmcnt(0)")
        else:
            A("s_mov_b32 s76, 0")
        A("s_lshr_b32 s78, s76, 2\ns_and_b32 s79, s76, 3")
        A("s_lshl_b32 s4, s78, 3\ns_lshr_b64 s[4:5], s[70:71], s4\ns_and_b32 s4, s4, 0xff\ns_lshl_b32 s4, s4, 14")
        A("s_lshl_b32 s5, s78, 2\ns_lshr_b32 s5, s72, s5\ns_and_b32 s5, s5, 15\ns_or_b32 s4, s4, s5")
        A("s_mul_i32 s5, s79, 0x2000100\ns_add_u32 s4, s4, s5\ns_add_u32 s4, s4, s74")
        A(f"s_cmp_ge_u32 s76, {nun}\ns_cselect_b32 s4, 0x80, s4")
        A("v_mov_b32 v5, s75\nv_mov_b32 v6, s4")
        A("s_mov_b64 exec, 1\nds_write_b32 v5, v6\ns_mov_b64 exec, -1")
        A("s_add_u32 s75, s75, 4")
        A("s_cmp_lg_u32 s4, 0x80\ns_cbranch_scc1 L_cl")
        A("L_h_b3:")
        A("s_lshr_b32 s70, s66, 1\ns_xor_b32 s70, s70, 1\ns_and_b32 s71, s66, 1")
        A("s_cmp_eq_u32 s70, 1")
        self.srd_sel(8, 44, 54, 0x400000)
        self.srd(12, 56, 0x4000)
        A("v_lshrrev_b32 v4, 3, v0\nv_and_b32 v5, 7, v0\nv_lshlrev_b32 v4, 10, v4\nv_lshl_add_u32 v4, v5, 4, v4")
        for k in range(1, 4):
            A(f"v_xor_b32 v{4 + k}, {k << 5}, v4")
        A("s_lshl_b32 s72, s63, 17\ns_lshl_b32 s4, s71, 16\ns_add_u32 s72, s72, s4")
        A("s_lshl_b32 s4, s62, 7\ns_add_u32 s72, s72, s4")
        A(f"s_lshl_b32 s73, s70, 14\ns_add_u32 s73, s73, {L_ST}")
        A("s_lshl_b32 s4, s71, 13\ns_add_u32 s4, s4, s73\ns_mov_b32 m0, s4")
        A("v_lshrrev_b32 v3, 4, v0\nv_bfe_u32 v12, v0, 2, 2\nv_and_b32 v13, 3, v0")
        A("v_lshl_add_u32 v8, v12, 3, v3\nv_lshlrev_b32 v8, 7, v8\nv_lshl_add_u32 v8, v13, 3, v8")
        A("v_lshl_add_u32 v8, v12, 5, v8\nv_add_u32 v8, s73, v8")
        for nb in range(1, 4):
            A(f"v_xor_b32 v{8 + nb}, {nb << 5}, v8")
        A("v_lshlrev_b32 v14, 8, v13\nv_lshl_add_u32 v14, v12, 6, v14\nv_lshl_add_u32 v14, v3, 4, v14")
        A("v_lshlrev_b32 v15, 5, v13\nv_lshl_add_u32 v15, v3, 3, v15")
        A("s_lshl_b32 s74, s70, 18\ns_lshl_b32 s4, s63, 13\ns_add_u32 s74, s74, s4")
        A(f"s_lshl_b32 s4, s71, 12\ns_add_u32 s74, s74, s4\ns_add_u32 s74, s74, {PREC}")
        A("s_lshl_b32 s75, s70, 13\ns_lshl_b32 s4, s63, 8\ns_add_u32 s75, s75, s4")
        A(f"s_lshl_b32 s4, s71, 7\ns_add_u32 s75, s75, s4\ns_add_u32 s75, s75, {HDR}")
        self.y_voff(60, 61)
        A("s_lshl_b32 s76, s70, 19\ns_lshl_b32 s4, s62, 13\ns_add_u32 s76, s76, s4")
        A(f"s_add_u32 s78, s76, {YWS}")
        A("s_lshl_b32 s4, s71, 18\ns_add_u32 s76, s78, s4\ns_lshl_b32 s4, s63, 6\ns_add_u32 s76, s76, s4")
        A("s_lshr_b32 s4, s63, 2\ns_lshl_b32 s5, s4, 16\ns_add_u32 s78, s78, s5")
        A("s_lshl_b32 s79, s4, 11\ns_and_b32 s4, s63, 3\ns_lshl_b32 s5, s4, 11\ns_add_u32 s78, s78, s5")
        A("s_lshl_b32 s5, s4, 3\ns_add_u32 s79, s79, s5\ns_lshl_b32 s5, s70, 10\ns_add_u32 s79, s79, s5")
        A("s_lshl_b32 s5, s62, 7\ns_add_u32 s79, s79, s5")
        A("v_lshlrev_b32 v61, 4, v0")
        A("v_lshlrev_b32 v62, 5, v3\nv_lshl_add_u32 v62, v13, 1, v62")
        A(f"s_lshl_b32 s4, s70, 2\ns_add_u32 s4, s4, {L_WOC}\nv_mov_b32 v63, s4\nv_mov_b32 v59, 1")
        A("s_waitcnt lgkmcnt(0)")
        A("s_barrier")
        self.stamp(5)
        for i in range(8):
            A(f"buffer_load_dwordx4 v{4 + (i & 3)}, s[8:11], s72 offen {self.nt} lds")
            if i < 7:
                A("s_add_u32 m0, m0, 0x400\ns_add_u32 s72, s72, 0x2000")
        A("s_waitcnt vmcnt(0)")
        A("s_mov_b64 exec, 1\nds_add_u32 v63, v59\ns_mov_b64 exec, -1")
        A("L_wo_spin:")
        A("ds_read_b32 v59, v63\ns_waitcnt lgkmcnt(0)\nv_readfirstlane_b32 s4, v59\ns_nop 0")
        A("s_cmp_eq_u32 s4, 2\ns_cbranch_scc1 L_wo_ok")
        self.budget("L_wo_spin")
        A("L_wo_ok:")
        for ks in range(4):
            if ks >= 1:
                A("s_waitcnt lgkmcnt(7)")
            for nb in range(4):
                for hf in range(2):
                    r = 64 + 16 * ks + 4 * nb + 2 * hf
                    A(f"ds_read_b64_tr_b16 v[{r}:{r + 1}], v{8 + nb} offset:{ks * 4096 + hf * 512}")
        self.stamp(3)
        A("L_h1:")
        for ks in range(4):
            A(f"buffer_load_dwordx4 v[{16 + 4 * ks}:{19 + 4 * ks}], v14, s[24:27], s74 offen offset:{1024 * ks} sc1")
        A("buffer_load_dwordx2 v[32:33], v15, s[24:27], s75 offen sc1")
        if self.stamps:
            A("s_add_u32 s98, s98, 0x100")
        A("s_waitcnt vmcnt(0)")
        A("v_max3_u32 v34, v16, v17, v18\nv_max3_u32 v35, v19, v20, v21\nv_max3_u32 v36, v22, v23, v24")
        A("v_max3_u32 v37, v25, v26, v27\nv_max3_u32 v34, v34, v28, v29\nv_max3_u32 v35, v35, v30, v31")
        A("v_max3_u32 v36, v36, v32, v33\nv_max3_u32 v34, v34, v35, v37\nv_max_u32 v34, v34, v36")
        A("v_cmp_eq_u32 vcc, -1, v34\ns_cbranch_vccz L_h1_ok")
        self.budget("L_h1")
        A("L_h1_ok:")
        A("s_waitcnt lgkmcnt(0)")
        for ks in range(4):
            for nb in range(4):
                r = 64 + 16 * ks + 4 * nb
                c = "0" if ks == 0 else f"v[{40 + 4 * nb}:{43 + 4 * nb}]"
                A(f"v_mfma_f32_16x16x32_bf16 v[{40 + 4 * nb}:{43 + 4 * nb}], v[{16 + 4 * ks}:{19 + 4 * ks}], v[{r}:{r + 3}], {c}")
        q1 = "quad_perm:[1,0,3,2] row_mask:0xf bank_mask:0xf"
        q2 = "quad_perm:[2,3,0,1] row_mask:0xf bank_mask:0xf"
        A(f"v_max_f32_dpp v34, v32, v32 {q1}\ns_nop 1\nv_max_f32_dpp v35, v34, v34 {q2}")
        A("v_sub_f32 v32, v32, v35\nv_exp_f32 v32, v32\ns_nop 0\nv_mul_f32 v33, v33, v32\ns_nop 1")
        A(f"v_add_f32_dpp v34, v33, v33 {q1}\ns_nop 1\nv_add_f32_dpp v35, v34, v34 {q2}")
        A("v_rcp_f32 v35, v35\ns_nop 0\nv_mul_f32 v32, v32, v35\ns_nop 1")
        for s in range(4):
            for nb in range(4):
                op = "v_mul_f32_dpp" if s == 0 else "v_fmac_f32_dpp"
                A(f"{op} v{36 + nb}, v32, v{40 + 4 * nb + s} quad_perm:[{s},{s},{s},{s}] row_mask:0xf bank_mask:0xf")
        for nb in range(4):
            A(f"v_min_u32 v{36 + nb}, -2, v{36 + nb}")
        A("buffer_store_dwordx4 v[36:39], v60, s[24:27], s76 offen sc1")
        self.stamp(6)
        A("s_cmp_lg_u32 s71, 0\ns_cbranch_scc1 L_hfin")
        A("L_h2:")
        A("buffer_load_dwordx4 v[16:19], v61, s[24:27], s78 offen sc1")
        A("buffer_load_dwordx4 v[20:23], v61, s[24:27], s78 offen offset:1024 sc1")
        if self.stamps:
            A("s_add_u32 s98, s98, 0x10000")
        A("s_waitcnt vmcnt(0)")
        A("v_max3_u32 v24, v16, v17, v18\nv_max3_u32 v25, v19, v20, v21\nv_max3_u32 v24, v24, v22, v23")
        A("v_max_u32 v24, v24, v25")
        A("v_cmp_eq_u32 vcc, -1, v24\ns_cbranch_vccz L_h2_ok")
        self.budget("L_h2")
        A("L_h2_ok:")
        for r in range(4):
            A(f"v_add_f32 v{16 + r}, v{16 + r}, v{20 + r}")
        A("s_nop 1\nv_permlane32_swap_b32 v16, v18\nv_permlane32_swap_b32 v17, v19\ns_nop 0")
        A("v_add_f32 v16, v16, v18\nv_add_f32 v17, v17, v19")
        A("s_nop 1\nv_permlane16_swap_b32 v16, v17\ns_nop 0\nv_add_f32 v16, v16, v17\ns_nop 1")
        A("v_add_f32_dpp v17, v16, v16 row_ror:4 row_mask:0xf bank_mask:0xf\ns_nop 1")
        A("v_add_f32_dpp v16, v17, v17 row_ror:8 row_mask:0xf bank_mask:0xf")
        A("v_cvt_pk_bf16_f32 v16, v16, v16")
        A("s_mov_b32 exec_lo, 0x000f000f\ns_mov_b32 exec_hi, 0x000f000f")
        A("buffer_store_short v16, v62, s[12:15], s79 offen")
        if self.stamps:
            A("s_cmp_lg_u32 s66, 0\ns_cbranch_scc1 L_hfin")
            A("s_waitcnt vmcnt(0)")
            self.write_stamps(with_main=True)
            A("s_endpgm")
        A("L_hfin:")
        self.write_stamps()


if __name__ == "__main__":
    out = sys.argv[1]
    kw = eval("dict(" + (sys.argv[2] if len(sys.argv) > 2 else "") + ")")
    open(out, "w").write(G(**kw).gen())
```

```python
import sys, math, struct, re

NAME = "concat_heads__sliding_block_cached__mha_block_cached__decode"
REF = f"cdna_kernels/{NAME}.s.ref"

QWS, PREC, HDR, CNT, YWS, WSEND = 0x100000, 0x180000, 0x200000, 0x280000, 0x300000, 0x400000
STAMP = 0x10000
L_QRED, L_FLC, L_REQ, L_WOC, L_PROG = 0, 4, 8, 12, 20
L_QUEUE = 0x40
L_QA, L_QB = 0x400, 0x800
L_FL = 0x1000
L_ST = 0x4000
LDS_SIZE = 0x14000


def f2u(x):
    return struct.unpack("<I", struct.pack("<f", x))[0]


CSC = 128 ** -0.5 * math.log2(math.e)
BIG = 0x7FFFFFFF
OOB = 0x10000000


class G:
    def __init__(self, stamps=False, static_rounds=40, levels=(8, 6, 4, 2, 2, 1, 1), LA=1,
                 masks=(5, 6, 7, 5), nt="nt", sleep_grid=64, codepf=True, steps=False, nocomp=False, hprio=3, clsleep=1, qmode='full', gridat=30, noclear=False, amap=0, calib=None):
        self.L = []
        self.tail = []
        self.stamps = stamps
        self.SR = static_rounds
        self.levels = levels
        assert static_rounds + sum(levels) == 64
        self.LA = LA
        self.masks = masks
        self.nt = nt
        self.sleep_grid = sleep_grid
        self.codepf = codepf
        self.uid = 0
        self.calib = calib
        self.qmode = qmode
        self.gridat = gridat
        self.noclear = noclear
        self.amap = amap
        self.steps = steps
        self.nocomp = nocomp
        self.hprio = hprio
        self.clsleep = clsleep

    def A(self, s):
        for line in s.strip("\n").split("\n"):
            line = line.strip()
            if not line:
                continue
            self.L.append(line if line.endswith(":") else "    " + line)

    def lab(self, p):
        self.uid += 1
        return f"L_{p}_{self.uid}"

    def stamp(self, k):
        if self.stamps:
            self.A(f"s_memrealtime s[{84 + 2 * k}:{85 + 2 * k}]\ns_waitcnt lgkmcnt(0)")

    def write_stamps(self, with_main=False):
        if not self.stamps:
            return
        A = self.A
        A("s_mov_b64 exec, 1")
        A("s_lshl_b32 s4, s2, 8\ns_lshl_b32 s5, s3, 5\ns_add_u32 s4, s4, s5")
        A(f"s_add_u32 s4, s4, {STAMP}")
        A("v_mov_b32 v4, s4")
        for k in range(8):
            A(f"v_mov_b32 v{8 + k}, s{84 + 2 * k}")
        A("buffer_store_dwordx4 v[8:11], v4, s[24:27], 0 offen")
        A("buffer_store_dwordx4 v[12:15], v4, s[24:27], 0 offen offset:16")
        if with_main:
            A("s_memrealtime s[6:7]\ns_waitcnt lgkmcnt(0)")
            A("s_lshl_b32 s4, s2, 4\nv_mov_b32 v5, s4")
            A("v_mov_b32 v16, s84\nv_mov_b32 v17, s85\nv_mov_b32 v18, s6\nv_mov_b32 v19, s7")
            A("buffer_store_dwordx4 v[16:19], v5, s[24:27], 0 offen")

    def srd(self, d, lo, size):
        self.A(f"s_mov_b32 s{d}, s{lo}\ns_and_b32 s{d + 1}, s{lo + 1}, 0xffff\n"
               f"s_mov_b32 s{d + 2}, {size:#x}\ns_mov_b32 s{d + 3}, 0x20000")

    def srd_sel(self, d, loA, loB, size):
        self.A(f"s_cselect_b32 s{d}, s{loB}, s{loA}\ns_cselect_b32 s{d + 1}, s{loB + 1}, s{loA + 1}\n"
               f"s_and_b32 s{d + 1}, s{d + 1}, 0xffff\n"
               f"s_mov_b32 s{d + 2}, {size:#x}\ns_mov_b32 s{d + 3}, 0x20000")

    def budget(self, retry):
        self.A(f"s_sub_u32 s82, s82, 1\ns_cmp_lg_u32 s82, 0\ns_cbranch_scc1 {retry}\ns_endpgm")

    def tile(self, X, Q, acc, m, R, l, bias, kwait, vwait, issueK=None):
        A = self.A
        D, S, T = 40, 56, 60
        if kwait is not None:
            A(f"s_waitcnt vmcnt({kwait})")
        for t in range(4):
            A(f"v_mfma_f32_16x16x32_bf16 v[{D + 4 * t}:{D + 4 * t + 3}], v[{X + 4 * t}:{X + 4 * t + 3}], v[{Q}:{Q + 3}], 0")
        if issueK:
            issueK()
            A("s_nop 1")
        else:
            A("s_nop 5")
        if self.nocomp and issueK:
            A(f"s_waitcnt vmcnt({vwait})")
            return
        for c in range(4):
            for t in range(4):
                dpp = f"quad_perm:[{c},{c},{c},{c}] row_mask:0xf bank_mask:0xf"
                if c == 0 and bias is None:
                    A(f"v_mov_b32_dpp v{S + t}, v{D + 4 * t} {dpp}")
                else:
                    A(f"v_add_f32_dpp v{S + t}, v{D + 4 * t + c}, v{bias if c == 0 else S + t} {dpp}")
        rs, back = self.lab("rs"), self.lab("bk")
        A(f"v_max3_f32 v{T}, v{S}, v{S + 1}, v{S + 2}")
        A(f"v_max_f32 v{T}, v{T}, v{S + 3}")
        A(f"v_cmp_gt_f32 vcc, v{T}, v{m}")
        A(f"s_cbranch_vccnz {rs}")
        A(f"{back}:")
        for t in range(4):
            A(f"v_fma_f32 v{S + t}, v{S + t}, s77, -v{R}")
        for t in range(4):
            A(f"v_exp_f32 v{S + t}, v{S + t}")
        A(f"v_add_f32 v{T}, v{S}, v{S + 1}")
        A(f"v_cvt_pk_bf16_f32 v{S}, v{S}, v{S}")
        A(f"v_add_f32 v{T + 1}, v{S + 2}, v{S + 3}")
        for t in range(1, 4):
            A(f"v_cvt_pk_bf16_f32 v{S + t}, v{S + t}, v{S + t}")
        for t in range(4):
            A(f"v_and_b32 v{D + 2 * t}, v{S + t}, v4")
            A(f"v_and_b32 v{D + 2 * t + 1}, v{S + t}, v5")
        A(f"v_add_f32 v{l}, v{l}, v{T}")
        A(f"v_add_f32 v{l}, v{l}, v{T + 1}")
        if vwait is not None:
            A(f"s_waitcnt vmcnt({vwait})")
        for t in range(4):
            V = X + 16 + 4 * t
            A(f"v_mfma_f32_16x16x16_bf16 v[{acc}:{acc + 3}], v[{V}:{V + 1}], v[{D + 2 * t}:{D + 2 * t + 1}], v[{acc}:{acc + 3}]")
            A(f"v_mfma_f32_16x16x16_bf16 v[{acc + 4}:{acc + 7}], v[{V + 2}:{V + 3}], v[{D + 2 * t}:{D + 2 * t + 1}], v[{acc + 4}:{acc + 7}]")
        o = [f"{rs}:",
             f"v_mov_b32 v{T + 1}, v{T}", "s_nop 1",
             f"v_permlane32_swap_b32 v{T + 1}, v{T}", "s_nop 0",
             f"v_max_f32 v{T}, v{T}, v{T + 1}",
             f"v_mov_b32 v{T + 1}, v{T}", "s_nop 1",
             f"v_permlane16_swap_b32 v{T + 1}, v{T}", "s_nop 0",
             f"v_max3_f32 v{m}, v{m}, v{T}, v{T + 1}",
             f"v_mul_f32 v{T}, s77, v{m}",
             f"v_sub_f32 v{T + 1}, v{R}, v{T}",
             f"v_exp_f32 v{T + 1}, v{T + 1}",
             f"v_mov_b32 v{R}, v{T}",
             f"v_mul_f32 v{l}, v{l}, v{T + 1}"]
        for i in range(8):
            o.append(f"v_mul_f32 v{acc + i}, v{acc + i}, v{T + 1}")
        o.append(f"s_branch {back}")
        self.tail.append("\n".join(o))

    def loads(self, dst, voff, srd, soff):
        for t in range(4):
            self.A(f"buffer_load_dwordx4 v[{dst + 4 * t}:{dst + 4 * t + 3}], v{voff}, s[{srd}:{srd + 3}], s{soff} offen offset:{1024 * t} {self.nt}")

    def flush_write(self, acc, R):
        A = self.A
        A(f"s_mul_i32 s4, s3, 0xc00\ns_add_u32 s4, s4, {L_FL}")
        A("v_lshlrev_b32 v60, 4, v0\nv_lshlrev_b32 v61, 3, v0")
        A("v_add_u32 v60, s4, v60\nv_add_u32 v61, s4, v61")
        A("s_nop 3")
        A(f"ds_write_b128 v60, v[{acc}:{acc + 3}]")
        A(f"ds_write_b128 v60, v[{acc + 4}:{acc + 7}] offset:1024")
        A(f"ds_write_b64 v61, v[{R}:{R + 1}] offset:2048")

    def combine(self, b, vrec, vhdr, srec, shdr):
        A = self.A
        a = lambda w: b + 12 * w
        t = b + 48
        A(f"v_lshlrev_b32 v{t}, 4, v0\nv_lshlrev_b32 v{t + 1}, 3, v0")
        for w in range(4):
            A(f"ds_read_b64 v[{a(w) + 8}:{a(w) + 9}], v{t + 1} offset:{L_FL + 0xc00 * w + 2048}")
        for w in range(4):
            A(f"ds_read_b128 v[{a(w)}:{a(w) + 3}], v{t} offset:{L_FL + 0xc00 * w}")
            A(f"ds_read_b128 v[{a(w) + 4}:{a(w) + 7}], v{t} offset:{L_FL + 0xc00 * w + 1024}")
        A("s_waitcnt lgkmcnt(8)")
        Rm, Ls = t + 2, t + 3
        A(f"v_max3_f32 v{Rm}, v{a(0) + 8}, v{a(1) + 8}, v{a(2) + 8}")
        A(f"v_max_f32 v{Rm}, v{Rm}, v{a(3) + 8}")
        for w in range(4):
            A(f"v_sub_f32 v{a(w) + 8}, v{a(w) + 8}, v{Rm}")
        for w in range(4):
            A(f"v_exp_f32 v{a(w) + 8}, v{a(w) + 8}")
        A(f"v_mul_f32 v{Ls}, v{a(0) + 8}, v{a(0) + 9}")
        for w in range(1, 4):
            A(f"v_fmac_f32 v{Ls}, v{a(w) + 8}, v{a(w) + 9}")
        A(f"v_mov_b32 v{t}, v{Ls}")
        A("s_waitcnt lgkmcnt(6)")
        for i in range(8):
            A(f"v_mul_f32 v{a(0) + i}, v{a(0) + 8}, v{a(0) + i}")
        A(f"v_permlane32_swap_b32 v{t}, v{Ls}")
        A("s_waitcnt lgkmcnt(4)")
        A(f"v_add_f32 v{Ls}, v{Ls}, v{t}")
        A(f"v_mov_b32 v{t}, v{Ls}")
        for i in range(8):
            A(f"v_fmac_f32 v{a(0) + i}, v{a(1) + 8}, v{a(1) + i}")
        A(f"v_permlane16_swap_b32 v{t}, v{Ls}")
        A("s_waitcnt lgkmcnt(2)")
        A(f"v_add_f32 v{Ls}, v{Ls}, v{t}")
        for i in range(8):
            A(f"v_fmac_f32 v{a(0) + i}, v{a(2) + 8}, v{a(2) + i}")
        A("s_waitcnt lgkmcnt(0)")
        for i in range(8):
            A(f"v_fmac_f32 v{a(0) + i}, v{a(3) + 8}, v{a(3) + i}")
        o = t + 4
        for k in range(4):
            A(f"v_cvt_pk_bf16_f32 v{o + k}, v{a(0) + 2 * k}, v{a(0) + 2 * k + 1}")
        for k in range(4):
            A(f"v_min_u32 v{o + k}, -2, v{o + k}")
        A(f"v_min_u32 v{Rm}, -2, v{Rm}\nv_min_u32 v{Ls}, -2, v{Ls}")
        A(f"buffer_store_dwordx4 v[{o}:{o + 3}], v{vrec}, s[24:27], s{srec} offen sc1")
        A("s_mov_b64 exec, 0x1111")
        A(f"buffer_store_dwordx2 v[{Rm}:{Ls}], v{vhdr}, s[24:27], s{shdr} offen sc1")
        A("s_mov_b64 exec, -1")

    def brec_addr(self, vrec, vhdr, srec, shdr):
        A = self.A
        A(f"v_lshrrev_b32 v{vrec}, 4, v0\nv_and_b32 v{vhdr}, 15, v0")
        A(f"v_lshlrev_b32 v{vrec}, 10, v{vrec}")
        A(f"v_lshl_add_u32 v{vrec}, v{vhdr}, 4, v{vrec}")
        A(f"v_lshlrev_b32 v{vhdr}, 1, v{vhdr}")
        A(f"s_lshl_b32 s{srec}, s63, 13\ns_lshl_b32 s4, s64, 12\ns_add_u32 s{srec}, s{srec}, s4")
        A(f"s_lshl_b32 s4, s65, 8\ns_add_u32 s{srec}, s{srec}, s4\ns_add_u32 s{srec}, s{srec}, {PREC + 0x40000}")
        A(f"s_lshl_b32 s{shdr}, s63, 8\ns_lshl_b32 s4, s64, 7\ns_add_u32 s{shdr}, s{shdr}, s4")
        A(f"s_lshl_b32 s4, s65, 5\ns_add_u32 s{shdr}, s{shdr}, s4\ns_add_u32 s{shdr}, s{shdr}, {HDR + 0x2000}")

    def y_voff(self, v, t):
        A = self.A
        A(f"v_lshrrev_b32 v{v}, 4, v0\nv_lshlrev_b32 v{v}, 16, v{v}")
        A(f"v_bfe_u32 v{t}, v0, 2, 2\nv_lshl_add_u32 v{v}, v{t}, 11, v{v}")
        A(f"v_and_b32 v{t}, 3, v0\nv_lshl_add_u32 v{v}, v{t}, 4, v{v}")

    def gen(self):
        A = self.A
        hdr = open(REF).read().split("\n")
        for line in hdr:
            if line.startswith("; @launch"):
                self.L.append(f"; @launch grid=(256,1,1) block=(512,1,1) lds={LDS_SIZE}")
                break
            self.L.append(line)
        self.L += ['.amdgcn_target "amdgcn-amd-amdhsa--gfx950"', ".text", f".globl {NAME}_kernel", ".p2align 8",
                   f".type {NAME}_kernel,@function", f"{NAME}_kernel:"]
        A("s_cmp_ge_u32 s2, 256\ns_cbranch_scc1 L_end")
        A("s_load_dwordx16 s[36:51], s[0:1], 0")
        A("s_load_dwordx8 s[52:59], s[0:1], 64")
        A("s_load_dwordx2 s[60:61], s[0:1], 96")
        A("s_memrealtime s[84:85]")
        A("v_lshrrev_b32 v1, 6, v0\nv_and_b32 v0, 63, v0")
        A("v_mov_b32 v2, 0")
        A("v_readfirstlane_b32 s3, v1")
        A("v_lshlrev_b32 v1, 2, v0")
        A("s_and_b32 s62, s2, 7\ns_lshr_b32 s63, s2, 3")
        tab = sum(mk << (4 * k) for k, mk in enumerate(self.masks))
        A(f"s_and_b32 s4, s63, 3\ns_lshl_b32 s4, s4, 2\ns_lshr_b32 s4, {tab:#x}, s4")
        A("s_and_b32 s4, s4, s62\ns_bcnt1_i32_b32 s4, s4\ns_and_b32 s64, s4, 1")
        A("s_and_b32 s65, s62, 3")
        A("s_lshr_b32 s67, s2, 5\ns_bfe_u32 s68, s2, 0x30002\ns_and_b32 s69, s2, 3")
        A(f"s_mov_b32 s77, {f2u(CSC):#x}")
        A("s_mov_b32 s82, 0x400000")
        A("s_cmp_lg_u32 s3, 0\ns_cbranch_scc1 L_noinit")
        A("ds_write_b32 v1, v2")
        A("L_noinit:")
        A("s_waitcnt lgkmcnt(0)")
        if self.stamps:
            for k in range(1, 8):
                A(f"s_mov_b32 s{84 + 2 * k}, 0")
        self.srd(24, 60, WSEND)
        A("s_cmp_ge_u32 s3, 4\ns_cbranch_scc1 L_helper")
        self.stream()
        A("L_helper:")
        self.helper()
        A("L_end:\ns_endpgm")
        for blk in self.tail:
            A(blk)
        A("L_code_end:")
        self.L += ['.section .rodata,"a"', ".p2align 6", f".amdhsa_kernel {NAME}_kernel",
                   "  .amdhsa_next_free_vgpr 256", "  .amdhsa_next_free_sgpr 102", "  .amdhsa_accum_offset 256",
                   "  .amdhsa_group_segment_fixed_size 0", "  .amdhsa_kernarg_size 104",
                   "  .amdhsa_user_sgpr_count 2", "  .amdhsa_user_sgpr_kernarg_segment_ptr 1",
                   "  .amdhsa_system_sgpr_workgroup_id_x 1", ".end_amdhsa_kernel"]
        return "\n".join(self.L) + "\n"

    def stream(self):
        A = self.A
        self.srd(8, 48, 0x10000000)
        self.srd(12, 50, 0x10000000)
        self.srd(16, 38, 0x4000000)
        self.srd(20, 40, 0x4000000)
        A("s_or_b32 s4, s2, s3\ns_cmp_lg_u32 s4, 0\ns_cbranch_scc1 L_notag")
        A("s_or_b32 s4, s84, 1\nv_mov_b32 v3, s4")
        A("s_mov_b64 exec, 1\nglobal_store_dword v2, v3, s[58:59] sc1\ns_mov_b64 exec, -1")
        A("L_notag:")
        A("v_lshrrev_b32 v3, 4, v0\nv_bfe_u32 v4, v0, 2, 2\nv_and_b32 v5, 3, v0")
        A("v_lshlrev_b32 v1, 8, v4\nv_lshl_add_u32 v1, v3, 6, v1\nv_lshl_add_u32 v1, v5, 4, v1")
        A("v_lshlrev_b32 v2, 4, v0")
        A("s_lshl_b32 s78, s3, 12")
        A("s_lshl_b32 s4, s64, 2\ns_add_u32 s4, s4, s65\ns_lshl_b32 s4, s4, 5\ns_add_u32 s4, s4, s63")
        A("s_lshl_b32 s70, s4, 20\ns_add_u32 s70, s70, s78")
        A("s_lshr_b32 s4, s2, 2\ns_lshl_b32 s4, s4, 20\ns_lshl_b32 s5, s69, 16\ns_add_u32 s79, s4, s5")
        A("s_add_u32 s79, s79, s78\ns_add_u32 s79, s79, 0xc0000")
        A("s_barrier")
        for sl in range(2):
            self.loads(64 + 32 * sl, 1, 8, 70)
            self.loads(80 + 32 * sl, 2, 12, 70)
            A("s_add_u32 s70, s70, 0x4000")
        for a in range(4):
            self.loads(128 + 32 * a, 1, 16, 79)
            self.loads(144 + 32 * a, 2, 20, 79)
            if a < 3:
                A("s_add_u32 s79, s79, 0x4000")
        A("v_mov_b32 v3, v4")
        A("v_and_b32 v6, 1, v5\nv_lshlrev_b32 v6, 4, v6\nv_mov_b32 v7, 0xffff\nv_lshlrev_b32 v6, v6, v7")
        A("v_cmp_le_u32 vcc, 2, v5\ns_nop 1")
        A("v_cndmask_b32 v5, 0, v6, vcc\nv_xor_b32 v4, v5, v6")
        A("v_mov_b32 v7, 0xff800000")
        for r in list(range(16, 24)) + list(range(28, 36)) + [27, 39]:
            A(f"v_mov_b32 v{r}, 0")
        A("v_mov_b32 v24, 0xff7fffff\nv_mov_b32 v36, 0xff7fffff")
        A("v_mul_f32 v26, s77, v24\nv_mul_f32 v38, s77, v36")
        A(f"s_mov_b32 s71, {self.SR - 2}")
        A("s_mov_b32 s72, s65\ns_mov_b32 s73, s65\ns_mov_b32 s74, s65")
        A(f"s_mov_b32 s75, {L_QUEUE}\ns_mov_b32 s76, 0")
        self.brec_addr(25, 37, 80, 81)
        if self.steps:
            A("v_mov_b32 v62, 0\nv_mov_b32 v63, 0\ns_mov_b32 s83, 0")
        self.stamp(1)
        A("s_barrier")
        A(f"ds_read_b128 v[8:11], v2 offset:{L_QB}")
        A(f"ds_read_b128 v[12:15], v2 offset:{L_QA}")
        A("s_waitcnt lgkmcnt(0)")
        self.stamp(2)
        A("L_loop:")
        for sl in range(2):
            X = 64 + 32 * sl
            A(f"v_cmp_ne_u32 vcc, s{73 + sl}, v3")
            A(f"s_cmp_le_u32 s71, {self.LA}\ns_cbranch_scc1 L_slow{sl}")
            A(f"L_cont{sl}:")
            A("v_cndmask_b32 v6, 0, v7, vcc")
            A(f"s_mov_b32 s{73 + sl}, s72")
            if self.steps:
                A("s_memrealtime s[6:7]")
            self.tile(X, 8, 16, 24, 26, 27, 6, 12, 12, issueK=lambda: self.loads(X, 1, 8, 70))
            if self.steps:
                A(f"s_waitcnt lgkmcnt(0)\ns_mov_b32 m0, s83\nv_writelane_b32 v{62 + sl}, s6, m0")
                if sl == 1:
                    A("s_add_u32 s83, s83, 1")
            A(f"s_cmp_eq_u32 s71, {BIG - 1}\ns_cbranch_scc1 L_exit")
            self.loads(X + 16, 2, 12, 70)
            A("s_add_u32 s70, s70, 0x4000\ns_sub_u32 s71, s71, 1")
            sp, got, dn, rq = f"L_spin{sl}", f"L_got{sl}", f"L_done{sl}", f"L_req{sl}"
            o = [f"L_slow{sl}:",
                 "s_cmp_lg_u32 s71, 0", f"s_cbranch_scc1 {rq}",
                 "v_mov_b32 v60, s75",
                 f"{sp}:",
                 "ds_read_b32 v61, v60", "s_waitcnt lgkmcnt(0)",
                 "v_readfirstlane_b32 s4, v61",
                 "s_nop 0",
                 "s_cmp_lg_u32 s4, 0", f"s_cbranch_scc1 {got}",
                 "s_sub_u32 s82, s82, 1", "s_cmp_lg_u32 s82, 0", f"s_cbranch_scc1 {sp}", "s_endpgm",
                 f"{got}:",
                 "s_add_u32 s75, s75, 4",
                 "s_cmp_eq_u32 s4, 0x80", f"s_cbranch_scc1 {dn}",
                 "s_and_b32 s71, s4, 0x7f", "s_bfe_u32 s72, s4, 0x20008",
                 "s_and_b32 s70, s4, 0xffffc000", "s_add_u32 s70, s70, s78", "s_mov_b32 s76, 0",
                 f"s_cmp_le_u32 s71, {self.LA}", f"s_cbranch_scc0 L_cont{sl}",
                 f"{rq}:",
                 "s_cmp_lg_u32 s76, 0", f"s_cbranch_scc1 L_cont{sl}",
                 "s_mov_b32 s76, 1", "s_add_u32 s4, s75, 4",
                 f"v_mov_b32 v60, {L_REQ}", "v_mov_b32 v61, s4",
                 "s_mov_b64 exec, 1", "ds_max_u32 v60, v61", "s_mov_b64 exec, -1",
                 f"s_branch L_cont{sl}",
                 f"{dn}:",
                 f"s_mov_b32 s70, {OOB:#x}", f"s_mov_b32 s71, {BIG:#x}"]
            if self.stamps:
                o += ["s_memrealtime s[92:93]", "s_waitcnt lgkmcnt(0)"]
            o += ["s_barrier",
                  f"s_branch L_cont{sl}"]
            self.tail.append("\n".join(o))
        assert (self.SR - self.gridat) % 2 == 0 and self.SR - self.gridat >= 2
        A(f"s_cmp_eq_u32 s71, {self.SR - self.gridat}\ns_cbranch_scc1 L_sigprog")
        self.tail.append(f"L_sigprog:\nv_mov_b32 v60, {L_PROG}\nds_write_b32 v60, v60\ns_branch L_loop")
        A(f"s_cmp_lg_u32 s71, {self.SR - 4}\ns_cbranch_scc1 L_loop")
        A("s_waitcnt vmcnt(16)")
        for a in range(4):
            self.tile(128 + 32 * a, 12, 28, 36, 38, 39, None, None, None)
        self.flush_write(28, 38)
        A("s_waitcnt lgkmcnt(0)")
        self.stamp(3)
        A("s_barrier")
        A("s_branch L_loop")
        A("L_exit:")
        if self.steps:
            A(f"s_lshl_b32 s4, s2, 2\ns_add_u32 s4, s4, s3\ns_lshl_b32 s4, s4, 9\ns_add_u32 s4, s4, 0x20000")
            A("v_lshlrev_b32 v60, 3, v0\nbuffer_store_dwordx2 v[62:63], v60, s[24:27], s4 offen\ns_nop 2")
        self.flush_write(16, 26)
        A(f"v_mov_b32 v62, {L_FLC}\nv_mov_b32 v63, 1")
        A("s_mov_b64 exec, 1\nds_add_rtn_u32 v62, v62, v63\ns_mov_b64 exec, -1")
        A("s_waitcnt lgkmcnt(0)")
        A("v_readfirstlane_b32 s4, v62")
        self.stamp(5)
        A("s_nop 0\ns_cmp_lg_u32 s4, 3\ns_cbranch_scc1 L_sfin")
        self.combine(128, 25, 37, 80, 81)
        self.stamp(6)
        A("L_sfin:")
        self.write_stamps()
        A("s_endpgm")

    def helper(self):
        A = self.A
        A(f"s_setprio {self.hprio}")
        A("s_sub_u32 s66, s3, 4")
        if self.qmode == 'none':
            A("s_branch L_noprod")
        A("s_xor_b32 s4, s62, s63\ns_bitcmp1_b32 s4, 0\ns_cbranch_scc1 L_noprod")
        A("s_lshr_b32 s4, s2, 1")
        A("s_and_b32 s70, s4, 63\ns_lshr_b32 s71, s4, 6")
        A("s_cmp_eq_u32 s71, 1")
        A("s_cselect_b32 s12, s46, s36\ns_cselect_b32 s13, s47, s37")
        self.srd_sel(8, 42, 52, 0x400000)
        A("s_and_b32 s13, s13, 0xffff\ns_mov_b32 s14, 0x2000\ns_mov_b32 s15, 0x20000")
        A("v_lshrrev_b32 v3, 4, v0\nv_and_b32 v4, 7, v0")
        A("v_lshlrev_b32 v5, 10, v4\nv_lshl_add_u32 v5, v3, 4, v5")
        A("s_lshl_b32 s72, s66, 8")
        A("v_lshrrev_b32 v6, 3, v0\nv_lshlrev_b32 v6, 13, v6")
        A("v_and_b32 v7, 1, v3\nv_lshlrev_b32 v7, 1, v7\nv_xor_b32 v7, v7, v4")
        A("v_lshl_add_u32 v6, v7, 4, v6\nv_xor_b32 v7, 64, v6")
        A("s_lshl_b32 s73, s66, 20\ns_lshl_b32 s4, s70, 7\ns_add_u32 s73, s73, s4")
        A(f"s_lshl_b32 s74, s66, 14\ns_add_u32 s74, s74, {L_ST}")
        A("s_mov_b32 m0, s74")
        A("s_barrier")
        for ks in range(4):
            A(f"buffer_load_dwordx4 v[{16 + 4 * ks}:{19 + 4 * ks}], v5, s[12:15], s72 offen offset:{64 * ks}")
        for i in range(16):
            A(f"buffer_load_dwordx4 v{6 + (i & 1)}, s[8:11], s73 offen {self.nt} lds")
            if i < 15:
                A("s_add_u32 m0, m0, 0x400\ns_add_u32 s73, s73, 0x10000")
        A("global_load_dword v12, v2, s[58:59] sc1")
        A("v_bfe_u32 v4, v0, 2, 2\nv_and_b32 v5, 3, v0")
        A("v_lshl_add_u32 v6, v3, 3, v4\nv_lshlrev_b32 v6, 7, v6\nv_lshl_add_u32 v6, v5, 3, v6")
        A("v_lshrrev_b32 v4, 1, v4\nv_and_b32 v5, 1, v3\nv_lshl_add_u32 v4, v5, 1, v4")
        A("v_lshl_add_u32 v6, v4, 5, v6\nv_add_u32 v8, s74, v6")
        for nb in range(1, 4):
            A(f"v_xor_b32 v{8 + nb}, {nb << 5}, v8")
        for ks in range(4):
            A(f"s_waitcnt vmcnt({13 - 4 * ks})")
            for nb in range(4):
                for hf in range(2):
                    r = 64 + 16 * ks + 4 * nb + 2 * hf
                    A(f"ds_read_b64_tr_b16 v[{r}:{r + 1}], v{8 + nb} offset:{ks * 4096 + hf * 512}")
            A("s_waitcnt lgkmcnt(0)")
            for nb in range(4):
                r = 64 + 16 * ks + 4 * nb
                c = "0" if ks == 0 else f"v[{32 + 4 * nb}:{35 + 4 * nb}]"
                A(f"v_mfma_f32_16x16x32_bf16 v[{32 + 4 * nb}:{35 + 4 * nb}], v[{r}:{r + 3}], v[{16 + 4 * ks}:{19 + 4 * ks}], {c}")
        A("v_lshlrev_b32 v4, 4, v0\nv_add_u32 v5, s74, v4")
        A(f"s_lshl_b32 s4, s66, 10\ns_add_u32 s4, s4, {L_ST}\nv_add_u32 v4, s4, v4")
        A(f"v_mov_b32 v6, {L_QRED}\nv_mov_b32 v7, 1\ns_nop 3")
        for nb in range(4):
            A(f"ds_write_b128 v5, v[{32 + 4 * nb}:{35 + 4 * nb}] offset:{1024 * nb}")
        A("s_mov_b64 exec, 1\nds_add_u32 v6, v7\ns_mov_b64 exec, -1")
        A("L_qr_spin:")
        A("ds_read_b32 v7, v6\ns_waitcnt lgkmcnt(0)\nv_readfirstlane_b32 s4, v7\ns_nop 0")
        A("s_cmp_eq_u32 s4, 4\ns_cbranch_scc1 L_qr_ok")
        self.budget("L_qr_spin")
        A("L_qr_ok:")
        for w in range(4):
            A(f"ds_read_b128 v[{32 + 4 * w}:{35 + 4 * w}], v4 offset:{0x4000 * w}")
        A("v_and_b32 v5, 15, v0\nv_lshlrev_b32 v5, 14, v5")
        A("v_and_b32 v6, 1, v3\nv_lshl_add_u32 v5, v6, 8, v5")
        A("v_lshrrev_b32 v6, 1, v3\nv_lshl_add_u32 v5, v6, 4, v5")
        A("s_lshl_b32 s72, s71, 17\ns_lshr_b32 s4, s70, 1\ns_lshl_b32 s4, s4, 9\ns_add_u32 s72, s72, s4")
        A("s_and_b32 s4, s70, 1\ns_lshl_b32 s4, s4, 7\ns_add_u32 s72, s72, s4")
        A(f"s_lshl_b32 s4, s66, 5\ns_add_u32 s72, s72, s4\ns_add_u32 s72, s72, {QWS}")
        A("s_waitcnt lgkmcnt(0)")
        for r in range(4):
            A(f"v_add_f32 v{32 + r}, v{32 + r}, v{36 + r}\nv_add_f32 v{40 + r}, v{40 + r}, v{44 + r}")
        for r in range(4):
            A(f"v_add_f32 v{32 + r}, v{32 + r}, v{40 + r}")
        A("v_cvt_pk_bf16_f32 v36, v32, v33\nv_cvt_pk_bf16_f32 v38, v34, v35")
        A("L_tag_chk:")
        A("s_waitcnt vmcnt(0)\nv_readfirstlane_b32 s4, v12\ns_nop 0")
        A("s_cmp_lg_u32 s4, 0\ns_cbranch_scc1 L_tag_ok")
        A("global_load_dword v12, v2, s[58:59] sc1")
        self.budget("L_tag_chk")
        A("L_tag_ok:")
        A("v_mov_b32 v37, v12\nv_mov_b32 v39, v12")
        A("s_mov_b32 exec_lo, 0x00ff00ff\ns_mov_b32 exec_hi, 0x00ff00ff")
        A("buffer_store_dwordx4 v[36:39], v5, s[24:27], s72 offen sc1")
        A("s_mov_b64 exec, -1")
        self.stamp(1)
        A("s_branch L_prod_done")
        A("L_noprod:")
        A("s_barrier")
        if self.codepf:
            A("s_cmp_lg_u32 s66, 2\ns_cbranch_scc1 L_prod_done")
            A("s_getpc_b64 s[4:5]")
            A("L_pc:")
            A(f"s_sub_u32 s4, s4, L_pc-{NAME}_kernel\ns_subb_u32 s5, s5, 0")
            A("v_lshlrev_b32 v3, 7, v0\nv_mov_b32 v5, s5")
            A(f"v_add_u32 v8, 0x2000, v3\nv_min_u32 v8, L_code_end-{NAME}_kernel-4, v8")
            A(f"v_min_u32 v3, L_code_end-{NAME}_kernel-4, v3")
            A("v_add_co_u32 v4, vcc, s4, v3\ns_nop 1\nv_addc_co_u32 v5, vcc, 0, v5, vcc")
            A("v_mov_b32 v7, s5\nglobal_load_dword v10, v[4:5], off")
            A("v_add_co_u32 v6, vcc, s4, v8\ns_nop 1\nv_addc_co_u32 v7, vcc, 0, v7, vcc")
            A("global_load_dword v11, v[6:7], off")
        A("L_prod_done:")
        A("s_cmp_eq_u32 s66, 0\ns_cbranch_scc1 L_qpoll")
        if self.noclear:
            A("s_branch L_h_b1")
        A("s_cmp_lg_u32 s66, 1\ns_cbranch_scc1 L_h_b1")
        for r in range(20, 24):
            A(f"v_mov_b32 v{r}, -1")
        self.y_voff(24, 25)
        A(f"s_lshl_b32 s72, s62, 13\ns_lshl_b32 s4, s63, 6\ns_add_u32 s72, s72, s4\ns_add_u32 s72, s72, {YWS}")
        for k in range(4):
            A("buffer_store_dwordx4 v[20:23], v24, s[24:27], s72 offen sc1")
            A("s_add_u32 s72, s72, 0x40000")
        self.brec_addr(26, 27, 80, 81)
        A("buffer_store_dwordx4 v[20:23], v26, s[24:27], s80 offen sc1")
        A("s_mov_b64 exec, 0x1111")
        A("buffer_store_dwordx2 v[20:21], v27, s[24:27], s81 offen sc1")
        A("s_mov_b64 exec, -1")
        A("s_cmp_lg_u32 s65, 0\ns_cbranch_scc1 L_h_b1")
        A(f"s_lshl_b32 s72, s63, 1\ns_add_u32 s72, s72, s64\ns_lshl_b32 s72, s72, 8\ns_add_u32 s72, s72, {CNT}")
        A("s_mov_b64 exec, 1")
        A("buffer_store_dword v2, v2, s[24:27], s72 offen sc1")
        A("s_mov_b64 exec, -1")
        A("s_branch L_h_b1")
        A("L_qpoll:")
        A("v_lshrrev_b32 v3, 4, v0\nv_bfe_u32 v4, v0, 2, 2\nv_and_b32 v5, 3, v0")
        A("v_lshl_add_u32 v5, v3, 2, v5\nv_lshlrev_b32 v5, 4, v5")
        A("v_lshl_add_u32 v6, v4, 14, v5\nv_lshl_add_u32 v7, v4, 9, v5")
        A(f"s_lshl_b32 s72, s64, 16\ns_lshl_b32 s4, s63, 9\ns_add_u32 s72, s72, s4\ns_add_u32 s72, s72, {QWS + 0x20000}")
        A(f"s_lshl_b32 s73, s67, 14\ns_lshl_b32 s4, s68, 11\ns_add_u32 s73, s73, s4\ns_add_u32 s73, s73, {QWS}")
        if self.qmode != 'full':
            A("s_branch L_h_b1")
        A("L_qp_loop:")
        A("global_load_dword v12, v2, s[58:59] sc1")
        A("buffer_load_dwordx4 v[40:43], v6, s[24:27], s72 offen sc1")
        A("buffer_load_dwordx4 v[44:47], v6, s[24:27], s72 offen offset:256 sc1")
        A("buffer_load_dwordx4 v[48:51], v7, s[24:27], s73 offen sc1")
        A("buffer_load_dwordx4 v[52:55], v7, s[24:27], s73 offen offset:256 sc1")
        if self.stamps:
            A("s_add_u32 s98, s98, 1")
        A("s_waitcnt vmcnt(0)")
        for k in range(8):
            A(f"v_xor_b32 v{41 + 2 * k}, v{41 + 2 * k}, v12")
        A("v_or3_b32 v41, v41, v43, v45\nv_or3_b32 v47, v47, v49, v51\nv_or3_b32 v41, v41, v53, v55")
        A("v_or_b32 v41, v41, v47")
        A("v_readfirstlane_b32 s4, v12")
        A("v_cmp_ne_u32 vcc, 0, v41")
        A("s_cbranch_vccnz L_qp_retry")
        A("s_cmp_lg_u32 s4, 0\ns_cbranch_scc1 L_qp_ok")
        A("L_qp_retry:")
        self.budget("L_qp_loop")
        A("L_qp_ok:")
        A("v_mov_b32 v41, v42\nv_mov_b32 v42, v44\nv_mov_b32 v43, v46")
        A("v_mov_b32 v49, v50\nv_mov_b32 v50, v52\nv_mov_b32 v51, v54")
        A("v_lshlrev_b32 v5, 4, v0")
        A(f"ds_write_b128 v5, v[40:43] offset:{L_QB}\nds_write_b128 v5, v[48:51] offset:{L_QA}")
        A("s_waitcnt lgkmcnt(0)")
        self.stamp(2)
        A("L_h_b1:")
        A("s_barrier")
        A("s_waitcnt vmcnt(0)")
        A("s_barrier")
        A("s_cmp_lg_u32 s66, 0\ns_cbranch_scc1 L_h_b3")
        A("v_lshrrev_b32 v3, 4, v0\nv_bfe_u32 v4, v0, 2, 2\nv_and_b32 v5, 3, v0")
        A("v_lshlrev_b32 v6, 13, v4\nv_lshl_add_u32 v6, v3, 10, v6\nv_lshl_add_u32 v6, v5, 4, v6")
        A("v_lshlrev_b32 v7, 8, v4")
        A("s_lshl_b32 s72, s68, 15\ns_lshr_b32 s4, s67, 2\ns_lshl_b32 s5, s4, 12\ns_add_u32 s72, s72, s5")
        A("s_lshl_b32 s73, s68, 10\ns_lshl_b32 s5, s4, 7\ns_add_u32 s73, s73, s5")
        A("s_lshl_b32 s5, s69, 8\ns_add_u32 s72, s72, s5\ns_lshl_b32 s5, s69, 5\ns_add_u32 s73, s73, s5")
        A("s_and_b32 s4, s67, 3\ns_lshl_b32 s5, s4, 6\ns_add_u32 s72, s72, s5")
        A("s_lshl_b32 s5, s4, 3\ns_add_u32 s73, s73, s5")
        A(f"s_add_u32 s72, s72, {PREC}\ns_add_u32 s73, s73, {HDR}")
        self.combine(128, 6, 7, 72, 73)
        A("s_mov_b32 s6, 1")
        A("s_waitcnt vmcnt(0)")
        A("s_atomic_add s6, s[58:59], 128")
        A(f"v_mov_b32 v3, {L_PROG}")
        A("L_prog:")
        A("s_sleep 8")
        A("ds_read_b32 v4, v3\ns_waitcnt lgkmcnt(0)\nv_readfirstlane_b32 s4, v4\ns_nop 0")
        A("s_cmp_lg_u32 s4, 0\ns_cbranch_scc1 L_grid1")
        self.budget("L_prog")
        A("L_grid:")
        A(f"s_sleep {self.sleep_grid}")
        A("L_grid1:")
        A("global_load_dword v12, v2, s[58:59] offset:128 sc1")
        A("s_waitcnt vmcnt(0)\nv_readfirstlane_b32 s4, v12\ns_nop 0")
        A("s_cmp_ge_u32 s4, 256\ns_cbranch_scc1 L_grid_ok")
        A("s_sub_u32 s82, s82, 63")
        A("s_cmp_gt_i32 s82, 0\ns_cbranch_scc1 L_grid\ns_endpgm")
        A("L_grid_ok:")
        self.stamp(4)
        nun = 4 * len(self.levels)
        starts, s = [], self.SR
        for n in self.levels:
            starts.append(s)
            s += n
        st64 = sum(v << (8 * k) for k, v in enumerate(starts))
        ln32 = sum(v << (4 * k) for k, v in enumerate(self.levels))
        assert len(self.levels) <= 8 and all(n < 16 for n in self.levels) and nun + 1 <= 48
        A(f"s_mov_b32 s70, {st64 & 0xffffffff:#x}\ns_mov_b32 s71, {st64 >> 32:#x}\ns_mov_b32 s72, {ln32:#x}")
        A(f"s_lshl_b32 s73, s63, 1\ns_add_u32 s73, s73, s64\ns_lshl_b32 s73, s73, 8\ns_add_u32 s73, s73, {CNT}")
        A("s_lshl_b32 s74, s64, 7\ns_add_u32 s74, s74, s63\ns_lshl_b32 s74, s74, 20")
        A(f"s_mov_b32 s75, {L_QUEUE}\nv_mov_b32 v3, {L_REQ}")
        A("L_cl:")
        A("ds_read_b32 v4, v3\ns_waitcnt lgkmcnt(0)\nv_readfirstlane_b32 s4, v4\ns_nop 0")
        A("s_cmp_gt_u32 s4, s75\ns_cbranch_scc1 L_claim")
        A(f"s_sleep {self.clsleep}")
        self.budget("L_cl")
        A("L_claim:")
        if nun:
            A("s_mov_b32 s76, 1\ns_atomic_add s76, s[60:61], s73 glc\ns_waitcnt lgkmcnt(0)")
        else:
            A("s_mov_b32 s76, 0")
        A("s_lshr_b32 s78, s76, 2\ns_and_b32 s79, s76, 3")
        A("s_lshl_b32 s4, s78, 3\ns_lshr_b64 s[4:5], s[70:71], s4\ns_and_b32 s4, s4, 0xff\ns_lshl_b32 s4, s4, 14")
        A("s_lshl_b32 s5, s78, 2\ns_lshr_b32 s5, s72, s5\ns_and_b32 s5, s5, 15\ns_or_b32 s4, s4, s5")
        A("s_mul_i32 s5, s79, 0x2000100\ns_add_u32 s4, s4, s5\ns_add_u32 s4, s4, s74")
        A(f"s_cmp_ge_u32 s76, {nun}\ns_cselect_b32 s4, 0x80, s4")
        A("v_mov_b32 v5, s75\nv_mov_b32 v6, s4")
        A("s_mov_b64 exec, 1\nds_write_b32 v5, v6\ns_mov_b64 exec, -1")
        A("s_add_u32 s75, s75, 4")
        A("s_cmp_lg_u32 s4, 0x80\ns_cbranch_scc1 L_cl")
        A("L_h_b3:")
        A("s_lshr_b32 s70, s66, 1\ns_xor_b32 s70, s70, 1\ns_and_b32 s71, s66, 1")
        A("s_cmp_eq_u32 s70, 1")
        self.srd_sel(8, 44, 54, 0x400000)
        self.srd(12, 56, 0x4000)
        A("v_lshrrev_b32 v4, 3, v0\nv_and_b32 v5, 7, v0\nv_lshlrev_b32 v4, 10, v4\nv_lshl_add_u32 v4, v5, 4, v4")
        for k in range(1, 4):
            A(f"v_xor_b32 v{4 + k}, {k << 5}, v4")
        A("s_lshl_b32 s72, s63, 17\ns_lshl_b32 s4, s71, 16\ns_add_u32 s72, s72, s4")
        A("s_lshl_b32 s4, s62, 7\ns_add_u32 s72, s72, s4")
        A(f"s_lshl_b32 s73, s70, 14\ns_add_u32 s73, s73, {L_ST}")
        A("s_lshl_b32 s4, s71, 13\ns_add_u32 s4, s4, s73\ns_mov_b32 m0, s4")
        A("v_lshrrev_b32 v3, 4, v0\nv_bfe_u32 v12, v0, 2, 2\nv_and_b32 v13, 3, v0")
        A("v_lshl_add_u32 v8, v12, 3, v3\nv_lshlrev_b32 v8, 7, v8\nv_lshl_add_u32 v8, v13, 3, v8")
        A("v_lshl_add_u32 v8, v12, 5, v8\nv_add_u32 v8, s73, v8")
        for nb in range(1, 4):
            A(f"v_xor_b32 v{8 + nb}, {nb << 5}, v8")
        A("v_lshlrev_b32 v14, 8, v13\nv_lshl_add_u32 v14, v12, 6, v14\nv_lshl_add_u32 v14, v3, 4, v14")
        A("v_lshlrev_b32 v15, 5, v13\nv_lshl_add_u32 v15, v3, 3, v15")
        A("s_lshl_b32 s74, s70, 18\ns_lshl_b32 s4, s63, 13\ns_add_u32 s74, s74, s4")
        A(f"s_lshl_b32 s4, s71, 12\ns_add_u32 s74, s74, s4\ns_add_u32 s74, s74, {PREC}")
        A("s_lshl_b32 s75, s70, 13\ns_lshl_b32 s4, s63, 8\ns_add_u32 s75, s75, s4")
        A(f"s_lshl_b32 s4, s71, 7\ns_add_u32 s75, s75, s4\ns_add_u32 s75, s75, {HDR}")
        self.y_voff(60, 61)
        A("s_lshl_b32 s76, s70, 19\ns_lshl_b32 s4, s62, 13\ns_add_u32 s76, s76, s4")
        A(f"s_add_u32 s78, s76, {YWS}")
        A("s_lshl_b32 s4, s71, 18\ns_add_u32 s76, s78, s4\ns_lshl_b32 s4, s63, 6\ns_add_u32 s76, s76, s4")
        A("s_lshr_b32 s4, s63, 2\ns_lshl_b32 s5, s4, 16\ns_add_u32 s78, s78, s5")
        A("s_lshl_b32 s79, s4, 11\ns_and_b32 s4, s63, 3\ns_lshl_b32 s5, s4, 11\ns_add_u32 s78, s78, s5")
        A("s_lshl_b32 s5, s4, 3\ns_add_u32 s79, s79, s5\ns_lshl_b32 s5, s70, 10\ns_add_u32 s79, s79, s5")
        A("s_lshl_b32 s5, s62, 7\ns_add_u32 s79, s79, s5")
        A("v_lshlrev_b32 v61, 4, v0")
        A("v_lshlrev_b32 v62, 5, v3\nv_lshl_add_u32 v62, v13, 1, v62")
        A(f"s_lshl_b32 s4, s70, 2\ns_add_u32 s4, s4, {L_WOC}\nv_mov_b32 v63, s4\nv_mov_b32 v59, 1")
        A("s_waitcnt lgkmcnt(0)")
        A("s_barrier")
        self.stamp(5)
        for i in range(8):
            A(f"buffer_load_dwordx4 v{4 + (i & 3)}, s[8:11], s72 offen {self.nt} lds")
            if i < 7:
                A("s_add_u32 m0, m0, 0x400\ns_add_u32 s72, s72, 0x2000")
        A("s_waitcnt vmcnt(0)")
        A("s_mov_b64 exec, 1\nds_add_u32 v63, v59\ns_mov_b64 exec, -1")
        A("L_wo_spin:")
        A("ds_read_b32 v59, v63\ns_waitcnt lgkmcnt(0)\nv_readfirstlane_b32 s4, v59\ns_nop 0")
        A("s_cmp_eq_u32 s4, 2\ns_cbranch_scc1 L_wo_ok")
        self.budget("L_wo_spin")
        A("L_wo_ok:")
        for ks in range(4):
            if ks >= 1:
                A("s_waitcnt lgkmcnt(7)")
            for nb in range(4):
                for hf in range(2):
                    r = 64 + 16 * ks + 4 * nb + 2 * hf
                    A(f"ds_read_b64_tr_b16 v[{r}:{r + 1}], v{8 + nb} offset:{ks * 4096 + hf * 512}")
        self.stamp(3)
        A("L_h1:")
        for ks in range(4):
            A(f"buffer_load_dwordx4 v[{16 + 4 * ks}:{19 + 4 * ks}], v14, s[24:27], s74 offen offset:{1024 * ks} sc1")
        A("buffer_load_dwordx2 v[32:33], v15, s[24:27], s75 offen sc1")
        if self.stamps:
            A("s_add_u32 s98, s98, 0x100")
        A("s_waitcnt vmcnt(0)")
        A("v_max3_u32 v34, v16, v17, v18\nv_max3_u32 v35, v19, v20, v21\nv_max3_u32 v36, v22, v23, v24")
        A("v_max3_u32 v37, v25, v26, v27\nv_max3_u32 v34, v34, v28, v29\nv_max3_u32 v35, v35, v30, v31")
        A("v_max3_u32 v36, v36, v32, v33\nv_max3_u32 v34, v34, v35, v37\nv_max_u32 v34, v34, v36")
        A("v_cmp_eq_u32 vcc, -1, v34\ns_cbranch_vccz L_h1_ok")
        self.budget("L_h1")
        A("L_h1_ok:")
        A("s_waitcnt lgkmcnt(0)")
        for ks in range(4):
            for nb in range(4):
                r = 64 + 16 * ks + 4 * nb
                c = "0" if ks == 0 else f"v[{40 + 4 * nb}:{43 + 4 * nb}]"
                A(f"v_mfma_f32_16x16x32_bf16 v[{40 + 4 * nb}:{43 + 4 * nb}], v[{16 + 4 * ks}:{19 + 4 * ks}], v[{r}:{r + 3}], {c}")
        q1 = "quad_perm:[1,0,3,2] row_mask:0xf bank_mask:0xf"
        q2 = "quad_perm:[2,3,0,1] row_mask:0xf bank_mask:0xf"
        A(f"v_max_f32_dpp v34, v32, v32 {q1}\ns_nop 1\nv_max_f32_dpp v35, v34, v34 {q2}")
        A("v_sub_f32 v32, v32, v35\nv_exp_f32 v32, v32\ns_nop 0\nv_mul_f32 v33, v33, v32\ns_nop 1")
        A(f"v_add_f32_dpp v34, v33, v33 {q1}\ns_nop 1\nv_add_f32_dpp v35, v34, v34 {q2}")
        A("v_rcp_f32 v35, v35\ns_nop 0\nv_mul_f32 v32, v32, v35\ns_nop 1")
        for s in range(4):
            for nb in range(4):
                op = "v_mul_f32_dpp" if s == 0 else "v_fmac_f32_dpp"
                A(f"{op} v{36 + nb}, v32, v{40 + 4 * nb + s} quad_perm:[{s},{s},{s},{s}] row_mask:0xf bank_mask:0xf")
        for nb in range(4):
            A(f"v_min_u32 v{36 + nb}, -2, v{36 + nb}")
        A("buffer_store_dwordx4 v[36:39], v60, s[24:27], s76 offen sc1")
        self.stamp(6)
        A("s_cmp_lg_u32 s71, 0\ns_cbranch_scc1 L_hfin")
        A("L_h2:")
        A("buffer_load_dwordx4 v[16:19], v61, s[24:27], s78 offen sc1")
        A("buffer_load_dwordx4 v[20:23], v61, s[24:27], s78 offen offset:1024 sc1")
        if self.stamps:
            A("s_add_u32 s98, s98, 0x10000")
        A("s_waitcnt vmcnt(0)")
        A("v_max3_u32 v24, v16, v17, v18\nv_max3_u32 v25, v19, v20, v21\nv_max3_u32 v24, v24, v22, v23")
        A("v_max_u32 v24, v24, v25")
        A("v_cmp_eq_u32 vcc, -1, v24\ns_cbranch_vccz L_h2_ok")
        self.budget("L_h2")
        A("L_h2_ok:")
        for r in range(4):
            A(f"v_add_f32 v{16 + r}, v{16 + r}, v{20 + r}")
        A("s_nop 1\nv_permlane32_swap_b32 v16, v18\nv_permlane32_swap_b32 v17, v19\ns_nop 0")
        A("v_add_f32 v16, v16, v18\nv_add_f32 v17, v17, v19")
        A("s_nop 1\nv_permlane16_swap_b32 v16, v17\ns_nop 0\nv_add_f32 v16, v16, v17\ns_nop 1")
        A("v_add_f32_dpp v17, v16, v16 row_ror:4 row_mask:0xf bank_mask:0xf\ns_nop 1")
        A("v_add_f32_dpp v16, v17, v17 row_ror:8 row_mask:0xf bank_mask:0xf")
        A("v_cvt_pk_bf16_f32 v16, v16, v16")
        A("s_mov_b32 exec_lo, 0x000f000f\ns_mov_b32 exec_hi, 0x000f000f")
        A("buffer_store_short v16, v62, s[12:15], s79 offen")
        if self.calib is not None:
            wg, k = self.calib
            A(f"s_cmp_lg_u32 s2, {wg}\ns_cbranch_scc1 L_cal_end\ns_cmp_lg_u32 s66, 0\ns_cbranch_scc1 L_cal_end")
            if k == 'end':
                A("s_memrealtime s[6:7]\ns_waitcnt lgkmcnt(0)\ns_sub_u32 s5, s6, s84")
            elif k is None:
                A("s_mov_b32 s5, 0")
            else:
                A(f"s_sub_u32 s5, s{84 + 2 * k}, s84")
            A("s_add_u32 s5, s5, 15000")
            A("L_cal:\ns_memrealtime s[6:7]\ns_waitcnt lgkmcnt(0)\ns_sub_u32 s6, s6, s84\ns_cmp_lt_u32 s6, s5\ns_cbranch_scc1 L_cal")
            A("L_cal_end:")
        if self.stamps:
            A("s_cmp_lg_u32 s66, 0\ns_cbranch_scc1 L_hfin")
            A("s_waitcnt vmcnt(0)")
            self.write_stamps(with_main=True)
            A("s_endpgm")
        A("L_hfin:")
        self.write_stamps()


if __name__ == "__main__":
    out = sys.argv[1]
    kw = eval("dict(" + (sys.argv[2] if len(sys.argv) > 2 else "") + ")")
    open(out, "w").write(G(**kw).gen())
```

```python
import sys, math, struct, re

NAME = "concat_heads__sliding_block_cached__mha_block_cached__decode"
REF = f"cdna_kernels/{NAME}.s.ref"

QWS, PREC, HDR, CNT, YWS, WSEND = 0x100000, 0x180000, 0x200000, 0x280000, 0x300000, 0x400000
STAMP = 0x10000
L_QRED, L_FLC, L_REQ, L_WOC, L_PROG = 0, 4, 8, 12, 20
L_QUEUE = 0x40
L_QA, L_QB = 0x400, 0x800
L_FL = 0x1000
L_ST = 0x4000
LDS_SIZE = 0x14000


def f2u(x):
    return struct.unpack("<I", struct.pack("<f", x))[0]


CSC = 128 ** -0.5 * math.log2(math.e)
BIG = 0x7FFFFFFF
OOB = 0x10000000


class G:
    def __init__(self, stamps=False, static_rounds=40, levels=(8, 6, 4, 2, 2, 1, 1), LA=1,
                 masks=(5, 6, 7, 5), nt="nt", sleep_grid=64, codepf=True, steps=False, nocomp=False, hprio=3, clsleep=1, qmode='full', gridat=30, noclear=False, amap=0, calib=None, early=False, rot=None):
        self.rot = rot
        self.L = []
        self.tail = []
        self.stamps = stamps
        self.SR = static_rounds
        self.levels = levels
        assert static_rounds + sum(levels) == 64
        self.LA = LA
        self.masks = masks
        self.nt = nt
        self.sleep_grid = sleep_grid
        self.codepf = codepf
        self.uid = 0
        self.early = early
        self.calib = calib
        self.qmode = qmode
        self.gridat = gridat
        self.noclear = noclear
        self.amap = amap
        self.steps = steps
        self.nocomp = nocomp
        self.hprio = hprio
        self.clsleep = clsleep

    def A(self, s):
        for line in s.strip("\n").split("\n"):
            line = line.strip()
            if not line:
                continue
            self.L.append(line if line.endswith(":") else "    " + line)

    def lab(self, p):
        self.uid += 1
        return f"L_{p}_{self.uid}"

    def stamp(self, k):
        if self.stamps:
            self.A(f"s_memrealtime s[{84 + 2 * k}:{85 + 2 * k}]\ns_waitcnt lgkmcnt(0)")

    def write_stamps(self, with_main=False):
        if not self.stamps:
            return
        A = self.A
        A("s_mov_b64 exec, 1")
        A("s_lshl_b32 s4, s2, 8\ns_lshl_b32 s5, s3, 5\ns_add_u32 s4, s4, s5")
        A(f"s_add_u32 s4, s4, {STAMP}")
        A("v_mov_b32 v4, s4")
        for k in range(8):
            A(f"v_mov_b32 v{8 + k}, s{84 + 2 * k}")
        A("buffer_store_dwordx4 v[8:11], v4, s[24:27], 0 offen")
        A("buffer_store_dwordx4 v[12:15], v4, s[24:27], 0 offen offset:16")
        if with_main:
            A("s_memrealtime s[6:7]\ns_waitcnt lgkmcnt(0)")
            A("s_lshl_b32 s4, s2, 4\nv_mov_b32 v5, s4")
            A("v_mov_b32 v16, s84\nv_mov_b32 v17, s85\nv_mov_b32 v18, s6\nv_mov_b32 v19, s7")
            A("buffer_store_dwordx4 v[16:19], v5, s[24:27], 0 offen")

    def srd(self, d, lo, size):
        self.A(f"s_mov_b32 s{d}, s{lo}\ns_and_b32 s{d + 1}, s{lo + 1}, 0xffff\n"
               f"s_mov_b32 s{d + 2}, {size:#x}\ns_mov_b32 s{d + 3}, 0x20000")

    def srd_sel(self, d, loA, loB, size):
        self.A(f"s_cselect_b32 s{d}, s{loB}, s{loA}\ns_cselect_b32 s{d + 1}, s{loB + 1}, s{loA + 1}\n"
               f"s_and_b32 s{d + 1}, s{d + 1}, 0xffff\n"
               f"s_mov_b32 s{d + 2}, {size:#x}\ns_mov_b32 s{d + 3}, 0x20000")

    def budget(self, retry):
        self.A(f"s_sub_u32 s82, s82, 1\ns_cmp_lg_u32 s82, 0\ns_cbranch_scc1 {retry}\ns_endpgm")

    def tile(self, X, Q, acc, m, R, l, bias, kwait, vwait, issueK=None):
        A = self.A
        D, S, T = 40, 56, 60
        if kwait is not None:
            A(f"s_waitcnt vmcnt({kwait})")
        for t in range(4):
            A(f"v_mfma_f32_16x16x32_bf16 v[{D + 4 * t}:{D + 4 * t + 3}], v[{X + 4 * t}:{X + 4 * t + 3}], v[{Q}:{Q + 3}], 0")
        if issueK:
            issueK()
            A("s_nop 1")
        else:
            A("s_nop 5")
        if self.nocomp and issueK:
            A(f"s_waitcnt vmcnt({vwait})")
            return
        for c in range(4):
            for t in range(4):
                dpp = f"quad_perm:[{c},{c},{c},{c}] row_mask:0xf bank_mask:0xf"
                if c == 0 and bias is None:
                    A(f"v_mov_b32_dpp v{S + t}, v{D + 4 * t} {dpp}")
                else:
                    A(f"v_add_f32_dpp v{S + t}, v{D + 4 * t + c}, v{bias if c == 0 else S + t} {dpp}")
        rs, back = self.lab("rs"), self.lab("bk")
        A(f"v_max3_f32 v{T}, v{S}, v{S + 1}, v{S + 2}")
        A(f"v_max_f32 v{T}, v{T}, v{S + 3}")
        A(f"v_cmp_gt_f32 vcc, v{T}, v{m}")
        A(f"s_cbranch_vccnz {rs}")
        A(f"{back}:")
        for t in range(4):
            A(f"v_fma_f32 v{S + t}, v{S + t}, s77, -v{R}")
        for t in range(4):
            A(f"v_exp_f32 v{S + t}, v{S + t}")
        A(f"v_add_f32 v{T}, v{S}, v{S + 1}")
        A(f"v_cvt_pk_bf16_f32 v{S}, v{S}, v{S}")
        A(f"v_add_f32 v{T + 1}, v{S + 2}, v{S + 3}")
        for t in range(1, 4):
            A(f"v_cvt_pk_bf16_f32 v{S + t}, v{S + t}, v{S + t}")
        for t in range(4):
            A(f"v_and_b32 v{D + 2 * t}, v{S + t}, v4")
            A(f"v_and_b32 v{D + 2 * t + 1}, v{S + t}, v5")
        A(f"v_add_f32 v{l}, v{l}, v{T}")
        A(f"v_add_f32 v{l}, v{l}, v{T + 1}")
        if vwait is not None:
            A(f"s_waitcnt vmcnt({vwait})")
        for t in range(4):
            V = X + 16 + 4 * t
            A(f"v_mfma_f32_16x16x16_bf16 v[{acc}:{acc + 3}], v[{V}:{V + 1}], v[{D + 2 * t}:{D + 2 * t + 1}], v[{acc}:{acc + 3}]")
            A(f"v_mfma_f32_16x16x16_bf16 v[{acc + 4}:{acc + 7}], v[{V + 2}:{V + 3}], v[{D + 2 * t}:{D + 2 * t + 1}], v[{acc + 4}:{acc + 7}]")
        o = [f"{rs}:",
             f"v_mov_b32 v{T + 1}, v{T}", "s_nop 1",
             f"v_permlane32_swap_b32 v{T + 1}, v{T}", "s_nop 0",
             f"v_max_f32 v{T}, v{T}, v{T + 1}",
             f"v_mov_b32 v{T + 1}, v{T}", "s_nop 1",
             f"v_permlane16_swap_b32 v{T + 1}, v{T}", "s_nop 0",
             f"v_max3_f32 v{m}, v{m}, v{T}, v{T + 1}",
             f"v_mul_f32 v{T}, s77, v{m}",
             f"v_sub_f32 v{T + 1}, v{R}, v{T}",
             f"v_exp_f32 v{T + 1}, v{T + 1}",
             f"v_mov_b32 v{R}, v{T}",
             f"v_mul_f32 v{l}, v{l}, v{T + 1}"]
        for i in range(8):
            o.append(f"v_mul_f32 v{acc + i}, v{acc + i}, v{T + 1}")
        o.append(f"s_branch {back}")
        self.tail.append("\n".join(o))

    def loads(self, dst, voff, srd, soff):
        for t in range(4):
            self.A(f"buffer_load_dwordx4 v[{dst + 4 * t}:{dst + 4 * t + 3}], v{voff}, s[{srd}:{srd + 3}], s{soff} offen offset:{1024 * t} {self.nt}")

    def flush_write(self, acc, R):
        A = self.A
        A(f"s_mul_i32 s4, s3, 0xc00\ns_add_u32 s4, s4, {L_FL}")
        A("v_lshlrev_b32 v60, 4, v0\nv_lshlrev_b32 v61, 3, v0")
        A("v_add_u32 v60, s4, v60\nv_add_u32 v61, s4, v61")
        A("s_nop 3")
        A(f"ds_write_b128 v60, v[{acc}:{acc + 3}]")
        A(f"ds_write_b128 v60, v[{acc + 4}:{acc + 7}] offset:1024")
        A(f"ds_write_b64 v61, v[{R}:{R + 1}] offset:2048")

    def combine(self, b, vrec, vhdr, srec, shdr):
        A = self.A
        a = lambda w: b + 12 * w
        t = b + 48
        A(f"v_lshlrev_b32 v{t}, 4, v0\nv_lshlrev_b32 v{t + 1}, 3, v0")
        for w in range(4):
            A(f"ds_read_b64 v[{a(w) + 8}:{a(w) + 9}], v{t + 1} offset:{L_FL + 0xc00 * w + 2048}")
        for w in range(4):
            A(f"ds_read_b128 v[{a(w)}:{a(w) + 3}], v{t} offset:{L_FL + 0xc00 * w}")
            A(f"ds_read_b128 v[{a(w) + 4}:{a(w) + 7}], v{t} offset:{L_FL + 0xc00 * w + 1024}")
        A("s_waitcnt lgkmcnt(8)")
        Rm, Ls = t + 2, t + 3
        A(f"v_max3_f32 v{Rm}, v{a(0) + 8}, v{a(1) + 8}, v{a(2) + 8}")
        A(f"v_max_f32 v{Rm}, v{Rm}, v{a(3) + 8}")
        for w in range(4):
            A(f"v_sub_f32 v{a(w) + 8}, v{a(w) + 8}, v{Rm}")
        for w in range(4):
            A(f"v_exp_f32 v{a(w) + 8}, v{a(w) + 8}")
        A(f"v_mul_f32 v{Ls}, v{a(0) + 8}, v{a(0) + 9}")
        for w in range(1, 4):
            A(f"v_fmac_f32 v{Ls}, v{a(w) + 8}, v{a(w) + 9}")
        A(f"v_mov_b32 v{t}, v{Ls}")
        A("s_waitcnt lgkmcnt(6)")
        for i in range(8):
            A(f"v_mul_f32 v{a(0) + i}, v{a(0) + 8}, v{a(0) + i}")
        A(f"v_permlane32_swap_b32 v{t}, v{Ls}")
        A("s_waitcnt lgkmcnt(4)")
        A(f"v_add_f32 v{Ls}, v{Ls}, v{t}")
        A(f"v_mov_b32 v{t}, v{Ls}")
        for i in range(8):
            A(f"v_fmac_f32 v{a(0) + i}, v{a(1) + 8}, v{a(1) + i}")
        A(f"v_permlane16_swap_b32 v{t}, v{Ls}")
        A("s_waitcnt lgkmcnt(2)")
        A(f"v_add_f32 v{Ls}, v{Ls}, v{t}")
        for i in range(8):
            A(f"v_fmac_f32 v{a(0) + i}, v{a(2) + 8}, v{a(2) + i}")
        A("s_waitcnt lgkmcnt(0)")
        for i in range(8):
            A(f"v_fmac_f32 v{a(0) + i}, v{a(3) + 8}, v{a(3) + i}")
        o = t + 4
        for k in range(4):
            A(f"v_cvt_pk_bf16_f32 v{o + k}, v{a(0) + 2 * k}, v{a(0) + 2 * k + 1}")
        for k in range(4):
            A(f"v_min_u32 v{o + k}, -2, v{o + k}")
        A(f"v_min_u32 v{Rm}, -2, v{Rm}\nv_min_u32 v{Ls}, -2, v{Ls}")
        A(f"buffer_store_dwordx4 v[{o}:{o + 3}], v{vrec}, s[24:27], s{srec} offen sc1")
        A("s_mov_b64 exec, 0x1111")
        A(f"buffer_store_dwordx2 v[{Rm}:{Ls}], v{vhdr}, s[24:27], s{shdr} offen sc1")
        A("s_mov_b64 exec, -1")

    def brec_addr(self, vrec, vhdr, srec, shdr):
        A = self.A
        A(f"v_lshrrev_b32 v{vrec}, 4, v0\nv_and_b32 v{vhdr}, 15, v0")
        A(f"v_lshlrev_b32 v{vrec}, 10, v{vrec}")
        A(f"v_lshl_add_u32 v{vrec}, v{vhdr}, 4, v{vrec}")
        A(f"v_lshlrev_b32 v{vhdr}, 1, v{vhdr}")
        A(f"s_lshl_b32 s{srec}, s63, 13\ns_lshl_b32 s4, s64, 12\ns_add_u32 s{srec}, s{srec}, s4")
        A(f"s_lshl_b32 s4, s65, 8\ns_add_u32 s{srec}, s{srec}, s4\ns_add_u32 s{srec}, s{srec}, {PREC + 0x40000}")
        A(f"s_lshl_b32 s{shdr}, s63, 8\ns_lshl_b32 s4, s64, 7\ns_add_u32 s{shdr}, s{shdr}, s4")
        A(f"s_lshl_b32 s4, s65, 5\ns_add_u32 s{shdr}, s{shdr}, s4\ns_add_u32 s{shdr}, s{shdr}, {HDR + 0x2000}")

    def y_voff(self, v, t):
        A = self.A
        A(f"v_lshrrev_b32 v{v}, 4, v0\nv_lshlrev_b32 v{v}, 16, v{v}")
        A(f"v_bfe_u32 v{t}, v0, 2, 2\nv_lshl_add_u32 v{v}, v{t}, 11, v{v}")
        A(f"v_and_b32 v{t}, 3, v0\nv_lshl_add_u32 v{v}, v{t}, 4, v{v}")

    def gen(self):
        A = self.A
        hdr = open(REF).read().split("\n")
        for line in hdr:
            if line.startswith("; @launch"):
                self.L.append(f"; @launch grid=(256,1,1) block=(512,1,1) lds={LDS_SIZE}")
                break
            self.L.append(line)
        self.L += ['.amdgcn_target "amdgcn-amd-amdhsa--gfx950"', ".text", f".globl {NAME}_kernel", ".p2align 8",
                   f".type {NAME}_kernel,@function", f"{NAME}_kernel:"]
        A("s_cmp_ge_u32 s2, 256\ns_cbranch_scc1 L_end")
        A("s_load_dwordx16 s[36:51], s[0:1], 0")
        A("s_load_dwordx8 s[52:59], s[0:1], 64")
        A("s_load_dwordx2 s[60:61], s[0:1], 96")
        A("s_memrealtime s[84:85]")
        A("v_lshrrev_b32 v1, 6, v0\nv_and_b32 v0, 63, v0")
        A("v_mov_b32 v2, 0")
        A("v_readfirstlane_b32 s3, v1")
        A("v_lshlrev_b32 v1, 2, v0")
        A("s_and_b32 s62, s2, 7\ns_lshr_b32 s63, s2, 3")
        tab = sum(mk << (4 * k) for k, mk in enumerate(self.masks))
        A(f"s_and_b32 s4, s63, 3\ns_lshl_b32 s4, s4, 2\ns_lshr_b32 s4, {tab:#x}, s4")
        A("s_and_b32 s4, s4, s62\ns_bcnt1_i32_b32 s4, s4\ns_and_b32 s64, s4, 1")
        A("s_and_b32 s65, s62, 3")
        A("s_lshr_b32 s67, s2, 5\ns_bfe_u32 s68, s2, 0x30002\ns_and_b32 s69, s2, 3")
        A(f"s_mov_b32 s77, {f2u(CSC):#x}")
        A("s_mov_b32 s82, 0x400000")
        A("s_cmp_lg_u32 s3, 0\ns_cbranch_scc1 L_noinit")
        A("ds_write_b32 v1, v2")
        A("L_noinit:")
        A("s_waitcnt lgkmcnt(0)")
        if self.stamps:
            for k in range(1, 8):
                A(f"s_mov_b32 s{84 + 2 * k}, 0")
        self.srd(24, 60, WSEND)
        A("s_cmp_ge_u32 s3, 4\ns_cbranch_scc1 L_helper")
        self.stream()
        A("L_helper:")
        self.stamps = self.stamps or self.early
        self.helper()
        A("L_end:\ns_endpgm")
        for blk in self.tail:
            A(blk)
        A("L_code_end:")
        self.L += ['.section .rodata,"a"', ".p2align 6", f".amdhsa_kernel {NAME}_kernel",
                   "  .amdhsa_next_free_vgpr 256", "  .amdhsa_next_free_sgpr 102", "  .amdhsa_accum_offset 256",
                   "  .amdhsa_group_segment_fixed_size 0", "  .amdhsa_kernarg_size 104",
                   "  .amdhsa_user_sgpr_count 2", "  .amdhsa_user_sgpr_kernarg_segment_ptr 1",
                   "  .amdhsa_system_sgpr_workgroup_id_x 1", ".end_amdhsa_kernel"]
        return "\n".join(self.L) + "\n"

    def stream(self):
        A = self.A
        self.srd(8, 48, 0x10000000)
        self.srd(12, 50, 0x10000000)
        self.srd(16, 38, 0x4000000)
        self.srd(20, 40, 0x4000000)
        A("s_or_b32 s4, s2, s3\ns_cmp_lg_u32 s4, 0\ns_cbranch_scc1 L_notag")
        A("s_or_b32 s4, s84, 1\nv_mov_b32 v3, s4")
        A("s_mov_b64 exec, 1\nglobal_store_dword v2, v3, s[58:59] sc1\ns_mov_b64 exec, -1")
        A("L_notag:")
        A("v_lshrrev_b32 v3, 4, v0\nv_bfe_u32 v4, v0, 2, 2\nv_and_b32 v5, 3, v0")
        A("v_lshlrev_b32 v1, 8, v4\nv_lshl_add_u32 v1, v3, 6, v1\nv_lshl_add_u32 v1, v5, 4, v1")
        A("v_lshlrev_b32 v2, 4, v0")
        A("s_lshl_b32 s78, s3, 12")
        A("s_lshl_b32 s4, s64, 2\ns_add_u32 s4, s4, s65\ns_lshl_b32 s4, s4, 5\ns_add_u32 s4, s4, s63")
        A("s_lshl_b32 s70, s4, 20\ns_add_u32 s70, s70, s78")
        if self.rot:
            mul, msk = self.rot
            A(f"s_mov_b32 s28, s70\ns_add_u32 s29, s70, {self.SR * 0x4000}")
            A(f"s_mul_i32 s4, s2, {mul}\ns_lshr_b32 s4, s4, 3\ns_and_b32 s4, s4, {msk}")
            A("s_lshl_b32 s4, s4, 14\ns_add_u32 s70, s70, s4")
        A("s_lshr_b32 s4, s2, 2\ns_lshl_b32 s4, s4, 20\ns_lshl_b32 s5, s69, 16\ns_add_u32 s79, s4, s5")
        A("s_add_u32 s79, s79, s78\ns_add_u32 s79, s79, 0xc0000")
        if self.early:
            self.stamp(4)
        A("s_barrier")
        if self.early:
            self.stamp(5)
            A("buffer_load_dwordx4 v[64:67], v1, s[8:11], s70 offen nt\ns_waitcnt vmcnt(0)")
            self.stamp(6)
            A("buffer_load_dwordx4 v[64:67], v1, s[8:11], s70 offen offset:1024 nt\ns_waitcnt vmcnt(0)")
            self.stamp(7)
            self.write_stamps()
            A("s_mov_b64 exec, -1\nv_bfe_u32 v4, v0, 2, 2")
            self.stamps = False
        for sl in range(2):
            self.loads(64 + 32 * sl, 1, 8, 70)
            self.loads(80 + 32 * sl, 2, 12, 70)
            A("s_add_u32 s70, s70, 0x4000")
        for a in range(4):
            self.loads(128 + 32 * a, 1, 16, 79)
            self.loads(144 + 32 * a, 2, 20, 79)
            if a < 3:
                A("s_add_u32 s79, s79, 0x4000")
        A("v_mov_b32 v3, v4")
        A("v_and_b32 v6, 1, v5\nv_lshlrev_b32 v6, 4, v6\nv_mov_b32 v7, 0xffff\nv_lshlrev_b32 v6, v6, v7")
        A("v_cmp_le_u32 vcc, 2, v5\ns_nop 1")
        A("v_cndmask_b32 v5, 0, v6, vcc\nv_xor_b32 v4, v5, v6")
        A("v_mov_b32 v7, 0xff800000")
        for r in list(range(16, 24)) + list(range(28, 36)) + [27, 39]:
            A(f"v_mov_b32 v{r}, 0")
        A("v_mov_b32 v24, 0xff7fffff\nv_mov_b32 v36, 0xff7fffff")
        A("v_mul_f32 v26, s77, v24\nv_mul_f32 v38, s77, v36")
        A(f"s_mov_b32 s71, {self.SR - 2}")
        A("s_mov_b32 s72, s65\ns_mov_b32 s73, s65\ns_mov_b32 s74, s65")
        A(f"s_mov_b32 s75, {L_QUEUE}\ns_mov_b32 s76, 0")
        self.brec_addr(25, 37, 80, 81)
        if self.steps:
            A("v_mov_b32 v62, 0\nv_mov_b32 v63, 0\ns_mov_b32 s83, 0")
        self.stamp(1)
        A("s_barrier")
        A(f"ds_read_b128 v[8:11], v2 offset:{L_QB}")
        A(f"ds_read_b128 v[12:15], v2 offset:{L_QA}")
        A("s_waitcnt lgkmcnt(0)")
        self.stamp(2)
        A("L_loop:")
        for sl in range(2):
            X = 64 + 32 * sl
            A(f"v_cmp_ne_u32 vcc, s{73 + sl}, v3")
            A(f"s_cmp_le_u32 s71, {self.LA}\ns_cbranch_scc1 L_slow{sl}")
            A(f"L_cont{sl}:")
            A("v_cndmask_b32 v6, 0, v7, vcc")
            A(f"s_mov_b32 s{73 + sl}, s72")
            if self.steps:
                A("s_memrealtime s[6:7]")
            self.tile(X, 8, 16, 24, 26, 27, 6, 12, 12, issueK=lambda: self.loads(X, 1, 8, 70))
            if self.steps:
                A(f"s_waitcnt lgkmcnt(0)\ns_mov_b32 m0, s83\nv_writelane_b32 v{62 + sl}, s6, m0")
                if sl == 1:
                    A("s_add_u32 s83, s83, 1")
            A(f"s_cmp_eq_u32 s71, {BIG - 1}\ns_cbranch_scc1 L_exit")
            self.loads(X + 16, 2, 12, 70)
            A("s_add_u32 s70, s70, 0x4000\ns_sub_u32 s71, s71, 1")
            if self.rot:
                A("s_cmp_eq_u32 s70, s29\ns_cselect_b32 s70, s28, s70")
            sp, got, dn, rq = f"L_spin{sl}", f"L_got{sl}", f"L_done{sl}", f"L_req{sl}"
            o = [f"L_slow{sl}:",
                 "s_cmp_lg_u32 s71, 0", f"s_cbranch_scc1 {rq}",
                 "v_mov_b32 v60, s75",
                 f"{sp}:",
                 "ds_read_b32 v61, v60", "s_waitcnt lgkmcnt(0)",
                 "v_readfirstlane_b32 s4, v61",
                 "s_nop 0",
                 "s_cmp_lg_u32 s4, 0", f"s_cbranch_scc1 {got}",
                 "s_sub_u32 s82, s82, 1", "s_cmp_lg_u32 s82, 0", f"s_cbranch_scc1 {sp}", "s_endpgm",
                 f"{got}:",
                 "s_add_u32 s75, s75, 4",
                 "s_cmp_eq_u32 s4, 0x80", f"s_cbranch_scc1 {dn}",
                 "s_and_b32 s71, s4, 0x7f", "s_bfe_u32 s72, s4, 0x20008",
                 "s_and_b32 s70, s4, 0xffffc000", "s_add_u32 s70, s70, s78", "s_mov_b32 s76, 0",
                 f"s_cmp_le_u32 s71, {self.LA}", f"s_cbranch_scc0 L_cont{sl}",
                 f"{rq}:",
                 "s_cmp_lg_u32 s76, 0", f"s_cbranch_scc1 L_cont{sl}",
                 "s_mov_b32 s76, 1", "s_add_u32 s4, s75, 4",
                 f"v_mov_b32 v60, {L_REQ}", "v_mov_b32 v61, s4",
                 "s_mov_b64 exec, 1", "ds_max_u32 v60, v61", "s_mov_b64 exec, -1",
                 f"s_branch L_cont{sl}",
                 f"{dn}:",
                 f"s_mov_b32 s70, {OOB:#x}", f"s_mov_b32 s71, {BIG:#x}"]
            if self.stamps:
                o += ["s_memrealtime s[92:93]", "s_waitcnt lgkmcnt(0)"]
            o += ["s_barrier",
                  f"s_branch L_cont{sl}"]
            self.tail.append("\n".join(o))
        assert (self.SR - self.gridat) % 2 == 0 and self.SR - self.gridat >= 2
        A(f"s_cmp_eq_u32 s71, {self.SR - self.gridat}\ns_cbranch_scc1 L_sigprog")
        self.tail.append(f"L_sigprog:\nv_mov_b32 v60, {L_PROG}\nds_write_b32 v60, v60\ns_branch L_loop")
        A(f"s_cmp_lg_u32 s71, {self.SR - 4}\ns_cbranch_scc1 L_loop")
        A("s_waitcnt vmcnt(16)")
        for a in range(4):
            self.tile(128 + 32 * a, 12, 28, 36, 38, 39, None, None, None)
        self.flush_write(28, 38)
        A("s_waitcnt lgkmcnt(0)")
        self.stamp(3)
        A("s_barrier")
        A("s_branch L_loop")
        A("L_exit:")
        if self.steps:
            A(f"s_lshl_b32 s4, s2, 2\ns_add_u32 s4, s4, s3\ns_lshl_b32 s4, s4, 9\ns_add_u32 s4, s4, 0x20000")
            A("v_lshlrev_b32 v60, 3, v0\nbuffer_store_dwordx2 v[62:63], v60, s[24:27], s4 offen\ns_nop 2")
        self.flush_write(16, 26)
        A(f"v_mov_b32 v62, {L_FLC}\nv_mov_b32 v63, 1")
        A("s_mov_b64 exec, 1\nds_add_rtn_u32 v62, v62, v63\ns_mov_b64 exec, -1")
        A("s_waitcnt lgkmcnt(0)")
        A("v_readfirstlane_b32 s4, v62")
        self.stamp(5)
        A("s_nop 0\ns_cmp_lg_u32 s4, 3\ns_cbranch_scc1 L_sfin")
        self.combine(128, 25, 37, 80, 81)
        self.stamp(6)
        A("L_sfin:")
        self.write_stamps()
        A("s_endpgm")

    def helper(self):
        A = self.A
        A(f"s_setprio {self.hprio}")
        A("s_sub_u32 s66, s3, 4")
        if self.qmode == 'none':
            A("s_branch L_noprod")
        A("s_xor_b32 s4, s62, s63\ns_bitcmp1_b32 s4, 0\ns_cbranch_scc1 L_noprod")
        A("s_lshr_b32 s4, s2, 1")
        A("s_and_b32 s70, s4, 63\ns_lshr_b32 s71, s4, 6")
        A("s_cmp_eq_u32 s71, 1")
        A("s_cselect_b32 s12, s46, s36\ns_cselect_b32 s13, s47, s37")
        self.srd_sel(8, 42, 52, 0x400000)
        A("s_and_b32 s13, s13, 0xffff\ns_mov_b32 s14, 0x2000\ns_mov_b32 s15, 0x20000")
        A("v_lshrrev_b32 v3, 4, v0\nv_and_b32 v4, 7, v0")
        A("v_lshlrev_b32 v5, 10, v4\nv_lshl_add_u32 v5, v3, 4, v5")
        A("s_lshl_b32 s72, s66, 8")
        A("v_lshrrev_b32 v6, 3, v0\nv_lshlrev_b32 v6, 13, v6")
        A("v_and_b32 v7, 1, v3\nv_lshlrev_b32 v7, 1, v7\nv_xor_b32 v7, v7, v4")
        A("v_lshl_add_u32 v6, v7, 4, v6\nv_xor_b32 v7, 64, v6")
        A("s_lshl_b32 s73, s66, 20\ns_lshl_b32 s4, s70, 7\ns_add_u32 s73, s73, s4")
        A(f"s_lshl_b32 s74, s66, 14\ns_add_u32 s74, s74, {L_ST}")
        A("s_mov_b32 m0, s74")
        A("s_barrier")
        for ks in range(4):
            A(f"buffer_load_dwordx4 v[{16 + 4 * ks}:{19 + 4 * ks}], v5, s[12:15], s72 offen offset:{64 * ks}")
        for i in range(16):
            A(f"buffer_load_dwordx4 v{6 + (i & 1)}, s[8:11], s73 offen {self.nt} lds")
            if i < 15:
                A("s_add_u32 m0, m0, 0x400\ns_add_u32 s73, s73, 0x10000")
        A("global_load_dword v12, v2, s[58:59] sc1")
        A("v_bfe_u32 v4, v0, 2, 2\nv_and_b32 v5, 3, v0")
        A("v_lshl_add_u32 v6, v3, 3, v4\nv_lshlrev_b32 v6, 7, v6\nv_lshl_add_u32 v6, v5, 3, v6")
        A("v_lshrrev_b32 v4, 1, v4\nv_and_b32 v5, 1, v3\nv_lshl_add_u32 v4, v5, 1, v4")
        A("v_lshl_add_u32 v6, v4, 5, v6\nv_add_u32 v8, s74, v6")
        for nb in range(1, 4):
            A(f"v_xor_b32 v{8 + nb}, {nb << 5}, v8")
        for ks in range(4):
            A(f"s_waitcnt vmcnt({13 - 4 * ks})")
            for nb in range(4):
                for hf in range(2):
                    r = 64 + 16 * ks + 4 * nb + 2 * hf
                    A(f"ds_read_b64_tr_b16 v[{r}:{r + 1}], v{8 + nb} offset:{ks * 4096 + hf * 512}")
            A("s_waitcnt lgkmcnt(0)")
            for nb in range(4):
                r = 64 + 16 * ks + 4 * nb
                c = "0" if ks == 0 else f"v[{32 + 4 * nb}:{35 + 4 * nb}]"
                A(f"v_mfma_f32_16x16x32_bf16 v[{32 + 4 * nb}:{35 + 4 * nb}], v[{r}:{r + 3}], v[{16 + 4 * ks}:{19 + 4 * ks}], {c}")
        A("v_lshlrev_b32 v4, 4, v0\nv_add_u32 v5, s74, v4")
        A(f"s_lshl_b32 s4, s66, 10\ns_add_u32 s4, s4, {L_ST}\nv_add_u32 v4, s4, v4")
        A(f"v_mov_b32 v6, {L_QRED}\nv_mov_b32 v7, 1\ns_nop 3")
        for nb in range(4):
            A(f"ds_write_b128 v5, v[{32 + 4 * nb}:{35 + 4 * nb}] offset:{1024 * nb}")
        A("s_mov_b64 exec, 1\nds_add_u32 v6, v7\ns_mov_b64 exec, -1")
        A("L_qr_spin:")
        A("ds_read_b32 v7, v6\ns_waitcnt lgkmcnt(0)\nv_readfirstlane_b32 s4, v7\ns_nop 0")
        A("s_cmp_eq_u32 s4, 4\ns_cbranch_scc1 L_qr_ok")
        self.budget("L_qr_spin")
        A("L_qr_ok:")
        for w in range(4):
            A(f"ds_read_b128 v[{32 + 4 * w}:{35 + 4 * w}], v4 offset:{0x4000 * w}")
        A("v_and_b32 v5, 15, v0\nv_lshlrev_b32 v5, 14, v5")
        A("v_and_b32 v6, 1, v3\nv_lshl_add_u32 v5, v6, 8, v5")
        A("v_lshrrev_b32 v6, 1, v3\nv_lshl_add_u32 v5, v6, 4, v5")
        A("s_lshl_b32 s72, s71, 17\ns_lshr_b32 s4, s70, 1\ns_lshl_b32 s4, s4, 9\ns_add_u32 s72, s72, s4")
        A("s_and_b32 s4, s70, 1\ns_lshl_b32 s4, s4, 7\ns_add_u32 s72, s72, s4")
        A(f"s_lshl_b32 s4, s66, 5\ns_add_u32 s72, s72, s4\ns_add_u32 s72, s72, {QWS}")
        A("s_waitcnt lgkmcnt(0)")
        for r in range(4):
            A(f"v_add_f32 v{32 + r}, v{32 + r}, v{36 + r}\nv_add_f32 v{40 + r}, v{40 + r}, v{44 + r}")
        for r in range(4):
            A(f"v_add_f32 v{32 + r}, v{32 + r}, v{40 + r}")
        A("v_cvt_pk_bf16_f32 v36, v32, v33\nv_cvt_pk_bf16_f32 v38, v34, v35")
        A("L_tag_chk:")
        A("s_waitcnt vmcnt(0)\nv_readfirstlane_b32 s4, v12\ns_nop 0")
        A("s_cmp_lg_u32 s4, 0\ns_cbranch_scc1 L_tag_ok")
        A("global_load_dword v12, v2, s[58:59] sc1")
        self.budget("L_tag_chk")
        A("L_tag_ok:")
        A("v_mov_b32 v37, v12\nv_mov_b32 v39, v12")
        A("s_mov_b32 exec_lo, 0x00ff00ff\ns_mov_b32 exec_hi, 0x00ff00ff")
        A("buffer_store_dwordx4 v[36:39], v5, s[24:27], s72 offen sc1")
        A("s_mov_b64 exec, -1")
        self.stamp(1)
        A("s_branch L_prod_done")
        A("L_noprod:")
        A("s_barrier")
        if self.codepf:
            A("s_cmp_lg_u32 s66, 2\ns_cbranch_scc1 L_prod_done")
            A("s_getpc_b64 s[4:5]")
            A("L_pc:")
            A(f"s_sub_u32 s4, s4, L_pc-{NAME}_kernel\ns_subb_u32 s5, s5, 0")
            A("v_lshlrev_b32 v3, 7, v0\nv_mov_b32 v5, s5")
            A(f"v_add_u32 v8, 0x2000, v3\nv_min_u32 v8, L_code_end-{NAME}_kernel-4, v8")
            A(f"v_min_u32 v3, L_code_end-{NAME}_kernel-4, v3")
            A("v_add_co_u32 v4, vcc, s4, v3\ns_nop 1\nv_addc_co_u32 v5, vcc, 0, v5, vcc")
            A("v_mov_b32 v7, s5\nglobal_load_dword v10, v[4:5], off")
            A("v_add_co_u32 v6, vcc, s4, v8\ns_nop 1\nv_addc_co_u32 v7, vcc, 0, v7, vcc")
            A("global_load_dword v11, v[6:7], off")
        A("L_prod_done:")
        A("s_cmp_eq_u32 s66, 0\ns_cbranch_scc1 L_qpoll")
        if self.noclear:
            A("s_branch L_h_b1")
        A("s_cmp_lg_u32 s66, 1\ns_cbranch_scc1 L_h_b1")
        for r in range(20, 24):
            A(f"v_mov_b32 v{r}, -1")
        self.y_voff(24, 25)
        A(f"s_lshl_b32 s72, s62, 13\ns_lshl_b32 s4, s63, 6\ns_add_u32 s72, s72, s4\ns_add_u32 s72, s72, {YWS}")
        for k in range(4):
            A("buffer_store_dwordx4 v[20:23], v24, s[24:27], s72 offen sc1")
            A("s_add_u32 s72, s72, 0x40000")
        self.brec_addr(26, 27, 80, 81)
        A("buffer_store_dwordx4 v[20:23], v26, s[24:27], s80 offen sc1")
        A("s_mov_b64 exec, 0x1111")
        A("buffer_store_dwordx2 v[20:21], v27, s[24:27], s81 offen sc1")
        A("s_mov_b64 exec, -1")
        A("s_cmp_lg_u32 s65, 0\ns_cbranch_scc1 L_h_b1")
        A(f"s_lshl_b32 s72, s63, 1\ns_add_u32 s72, s72, s64\ns_lshl_b32 s72, s72, 8\ns_add_u32 s72, s72, {CNT}")
        A("s_mov_b64 exec, 1")
        A("buffer_store_dword v2, v2, s[24:27], s72 offen sc1")
        A("s_mov_b64 exec, -1")
        A("s_branch L_h_b1")
        A("L_qpoll:")
        A("v_lshrrev_b32 v3, 4, v0\nv_bfe_u32 v4, v0, 2, 2\nv_and_b32 v5, 3, v0")
        A("v_lshl_add_u32 v5, v3, 2, v5\nv_lshlrev_b32 v5, 4, v5")
        A("v_lshl_add_u32 v6, v4, 14, v5\nv_lshl_add_u32 v7, v4, 9, v5")
        A(f"s_lshl_b32 s72, s64, 16\ns_lshl_b32 s4, s63, 9\ns_add_u32 s72, s72, s4\ns_add_u32 s72, s72, {QWS + 0x20000}")
        A(f"s_lshl_b32 s73, s67, 14\ns_lshl_b32 s4, s68, 11\ns_add_u32 s73, s73, s4\ns_add_u32 s73, s73, {QWS}")
        if self.qmode != 'full':
            A("s_branch L_h_b1")
        A("L_qp_loop:")
        A("global_load_dword v12, v2, s[58:59] sc1")
        A("buffer_load_dwordx4 v[40:43], v6, s[24:27], s72 offen sc1")
        A("buffer_load_dwordx4 v[44:47], v6, s[24:27], s72 offen offset:256 sc1")
        A("buffer_load_dwordx4 v[48:51], v7, s[24:27], s73 offen sc1")
        A("buffer_load_dwordx4 v[52:55], v7, s[24:27], s73 offen offset:256 sc1")
        if self.stamps:
            A("s_add_u32 s98, s98, 1")
        A("s_waitcnt vmcnt(0)")
        for k in range(8):
            A(f"v_xor_b32 v{41 + 2 * k}, v{41 + 2 * k}, v12")
        A("v_or3_b32 v41, v41, v43, v45\nv_or3_b32 v47, v47, v49, v51\nv_or3_b32 v41, v41, v53, v55")
        A("v_or_b32 v41, v41, v47")
        A("v_readfirstlane_b32 s4, v12")
        A("v_cmp_ne_u32 vcc, 0, v41")
        A("s_cbranch_vccnz L_qp_retry")
        A("s_cmp_lg_u32 s4, 0\ns_cbranch_scc1 L_qp_ok")
        A("L_qp_retry:")
        self.budget("L_qp_loop")
        A("L_qp_ok:")
        A("v_mov_b32 v41, v42\nv_mov_b32 v42, v44\nv_mov_b32 v43, v46")
        A("v_mov_b32 v49, v50\nv_mov_b32 v50, v52\nv_mov_b32 v51, v54")
        A("v_lshlrev_b32 v5, 4, v0")
        A(f"ds_write_b128 v5, v[40:43] offset:{L_QB}\nds_write_b128 v5, v[48:51] offset:{L_QA}")
        A("s_waitcnt lgkmcnt(0)")
        self.stamp(2)
        A("L_h_b1:")
        A("s_barrier")
        A("s_waitcnt vmcnt(0)")
        A("s_barrier")
        A("s_cmp_lg_u32 s66, 0\ns_cbranch_scc1 L_h_b3")
        A("v_lshrrev_b32 v3, 4, v0\nv_bfe_u32 v4, v0, 2, 2\nv_and_b32 v5, 3, v0")
        A("v_lshlrev_b32 v6, 13, v4\nv_lshl_add_u32 v6, v3, 10, v6\nv_lshl_add_u32 v6, v5, 4, v6")
        A("v_lshlrev_b32 v7, 8, v4")
        A("s_lshl_b32 s72, s68, 15\ns_lshr_b32 s4, s67, 2\ns_lshl_b32 s5, s4, 12\ns_add_u32 s72, s72, s5")
        A("s_lshl_b32 s73, s68, 10\ns_lshl_b32 s5, s4, 7\ns_add_u32 s73, s73, s5")
        A("s_lshl_b32 s5, s69, 8\ns_add_u32 s72, s72, s5\ns_lshl_b32 s5, s69, 5\ns_add_u32 s73, s73, s5")
        A("s_and_b32 s4, s67, 3\ns_lshl_b32 s5, s4, 6\ns_add_u32 s72, s72, s5")
        A("s_lshl_b32 s5, s4, 3\ns_add_u32 s73, s73, s5")
        A(f"s_add_u32 s72, s72, {PREC}\ns_add_u32 s73, s73, {HDR}")
        self.combine(128, 6, 7, 72, 73)
        A("s_mov_b32 s6, 1")
        A("s_waitcnt vmcnt(0)")
        A("s_atomic_add s6, s[58:59], 128")
        A(f"v_mov_b32 v3, {L_PROG}")
        A("L_prog:")
        A("s_sleep 8")
        A("ds_read_b32 v4, v3\ns_waitcnt lgkmcnt(0)\nv_readfirstlane_b32 s4, v4\ns_nop 0")
        A("s_cmp_lg_u32 s4, 0\ns_cbranch_scc1 L_grid1")
        self.budget("L_prog")
        A("L_grid:")
        A(f"s_sleep {self.sleep_grid}")
        A("L_grid1:")
        A("global_load_dword v12, v2, s[58:59] offset:128 sc1")
        A("s_waitcnt vmcnt(0)\nv_readfirstlane_b32 s4, v12\ns_nop 0")
        A("s_cmp_ge_u32 s4, 256\ns_cbranch_scc1 L_grid_ok")
        A("s_sub_u32 s82, s82, 63")
        A("s_cmp_gt_i32 s82, 0\ns_cbranch_scc1 L_grid\ns_endpgm")
        A("L_grid_ok:")
        self.stamp(4)
        nun = 4 * len(self.levels)
        starts, s = [], self.SR
        for n in self.levels:
            starts.append(s)
            s += n
        st64 = sum(v << (8 * k) for k, v in enumerate(starts))
        ln32 = sum(v << (4 * k) for k, v in enumerate(self.levels))
        assert len(self.levels) <= 8 and all(n < 16 for n in self.levels) and nun + 1 <= 48
        A(f"s_mov_b32 s70, {st64 & 0xffffffff:#x}\ns_mov_b32 s71, {st64 >> 32:#x}\ns_mov_b32 s72, {ln32:#x}")
        A(f"s_lshl_b32 s73, s63, 1\ns_add_u32 s73, s73, s64\ns_lshl_b32 s73, s73, 8\ns_add_u32 s73, s73, {CNT}")
        A("s_lshl_b32 s74, s64, 7\ns_add_u32 s74, s74, s63\ns_lshl_b32 s74, s74, 20")
        A(f"s_mov_b32 s75, {L_QUEUE}\nv_mov_b32 v3, {L_REQ}")
        A("L_cl:")
        A("ds_read_b32 v4, v3\ns_waitcnt lgkmcnt(0)\nv_readfirstlane_b32 s4, v4\ns_nop 0")
        A("s_cmp_gt_u32 s4, s75\ns_cbranch_scc1 L_claim")
        A(f"s_sleep {self.clsleep}")
        self.budget("L_cl")
        A("L_claim:")
        if nun:
            A("s_mov_b32 s76, 1\ns_atomic_add s76, s[60:61], s73 glc\ns_waitcnt lgkmcnt(0)")
        else:
            A("s_mov_b32 s76, 0")
        A("s_lshr_b32 s78, s76, 2\ns_and_b32 s79, s76, 3")
        A("s_lshl_b32 s4, s78, 3\ns_lshr_b64 s[4:5], s[70:71], s4\ns_and_b32 s4, s4, 0xff\ns_lshl_b32 s4, s4, 14")
        A("s_lshl_b32 s5, s78, 2\ns_lshr_b32 s5, s72, s5\ns_and_b32 s5, s5, 15\ns_or_b32 s4, s4, s5")
        A("s_mul_i32 s5, s79, 0x2000100\ns_add_u32 s4, s4, s5\ns_add_u32 s4, s4, s74")
        A(f"s_cmp_ge_u32 s76, {nun}\ns_cselect_b32 s4, 0x80, s4")
        A("v_mov_b32 v5, s75\nv_mov_b32 v6, s4")
        A("s_mov_b64 exec, 1\nds_write_b32 v5, v6\ns_mov_b64 exec, -1")
        A("s_add_u32 s75, s75, 4")
        A("s_cmp_lg_u32 s4, 0x80\ns_cbranch_scc1 L_cl")
        A("L_h_b3:")
        A("s_lshr_b32 s70, s66, 1\ns_xor_b32 s70, s70, 1\ns_and_b32 s71, s66, 1")
        A("s_cmp_eq_u32 s70, 1")
        self.srd_sel(8, 44, 54, 0x400000)
        self.srd(12, 56, 0x4000)
        A("v_lshrrev_b32 v4, 3, v0\nv_and_b32 v5, 7, v0\nv_lshlrev_b32 v4, 10, v4\nv_lshl_add_u32 v4, v5, 4, v4")
        for k in range(1, 4):
            A(f"v_xor_b32 v{4 + k}, {k << 5}, v4")
        A("s_lshl_b32 s72, s63, 17\ns_lshl_b32 s4, s71, 16\ns_add_u32 s72, s72, s4")
        A("s_lshl_b32 s4, s62, 7\ns_add_u32 s72, s72, s4")
        A(f"s_lshl_b32 s73, s70, 14\ns_add_u32 s73, s73, {L_ST}")
        A("s_lshl_b32 s4, s71, 13\ns_add_u32 s4, s4, s73\ns_mov_b32 m0, s4")
        A("v_lshrrev_b32 v3, 4, v0\nv_bfe_u32 v12, v0, 2, 2\nv_and_b32 v13, 3, v0")
        A("v_lshl_add_u32 v8, v12, 3, v3\nv_lshlrev_b32 v8, 7, v8\nv_lshl_add_u32 v8, v13, 3, v8")
        A("v_lshl_add_u32 v8, v12, 5, v8\nv_add_u32 v8, s73, v8")
        for nb in range(1, 4):
            A(f"v_xor_b32 v{8 + nb}, {nb << 5}, v8")
        A("v_lshlrev_b32 v14, 8, v13\nv_lshl_add_u32 v14, v12, 6, v14\nv_lshl_add_u32 v14, v3, 4, v14")
        A("v_lshlrev_b32 v15, 5, v13\nv_lshl_add_u32 v15, v3, 3, v15")
        A("s_lshl_b32 s74, s70, 18\ns_lshl_b32 s4, s63, 13\ns_add_u32 s74, s74, s4")
        A(f"s_lshl_b32 s4, s71, 12\ns_add_u32 s74, s74, s4\ns_add_u32 s74, s74, {PREC}")
        A("s_lshl_b32 s75, s70, 13\ns_lshl_b32 s4, s63, 8\ns_add_u32 s75, s75, s4")
        A(f"s_lshl_b32 s4, s71, 7\ns_add_u32 s75, s75, s4\ns_add_u32 s75, s75, {HDR}")
        self.y_voff(60, 61)
        A("s_lshl_b32 s76, s70, 19\ns_lshl_b32 s4, s62, 13\ns_add_u32 s76, s76, s4")
        A(f"s_add_u32 s78, s76, {YWS}")
        A("s_lshl_b32 s4, s71, 18\ns_add_u32 s76, s78, s4\ns_lshl_b32 s4, s63, 6\ns_add_u32 s76, s76, s4")
        A("s_lshr_b32 s4, s63, 2\ns_lshl_b32 s5, s4, 16\ns_add_u32 s78, s78, s5")
        A("s_lshl_b32 s79, s4, 11\ns_and_b32 s4, s63, 3\ns_lshl_b32 s5, s4, 11\ns_add_u32 s78, s78, s5")
        A("s_lshl_b32 s5, s4, 3\ns_add_u32 s79, s79, s5\ns_lshl_b32 s5, s70, 10\ns_add_u32 s79, s79, s5")
        A("s_lshl_b32 s5, s62, 7\ns_add_u32 s79, s79, s5")
        A("v_lshlrev_b32 v61, 4, v0")
        A("v_lshlrev_b32 v62, 5, v3\nv_lshl_add_u32 v62, v13, 1, v62")
        A(f"s_lshl_b32 s4, s70, 2\ns_add_u32 s4, s4, {L_WOC}\nv_mov_b32 v63, s4\nv_mov_b32 v59, 1")
        A("s_waitcnt lgkmcnt(0)")
        A("s_barrier")
        self.stamp(5)
        for i in range(8):
            A(f"buffer_load_dwordx4 v{4 + (i & 3)}, s[8:11], s72 offen {self.nt} lds")
            if i < 7:
                A("s_add_u32 m0, m0, 0x400\ns_add_u32 s72, s72, 0x2000")
        A("s_waitcnt vmcnt(0)")
        A("s_mov_b64 exec, 1\nds_add_u32 v63, v59\ns_mov_b64 exec, -1")
        A("L_wo_spin:")
        A("ds_read_b32 v59, v63\ns_waitcnt lgkmcnt(0)\nv_readfirstlane_b32 s4, v59\ns_nop 0")
        A("s_cmp_eq_u32 s4, 2\ns_cbranch_scc1 L_wo_ok")
        self.budget("L_wo_spin")
        A("L_wo_ok:")
        for ks in range(4):
            if ks >= 1:
                A("s_waitcnt lgkmcnt(7)")
            for nb in range(4):
                for hf in range(2):
                    r = 64 + 16 * ks + 4 * nb + 2 * hf
                    A(f"ds_read_b64_tr_b16 v[{r}:{r + 1}], v{8 + nb} offset:{ks * 4096 + hf * 512}")
        self.stamp(3)
        A("L_h1:")
        for ks in range(4):
            A(f"buffer_load_dwordx4 v[{16 + 4 * ks}:{19 + 4 * ks}], v14, s[24:27], s74 offen offset:{1024 * ks} sc1")
        A("buffer_load_dwordx2 v[32:33], v15, s[24:27], s75 offen sc1")
        if self.stamps:
            A("s_add_u32 s98, s98, 0x100")
        A("s_waitcnt vmcnt(0)")
        A("v_max3_u32 v34, v16, v17, v18\nv_max3_u32 v35, v19, v20, v21\nv_max3_u32 v36, v22, v23, v24")
        A("v_max3_u32 v37, v25, v26, v27\nv_max3_u32 v34, v34, v28, v29\nv_max3_u32 v35, v35, v30, v31")
        A("v_max3_u32 v36, v36, v32, v33\nv_max3_u32 v34, v34, v35, v37\nv_max_u32 v34, v34, v36")
        A("v_cmp_eq_u32 vcc, -1, v34\ns_cbranch_vccz L_h1_ok")
        self.budget("L_h1")
        A("L_h1_ok:")
        A("s_waitcnt lgkmcnt(0)")
        for ks in range(4):
            for nb in range(4):
                r = 64 + 16 * ks + 4 * nb
                c = "0" if ks == 0 else f"v[{40 + 4 * nb}:{43 + 4 * nb}]"
                A(f"v_mfma_f32_16x16x32_bf16 v[{40 + 4 * nb}:{43 + 4 * nb}], v[{16 + 4 * ks}:{19 + 4 * ks}], v[{r}:{r + 3}], {c}")
        q1 = "quad_perm:[1,0,3,2] row_mask:0xf bank_mask:0xf"
        q2 = "quad_perm:[2,3,0,1] row_mask:0xf bank_mask:0xf"
        A(f"v_max_f32_dpp v34, v32, v32 {q1}\ns_nop 1\nv_max_f32_dpp v35, v34, v34 {q2}")
        A("v_sub_f32 v32, v32, v35\nv_exp_f32 v32, v32\ns_nop 0\nv_mul_f32 v33, v33, v32\ns_nop 1")
        A(f"v_add_f32_dpp v34, v33, v33 {q1}\ns_nop 1\nv_add_f32_dpp v35, v34, v34 {q2}")
        A("v_rcp_f32 v35, v35\ns_nop 0\nv_mul_f32 v32, v32, v35\ns_nop 1")
        for s in range(4):
            for nb in range(4):
                op = "v_mul_f32_dpp" if s == 0 else "v_fmac_f32_dpp"
                A(f"{op} v{36 + nb}, v32, v{40 + 4 * nb + s} quad_perm:[{s},{s},{s},{s}] row_mask:0xf bank_mask:0xf")
        for nb in range(4):
            A(f"v_min_u32 v{36 + nb}, -2, v{36 + nb}")
        A("buffer_store_dwordx4 v[36:39], v60, s[24:27], s76 offen sc1")
        self.stamp(6)
        A("s_cmp_lg_u32 s71, 0\ns_cbranch_scc1 L_hfin")
        A("L_h2:")
        A("buffer_load_dwordx4 v[16:19], v61, s[24:27], s78 offen sc1")
        A("buffer_load_dwordx4 v[20:23], v61, s[24:27], s78 offen offset:1024 sc1")
        if self.stamps:
            A("s_add_u32 s98, s98, 0x10000")
        A("s_waitcnt vmcnt(0)")
        A("v_max3_u32 v24, v16, v17, v18\nv_max3_u32 v25, v19, v20, v21\nv_max3_u32 v24, v24, v22, v23")
        A("v_max_u32 v24, v24, v25")
        A("v_cmp_eq_u32 vcc, -1, v24\ns_cbranch_vccz L_h2_ok")
        self.budget("L_h2")
        A("L_h2_ok:")
        for r in range(4):
            A(f"v_add_f32 v{16 + r}, v{16 + r}, v{20 + r}")
        A("s_nop 1\nv_permlane32_swap_b32 v16, v18\nv_permlane32_swap_b32 v17, v19\ns_nop 0")
        A("v_add_f32 v16, v16, v18\nv_add_f32 v17, v17, v19")
        A("s_nop 1\nv_permlane16_swap_b32 v16, v17\ns_nop 0\nv_add_f32 v16, v16, v17\ns_nop 1")
        A("v_add_f32_dpp v17, v16, v16 row_ror:4 row_mask:0xf bank_mask:0xf\ns_nop 1")
        A("v_add_f32_dpp v16, v17, v17 row_ror:8 row_mask:0xf bank_mask:0xf")
        A("v_cvt_pk_bf16_f32 v16, v16, v16")
        A("s_mov_b32 exec_lo, 0x000f000f\ns_mov_b32 exec_hi, 0x000f000f")
        A("buffer_store_short v16, v62, s[12:15], s79 offen")
        if self.calib is not None:
            wg, k = self.calib
            A(f"s_cmp_lg_u32 s2, {wg}\ns_cbranch_scc1 L_cal_end\ns_cmp_lg_u32 s66, 0\ns_cbranch_scc1 L_cal_end")
            if k == 'end':
                A("s_memrealtime s[6:7]\ns_waitcnt lgkmcnt(0)\ns_sub_u32 s5, s6, s84")
            elif k is None:
                A("s_mov_b32 s5, 0")
            else:
                A(f"s_sub_u32 s5, s{84 + 2 * k}, s84")
            A("s_add_u32 s5, s5, 15000")
            A("L_cal:\ns_memrealtime s[6:7]\ns_waitcnt lgkmcnt(0)\ns_sub_u32 s6, s6, s84\ns_cmp_lt_u32 s6, s5\ns_cbranch_scc1 L_cal")
            A("L_cal_end:")
        if self.stamps:
            A("s_cmp_lg_u32 s66, 0\ns_cbranch_scc1 L_hfin")
            A("s_waitcnt vmcnt(0)")
            self.write_stamps(with_main=True)
            A("s_endpgm")
        A("L_hfin:")
        self.write_stamps()


if __name__ == "__main__":
    out = sys.argv[1]
    kw = eval("dict(" + (sys.argv[2] if len(sys.argv) > 2 else "") + ")")
    open(out, "w").write(G(**kw).gen())
```

```python
import sys, math, struct, re

NAME = "concat_heads__sliding_block_cached__mha_block_cached__decode"
REF = f"cdna_kernels/{NAME}.s.ref"

QWS, PREC, HDR, CNT, YWS, WSEND = 0x100000, 0x200000, 0x280000, 0x290000, 0x300000, 0x400000
STAMP = 0x10000
L_QOWN_F, L_FLC, L_REQ, L_WOC, L_PROG = 0, 4, 8, 12, 20
L_QA_F, L_QB_F, L_TAG, L_FLA, L_LAST = 24, 28, 32, 36, 40
L_QUEUE = 0x40
L_QOWN, L_QA, L_QB = 0x300, 0x400, 0x800
L_FL = 0x1000
L_ST = 0x4000
LDS_SIZE = 0xC000


def f2u(x):
    return struct.unpack("<I", struct.pack("<f", x))[0]


CSC = 128 ** -0.5 * math.log2(math.e)
BIG = 0x7FFFFFFF
OOB = 0x10000000


class G:
    def __init__(self, **kw):
        o = dict(stamps=False, static_rounds=40, levels=(8, 6, 4, 2, 2, 1, 1), LA=1, masks=(5, 6, 7, 5), nt="nt",
                 sleep_grid=64, codepf=True, steps=False, nocomp=False, clsleep=1, gridat=30, calib=None,
                 npoll=4, pollgap=16, thr=None, trigB=None, trigA=None, h1mode='all', h1wait=0, lds=LDS_SIZE, rot=None)
        assert set(kw) <= set(o), set(kw) - set(o)
        o.update(kw)
        self.__dict__.update(o)
        self.SR = self.static_rounds
        assert self.SR + sum(self.levels) == 64
        self.L = []
        self.tail = []
        self.uid = 0

    def A(self, s):
        for line in s.strip("\n").split("\n"):
            line = line.strip()
            if not line:
                continue
            self.L.append(line if line.endswith(":") else "    " + line)

    def lab(self, p):
        self.uid += 1
        return f"L_{p}_{self.uid}"

    def stamp(self, k):
        if self.stamps:
            self.A(f"s_memrealtime s[{84 + 2 * k}:{85 + 2 * k}]\ns_waitcnt lgkmcnt(0)")

    def write_stamps(self, with_main=False):
        if not self.stamps:
            return
        A = self.A
        A("s_mov_b64 exec, 1")
        A("s_lshl_b32 s4, s2, 8\ns_lshl_b32 s5, s3, 5\ns_add_u32 s4, s4, s5")
        A(f"s_add_u32 s4, s4, {STAMP}")
        A("v_mov_b32 v4, s4")
        for k in range(8):
            A(f"v_mov_b32 v{8 + k}, s{84 + 2 * k}")
        A("buffer_store_dwordx4 v[8:11], v4, s[24:27], 0 offen")
        A("buffer_store_dwordx4 v[12:15], v4, s[24:27], 0 offen offset:16")
        if with_main:
            A("s_memrealtime s[6:7]\ns_waitcnt lgkmcnt(0)")
            A("s_lshl_b32 s4, s2, 4\nv_mov_b32 v5, s4")
            A("v_mov_b32 v16, s84\nv_mov_b32 v17, s85\nv_mov_b32 v18, s6\nv_mov_b32 v19, s7")
            A("buffer_store_dwordx4 v[16:19], v5, s[24:27], 0 offen")

    def srd(self, d, lo, size):
        self.A(f"s_mov_b32 s{d}, s{lo}\ns_and_b32 s{d + 1}, s{lo + 1}, 0xffff\n"
               f"s_mov_b32 s{d + 2}, {size:#x}\ns_mov_b32 s{d + 3}, 0x20000")

    def srd_sel(self, d, loA, loB, size):
        self.A(f"s_cselect_b32 s{d}, s{loB}, s{loA}\ns_cselect_b32 s{d + 1}, s{loB + 1}, s{loA + 1}\n"
               f"s_and_b32 s{d + 1}, s{d + 1}, 0xffff\n"
               f"s_mov_b32 s{d + 2}, {size:#x}\ns_mov_b32 s{d + 3}, 0x20000")

    def budget(self, retry):
        self.A(f"s_sub_u32 s82, s82, 1\ns_cmp_lg_u32 s82, 0\ns_cbranch_scc1 {retry}\ns_endpgm")

    def lds_wait(self, addr, cmp_, val, va, vd, sleep=1, sd=4):
        sp, ok = self.lab("sp"), self.lab("ok")
        if addr is not None:
            self.A(f"v_mov_b32 v{va}, {addr}")
        self.A(f"{sp}:\nds_read_b32 v{vd}, v{va}\ns_waitcnt lgkmcnt(0)\nv_readfirstlane_b32 s{sd}, v{vd}\ns_nop 0")
        self.A(f"s_cmp_{cmp_}_u32 s{sd}, {val}\ns_cbranch_scc1 {ok}")
        if sleep:
            self.A(f"s_sleep {sleep}")
        self.budget(sp)
        self.A(f"{ok}:")

    def lds_set(self, addr, va, vd, op="ds_write_b32", val=1):
        self.A(f"v_mov_b32 v{va}, {addr}\nv_mov_b32 v{vd}, {val}")
        self.A(f"s_mov_b64 exec, 1\n{op} v{va}, v{vd}\ns_mov_b64 exec, -1")

    def tagdiff(self, d, tag, t, acc, first):
        A = self.A
        A(f"v_perm_b32 v{t}, v{d + 1}, v{d}, s30\nv_perm_b32 v{t + 1}, v{d + 3}, v{d + 2}, s31")
        A(f"v_or_b32 v{t}, v{t}, v{t + 1}")
        A(f"v_xor_b32 v{acc if first else t}, {tag}, v{t}")
        if not first:
            A(f"v_or_b32 v{acc}, v{acc}, v{t}")

    def qrow(self, d, vaddr, off):
        A = self.A
        for r in range(8):
            A(f"v_and_b32 v{d + r}, s29, v{d + r}")
        for r in range(4):
            A(f"v_add_f32 v{d + r}, v{d + r}, v{d + 4 + r}")
        A(f"s_nop 1\nv_permlane32_swap_b32 v{d}, v{d + 2}\nv_permlane32_swap_b32 v{d + 1}, v{d + 3}\ns_nop 0")
        A(f"v_add_f32 v{d}, v{d}, v{d + 2}\nv_add_f32 v{d + 1}, v{d + 1}, v{d + 3}")
        A(f"v_cvt_pk_bf16_f32 v{d}, v{d}, v{d + 1}")
        A(f"ds_write_b32 v{vaddr}, v{d} offset:{off}")

    def tile(self, X, Q, acc, m, R, l, bias, kwait, vwait, issueK=None):
        A = self.A
        D, S, T = 40, 56, 60
        if kwait is not None:
            A(f"s_waitcnt vmcnt({kwait})")
        for t in range(4):
            A(f"v_mfma_f32_16x16x32_bf16 v[{D + 4 * t}:{D + 4 * t + 3}], v[{X + 4 * t}:{X + 4 * t + 3}], v[{Q}:{Q + 3}], 0")
        if issueK:
            issueK()
            A("s_nop 1")
        else:
            A("s_nop 5")
        if self.nocomp and issueK:
            A(f"s_waitcnt vmcnt({vwait})")
            return
        for c in range(4):
            for t in range(4):
                dpp = f"quad_perm:[{c},{c},{c},{c}] row_mask:0xf bank_mask:0xf"
                if c == 0 and bias is None:
                    A(f"v_mov_b32_dpp v{S + t}, v{D + 4 * t} {dpp}")
                else:
                    A(f"v_add_f32_dpp v{S + t}, v{D + 4 * t + c}, v{bias if c == 0 else S + t} {dpp}")
        rs, back = self.lab("rs"), self.lab("bk")
        A(f"v_max3_f32 v{T}, v{S}, v{S + 1}, v{S + 2}")
        A(f"v_max_f32 v{T}, v{T}, v{S + 3}")
        A(f"v_cmp_gt_f32 vcc, v{T}, v{m}")
        A(f"s_cbranch_vccnz {rs}")
        A(f"{back}:")
        for t in range(4):
            A(f"v_fma_f32 v{S + t}, v{S + t}, s77, -v{R}")
        for t in range(4):
            A(f"v_exp_f32 v{S + t}, v{S + t}")
        A(f"v_add_f32 v{T}, v{S}, v{S + 1}")
        A(f"v_cvt_pk_bf16_f32 v{S}, v{S}, v{S}")
        A(f"v_add_f32 v{T + 1}, v{S + 2}, v{S + 3}")
        for t in range(1, 4):
            A(f"v_cvt_pk_bf16_f32 v{S + t}, v{S + t}, v{S + t}")
        for t in range(4):
            A(f"v_and_b32 v{D + 2 * t}, v{S + t}, v4")
            A(f"v_and_b32 v{D + 2 * t + 1}, v{S + t}, v5")
        A(f"v_add_f32 v{l}, v{l}, v{T}")
        A(f"v_add_f32 v{l}, v{l}, v{T + 1}")
        if vwait is not None:
            A(f"s_waitcnt vmcnt({vwait})")
        for t in range(4):
            V = X + 16 + 4 * t
            A(f"v_mfma_f32_16x16x16_bf16 v[{acc}:{acc + 3}], v[{V}:{V + 1}], v[{D + 2 * t}:{D + 2 * t + 1}], v[{acc}:{acc + 3}]")
            A(f"v_mfma_f32_16x16x16_bf16 v[{acc + 4}:{acc + 7}], v[{V + 2}:{V + 3}], v[{D + 2 * t}:{D + 2 * t + 1}], v[{acc + 4}:{acc + 7}]")
        o = [f"{rs}:",
             f"v_mov_b32 v{T + 1}, v{T}", "s_nop 1",
             f"v_permlane32_swap_b32 v{T + 1}, v{T}", "s_nop 0",
             f"v_max_f32 v{T}, v{T}, v{T + 1}",
             f"v_mov_b32 v{T + 1}, v{T}", "s_nop 1",
             f"v_permlane16_swap_b32 v{T + 1}, v{T}", "s_nop 0",
             f"v_max3_f32 v{m}, v{m}, v{T}, v{T + 1}",
             f"v_mul_f32 v{T}, s77, v{m}",
             f"v_sub_f32 v{T + 1}, v{R}, v{T}",
             f"v_exp_f32 v{T + 1}, v{T + 1}",
             f"v_mov_b32 v{R}, v{T}",
             f"v_mul_f32 v{l}, v{l}, v{T + 1}"]
        for i in range(8):
            o.append(f"v_mul_f32 v{acc + i}, v{acc + i}, v{T + 1}")
        o.append(f"s_branch {back}")
        self.tail.append("\n".join(o))

    def loads(self, dst, voff, srd, soff):
        for t in range(4):
            self.A(f"buffer_load_dwordx4 v[{dst + 4 * t}:{dst + 4 * t + 3}], v{voff}, s[{srd}:{srd + 3}], s{soff} offen offset:{1024 * t} {self.nt}")

    def flush_write(self, acc, R):
        A = self.A
        A(f"s_mul_i32 s4, s3, 0xc00\ns_add_u32 s4, s4, {L_FL}")
        A("v_lshlrev_b32 v60, 4, v0\nv_lshlrev_b32 v61, 3, v0")
        A("v_add_u32 v60, s4, v60\nv_add_u32 v61, s4, v61")
        A("s_nop 3")
        A(f"ds_write_b128 v60, v[{acc}:{acc + 3}]")
        A(f"ds_write_b128 v60, v[{acc + 4}:{acc + 7}] offset:1024")
        A(f"ds_write_b64 v61, v[{R}:{R + 1}] offset:2048")

    def combine(self, b, vrec, vhdr, srec, shdr):
        A = self.A
        a = lambda w: b + 12 * w
        t = b + 48
        A(f"v_lshlrev_b32 v{t}, 4, v0\nv_lshlrev_b32 v{t + 1}, 3, v0")
        for w in range(4):
            A(f"ds_read_b64 v[{a(w) + 8}:{a(w) + 9}], v{t + 1} offset:{L_FL + 0xc00 * w + 2048}")
        for w in range(4):
            A(f"ds_read_b128 v[{a(w)}:{a(w) + 3}], v{t} offset:{L_FL + 0xc00 * w}")
            A(f"ds_read_b128 v[{a(w) + 4}:{a(w) + 7}], v{t} offset:{L_FL + 0xc00 * w + 1024}")
        A("s_waitcnt lgkmcnt(8)")
        Rm, Ls = t + 2, t + 3
        A(f"v_max3_f32 v{Rm}, v{a(0) + 8}, v{a(1) + 8}, v{a(2) + 8}")
        A(f"v_max_f32 v{Rm}, v{Rm}, v{a(3) + 8}")
        for w in range(4):
            A(f"v_sub_f32 v{a(w) + 8}, v{a(w) + 8}, v{Rm}")
        for w in range(4):
            A(f"v_exp_f32 v{a(w) + 8}, v{a(w) + 8}")
        A(f"v_mul_f32 v{Ls}, v{a(0) + 8}, v{a(0) + 9}")
        for w in range(1, 4):
            A(f"v_fmac_f32 v{Ls}, v{a(w) + 8}, v{a(w) + 9}")
        A(f"v_mov_b32 v{t}, v{Ls}")
        A("s_waitcnt lgkmcnt(6)")
        for i in range(8):
            A(f"v_mul_f32 v{a(0) + i}, v{a(0) + 8}, v{a(0) + i}")
        A(f"v_permlane32_swap_b32 v{t}, v{Ls}")
        A("s_waitcnt lgkmcnt(4)")
        A(f"v_add_f32 v{Ls}, v{Ls}, v{t}")
        A(f"v_mov_b32 v{t}, v{Ls}")
        for i in range(8):
            A(f"v_fmac_f32 v{a(0) + i}, v{a(1) + 8}, v{a(1) + i}")
        A(f"v_permlane16_swap_b32 v{t}, v{Ls}")
        A("s_waitcnt lgkmcnt(2)")
        A(f"v_add_f32 v{Ls}, v{Ls}, v{t}")
        for i in range(8):
            A(f"v_fmac_f32 v{a(0) + i}, v{a(2) + 8}, v{a(2) + i}")
        A("s_waitcnt lgkmcnt(0)")
        for i in range(8):
            A(f"v_fmac_f32 v{a(0) + i}, v{a(3) + 8}, v{a(3) + i}")
        o = t + 4
        for k in range(4):
            A(f"v_cvt_pk_bf16_f32 v{o + k}, v{a(0) + 2 * k}, v{a(0) + 2 * k + 1}")
        for k in range(4):
            A(f"v_min_u32 v{o + k}, -2, v{o + k}")
        A(f"v_min_u32 v{Rm}, -2, v{Rm}\nv_min_u32 v{Ls}, -2, v{Ls}")
        A(f"buffer_store_dwordx4 v[{o}:{o + 3}], v{vrec}, s[24:27], s{srec} offen sc1")
        A("s_mov_b64 exec, 0x1111")
        A(f"buffer_store_dwordx2 v[{Rm}:{Ls}], v{vhdr}, s[24:27], s{shdr} offen sc1")
        A("s_mov_b64 exec, -1")

    def brec_addr(self, vrec, vhdr, srec, shdr):
        A = self.A
        A(f"v_lshrrev_b32 v{vrec}, 4, v0\nv_and_b32 v{vhdr}, 15, v0")
        A(f"v_lshlrev_b32 v{vrec}, 10, v{vrec}")
        A(f"v_lshl_add_u32 v{vrec}, v{vhdr}, 4, v{vrec}")
        A(f"v_lshlrev_b32 v{vhdr}, 1, v{vhdr}")
        A(f"s_lshl_b32 s{srec}, s63, 13\ns_lshl_b32 s4, s64, 12\ns_add_u32 s{srec}, s{srec}, s4")
        A(f"s_lshl_b32 s4, s65, 8\ns_add_u32 s{srec}, s{srec}, s4\ns_add_u32 s{srec}, s{srec}, {PREC + 0x40000}")
        A(f"s_lshl_b32 s{shdr}, s63, 8\ns_lshl_b32 s4, s64, 7\ns_add_u32 s{shdr}, s{shdr}, s4")
        A(f"s_lshl_b32 s4, s65, 5\ns_add_u32 s{shdr}, s{shdr}, s4\ns_add_u32 s{shdr}, s{shdr}, {HDR + 0x2000}")

    def y_voff(self, v, t):
        A = self.A
        A(f"v_lshrrev_b32 v{v}, 4, v0\nv_lshlrev_b32 v{v}, 16, v{v}")
        A(f"v_bfe_u32 v{t}, v0, 2, 2\nv_lshl_add_u32 v{v}, v{t}, 11, v{v}")
        A(f"v_and_b32 v{t}, 3, v0\nv_lshl_add_u32 v{v}, v{t}, 4, v{v}")

    def gen(self):
        A = self.A
        hdr = open(REF).read().split("\n")
        for line in hdr:
            if line.startswith("; @launch"):
                self.L.append(f"; @launch grid=(256,1,1) block=(512,1,1) lds={self.lds}")
                break
            self.L.append(line)
        self.L += ['.amdgcn_target "amdgcn-amd-amdhsa--gfx950"', ".text", f".globl {NAME}_kernel", ".p2align 8",
                   f".type {NAME}_kernel,@function", f"{NAME}_kernel:"]
        A("s_cmp_ge_u32 s2, 256\ns_cbranch_scc1 L_end")
        A("s_load_dwordx16 s[36:51], s[0:1], 0")
        A("s_load_dwordx8 s[52:59], s[0:1], 64")
        A("s_load_dwordx2 s[60:61], s[0:1], 96")
        A("s_memrealtime s[84:85]")
        A("v_lshrrev_b32 v1, 6, v0\nv_and_b32 v0, 63, v0")
        A("v_mov_b32 v2, 0")
        A("v_readfirstlane_b32 s3, v1")
        A("v_lshlrev_b32 v1, 2, v0")
        A("s_and_b32 s62, s2, 7\ns_lshr_b32 s63, s2, 3")
        tab = sum(mk << (4 * k) for k, mk in enumerate(self.masks))
        A(f"s_and_b32 s4, s63, 3\ns_lshl_b32 s4, s4, 2\ns_lshr_b32 s4, {tab:#x}, s4")
        A("s_and_b32 s4, s4, s62\ns_bcnt1_i32_b32 s4, s4\ns_and_b32 s64, s4, 1")
        A("s_and_b32 s65, s62, 3")
        A("s_lshr_b32 s67, s2, 5\ns_bfe_u32 s68, s2, 0x30002\ns_and_b32 s69, s2, 3")
        A(f"s_mov_b32 s77, {f2u(CSC):#x}")
        A("s_mov_b32 s82, 0x400000")
        A("s_cmp_lg_u32 s3, 0\ns_cbranch_scc1 L_noinit")
        A("ds_write_b32 v1, v2")
        A("L_noinit:")
        A("s_waitcnt lgkmcnt(0)")
        if self.stamps:
            for k in range(1, 8):
                A(f"s_mov_b32 s{84 + 2 * k}, 0")
        self.srd(24, 60, WSEND)
        A("s_cmp_ge_u32 s3, 4\ns_cbranch_scc1 L_helper")
        self.stream()
        A("L_helper:")
        self.helper()
        A("L_end:\ns_endpgm")
        for blk in self.tail:
            A(blk)
        A("L_code_end:")
        self.L += ['.section .rodata,"a"', ".p2align 6", f".amdhsa_kernel {NAME}_kernel",
                   "  .amdhsa_next_free_vgpr 256", "  .amdhsa_next_free_sgpr 102", "  .amdhsa_accum_offset 256",
                   "  .amdhsa_group_segment_fixed_size 0", "  .amdhsa_kernarg_size 104",
                   "  .amdhsa_user_sgpr_count 2", "  .amdhsa_user_sgpr_kernarg_segment_ptr 1",
                   "  .amdhsa_system_sgpr_workgroup_id_x 1", ".end_amdhsa_kernel"]
        return "\n".join(self.L) + "\n"

    def stream(self):
        A = self.A
        self.srd(8, 48, 0x10000000)
        self.srd(12, 50, 0x10000000)
        self.srd(16, 38, 0x4000000)
        self.srd(20, 40, 0x4000000)
        A("v_lshrrev_b32 v3, 4, v0\nv_bfe_u32 v4, v0, 2, 2\nv_and_b32 v5, 3, v0")
        A("v_lshlrev_b32 v1, 8, v4\nv_lshl_add_u32 v1, v3, 6, v1\nv_lshl_add_u32 v1, v5, 4, v1")
        A("v_lshlrev_b32 v2, 4, v0")
        A("s_lshl_b32 s78, s3, 12")
        A("s_lshl_b32 s4, s64, 2\ns_add_u32 s4, s4, s65\ns_lshl_b32 s4, s4, 5\ns_add_u32 s4, s4, s63")
        A("s_lshl_b32 s70, s4, 20\ns_add_u32 s70, s70, s78")
        if self.rot:
            mul, msk = self.rot
            A(f"s_mov_b32 s28, s70\ns_add_u32 s29, s70, {self.SR * 0x4000}")
            A(f"s_mul_i32 s4, s2, {mul}\ns_lshr_b32 s4, s4, 3\ns_and_b32 s4, s4, {msk}")
            A("s_lshl_b32 s4, s4, 14\ns_add_u32 s70, s70, s4")
        A("s_lshr_b32 s4, s2, 2\ns_lshl_b32 s4, s4, 20\ns_lshl_b32 s5, s69, 16\ns_add_u32 s79, s4, s5")
        A("s_add_u32 s79, s79, s78\ns_add_u32 s79, s79, 0xc0000")
        A("s_barrier")
        for sl in range(2):
            if self.thr is not None:
                A(f"s_waitcnt vmcnt({self.thr})")
            self.loads(64 + 32 * sl, 1, 8, 70)
            if self.thr is not None:
                A(f"s_waitcnt vmcnt({self.thr})")
            self.loads(80 + 32 * sl, 2, 12, 70)
            A("s_add_u32 s70, s70, 0x4000")
        for a in range(4):
            if self.thr is not None:
                A(f"s_waitcnt vmcnt({self.thr})")
            self.loads(128 + 32 * a, 1, 16, 79)
            if self.thr is not None:
                A(f"s_waitcnt vmcnt({self.thr})")
            self.loads(144 + 32 * a, 2, 20, 79)
            if a < 3:
                A("s_add_u32 s79, s79, 0x4000")
        A("v_mov_b32 v3, v4")
        A("v_and_b32 v6, 1, v5\nv_lshlrev_b32 v6, 4, v6\nv_mov_b32 v7, 0xffff\nv_lshlrev_b32 v6, v6, v7")
        A("v_cmp_le_u32 vcc, 2, v5\ns_nop 1")
        A("v_cndmask_b32 v5, 0, v6, vcc\nv_xor_b32 v4, v5, v6")
        A("v_mov_b32 v7, 0xff800000")
        for r in list(range(12, 24)) + list(range(28, 36)) + [27, 39]:
            A(f"v_mov_b32 v{r}, 0")
        A("v_mov_b32 v24, 0xff7fffff\nv_mov_b32 v36, 0xff7fffff")
        A("v_mul_f32 v26, s77, v24\nv_mul_f32 v38, s77, v36")
        A(f"s_mov_b32 s71, {self.SR - 2}")
        A("s_mov_b32 s72, s65\ns_mov_b32 s73, s65\ns_mov_b32 s74, s65")
        A(f"s_mov_b32 s75, {L_QUEUE}\ns_mov_b32 s76, 0\ns_mov_b32 s79, 0")
        self.brec_addr(25, 37, 80, 81)
        if self.steps:
            A("v_mov_b32 v62, 0\nv_mov_b32 v63, 0\ns_mov_b32 s83, 0")
        self.stamp(1)
        self.lds_wait(L_QOWN_F, "lg", 0, 60, 61)
        A(f"v_and_b32 v60, 0xff, v1\nds_read_b128 v[8:11], v60 offset:{L_QOWN}")
        A("s_waitcnt lgkmcnt(0)")
        self.stamp(2)
        A("L_loop:")
        for sl in range(2):
            X = 64 + 32 * sl
            A(f"v_cmp_ne_u32 vcc, s{73 + sl}, v3")
            A(f"s_cmp_le_u32 s71, {self.LA}\ns_cbranch_scc1 L_slow{sl}")
            A(f"L_cont{sl}:")
            A("v_cndmask_b32 v6, 0, v7, vcc")
            A(f"s_mov_b32 s{73 + sl}, s72")
            if self.steps:
                A("s_memrealtime s[6:7]")
            self.tile(X, 8, 16, 24, 26, 27, 6, 12, 12, issueK=lambda: self.loads(X, 1, 8, 70))
            if self.steps:
                A(f"s_waitcnt lgkmcnt(0)\ns_mov_b32 m0, s83\nv_writelane_b32 v{62 + sl}, s6, m0")
                if sl == 1:
                    A("s_add_u32 s83, s83, 1")
            A(f"s_cmp_eq_u32 s71, {BIG}\ns_cbranch_scc1 L_exit")
            self.loads(X + 16, 2, 12, 70)
            A("s_add_u32 s70, s70, 0x4000\ns_sub_u32 s71, s71, 1")
            if self.rot:
                A("s_cmp_eq_u32 s70, s29\ns_cselect_b32 s70, s28, s70")
            sp, got, dn, rq, la = f"L_spin{sl}", f"L_got{sl}", f"L_done{sl}", f"L_req{sl}", f"L_last{sl}"
            o = [f"L_slow{sl}:",
                 "s_cmp_lg_u32 s71, 0", f"s_cbranch_scc1 {rq}",
                 "s_cmp_eq_u32 s76, 2", f"s_cbranch_scc1 {la}",
                 "v_mov_b32 v60, s75",
                 f"{sp}:",
                 "ds_read_b32 v61, v60", "s_waitcnt lgkmcnt(0)",
                 "v_readfirstlane_b32 s4, v61",
                 "s_nop 0",
                 "s_cmp_lg_u32 s4, 0", f"s_cbranch_scc1 {got}",
                 "s_sub_u32 s82, s82, 1", "s_cmp_lg_u32 s82, 0", f"s_cbranch_scc1 {sp}", "s_endpgm",
                 f"{got}:",
                 "s_add_u32 s75, s75, 4",
                 "s_cmp_eq_u32 s4, 0x80", f"s_cbranch_scc1 {dn}",
                 f"ds_read_b128 v[8:11], v1 offset:{L_QB}",
                 "s_and_b32 s71, s4, 0x7f", "s_bfe_u32 s72, s4, 0x20008",
                 "s_and_b32 s70, s4, 0xffffc000", "s_add_u32 s70, s70, s78", "s_mov_b32 s76, 0",
                 "s_waitcnt lgkmcnt(0)",
                 f"s_cmp_le_u32 s71, {self.LA}", f"s_cbranch_scc0 L_cont{sl}",
                 f"{rq}:",
                 "s_cmp_lg_u32 s76, 0", f"s_cbranch_scc1 L_cont{sl}",
                 "s_mov_b32 s76, 1", "s_add_u32 s4, s75, 4",
                 f"v_mov_b32 v60, {L_REQ}", "v_mov_b32 v61, s4",
                 "s_mov_b64 exec, 1", "ds_max_u32 v60, v61", "s_mov_b64 exec, -1",
                 f"s_branch L_cont{sl}",
                 f"{dn}:",
                 f"s_mov_b32 s70, {OOB:#x}", "s_mov_b32 s71, 1", "s_mov_b32 s76, 2"]
            if self.stamps:
                o += ["s_memrealtime s[92:93]", "s_waitcnt lgkmcnt(0)"]
            o += ["s_barrier",
                  f"s_branch L_cont{sl}",
                  f"{la}:",
                  f"s_mov_b32 s71, {BIG:#x}"]
            if 'last' in (str(self.trigA) + str(self.trigB)):
                o += [f"v_mov_b32 v60, {L_LAST}", "v_mov_b32 v61, 1",
                      "s_mov_b64 exec, 1", "ds_add_u32 v60, v61", "s_mov_b64 exec, -1"]
            o += [f"s_branch L_cont{sl}"]
            self.tail.append("\n".join(o))
        A("s_cmp_ge_u32 s79, 5\ns_cbranch_scc1 L_loop")
        A("s_cmp_eq_u32 s79, 4\ns_cbranch_scc1 L_a4")
        A("s_cmp_eq_u32 s79, 1\ns_cbranch_scc1 L_a1")
        A("s_cmp_eq_u32 s79, 2\ns_cbranch_scc1 L_a2")
        A("s_cmp_eq_u32 s79, 3\ns_cbranch_scc1 L_a3")
        A(f"v_mov_b32 v60, {L_QA_F}")
        A("L_a_spin:")
        A(f"ds_read_b32 v61, v60\nds_read_b128 v[12:15], v1 offset:{L_QA}\ns_waitcnt lgkmcnt(0)")
        A("v_readfirstlane_b32 s4, v61\ns_nop 0")
        A("s_cmp_lg_u32 s4, 0\ns_cbranch_scc1 L_a0")
        assert self.SR - 4 > 14
        A("s_cmp_gt_u32 s71, 14\ns_cbranch_scc1 L_loop")
        self.budget("L_a_spin")
        for a in range(4):
            A(f"L_a{a}:")
            if a == 0:
                A("s_waitcnt vmcnt(16)")
            self.tile(128 + 32 * a, 12, 28, 36, 38, 39, None, None, None)
            A(f"s_mov_b32 s79, {a + 1}")
            if a < 3:
                A("s_branch L_loop")
        self.flush_write(28, 38)
        self.lds_set(L_FLA, 60, 61, op="ds_add_u32")
        self.stamp(3)
        A("s_branch L_loop")
        A("L_a4:")
        A(f"s_cmp_gt_u32 s71, {self.SR - self.gridat}\ns_cbranch_scc1 L_loop")
        self.lds_set(L_PROG, 60, 61)
        A("s_mov_b32 s79, 5\ns_branch L_loop")
        A("L_exit:")
        if self.steps:
            A(f"s_lshl_b32 s4, s2, 2\ns_add_u32 s4, s4, s3\ns_lshl_b32 s4, s4, 9\ns_add_u32 s4, s4, 0x20000")
            A("v_lshlrev_b32 v60, 3, v0\nbuffer_store_dwordx2 v[62:63], v60, s[24:27], s4 offen\ns_nop 2")
        self.flush_write(16, 26)
        A(f"v_mov_b32 v62, {L_FLC}\nv_mov_b32 v63, 1")
        A("s_mov_b64 exec, 1\nds_add_rtn_u32 v62, v62, v63\ns_mov_b64 exec, -1")
        A("s_waitcnt lgkmcnt(0)")
        A("v_readfirstlane_b32 s4, v62")
        self.stamp(5)
        A("s_nop 0\ns_cmp_lg_u32 s4, 3\ns_cbranch_scc1 L_sfin")
        self.combine(128, 25, 37, 80, 81)
        self.stamp(6)
        A("L_sfin:")
        self.write_stamps()
        A("s_endpgm")

    def helper(self):
        A = self.A
        A("s_setprio 3")
        A("s_sub_u32 s66, s3, 4")
        A("s_mov_b32 s29, 0xffffff00\ns_mov_b32 s30, 0x0c0c0400\ns_mov_b32 s31, 0x04000c0c")
        A("s_cmp_ge_u32 s66, 2\ns_cbranch_scc1 L_noprod")
        A("s_cmp_eq_u32 s66, 0\ns_cbranch_scc1 L_prio_b\ns_setprio 2\nL_prio_b:")
        A("s_cselect_b32 s12, s46, s36\ns_cselect_b32 s13, s47, s37")
        self.srd_sel(8, 42, 52, 0x400000)
        A("s_and_b32 s13, s13, 0xffff\ns_mov_b32 s14, 0x2000\ns_mov_b32 s15, 0x20000")
        A("v_lshrrev_b32 v3, 4, v0\nv_and_b32 v4, 7, v0")
        A("v_lshlrev_b32 v5, 10, v4\nv_lshl_add_u32 v5, v3, 4, v5")
        A("s_lshl_b32 s72, s65, 8")
        A("v_lshrrev_b32 v6, 3, v0\nv_lshlrev_b32 v6, 13, v6")
        A("v_and_b32 v7, 1, v3\nv_lshlrev_b32 v7, 1, v7\nv_xor_b32 v7, v7, v4")
        A("v_lshl_add_u32 v6, v7, 4, v6\nv_xor_b32 v7, 64, v6")
        A("s_lshr_b32 s70, s62, 2")
        A("s_lshl_b32 s73, s65, 20\ns_lshl_b32 s4, s63, 8\ns_add_u32 s73, s73, s4")
        A("s_lshl_b32 s4, s70, 7\ns_add_u32 s73, s73, s4")
        A(f"s_lshl_b32 s74, s66, 14\ns_add_u32 s74, s74, {L_ST}")
        A("s_mov_b32 m0, s74")
        for ks in range(4):
            A(f"buffer_load_dwordx4 v[{16 + 4 * ks}:{19 + 4 * ks}], v5, s[12:15], s72 offen offset:{64 * ks}")
        for i in range(16):
            A(f"buffer_load_dwordx4 v{6 + (i & 1)}, s[8:11], s73 offen {self.nt} lds")
            if i < 15:
                A("s_add_u32 m0, m0, 0x400\ns_add_u32 s73, s73, 0x10000")
        A("s_barrier")
        A("v_bfe_u32 v4, v0, 2, 2\nv_and_b32 v5, 3, v0")
        A("v_lshl_add_u32 v6, v3, 3, v4\nv_lshlrev_b32 v6, 7, v6\nv_lshl_add_u32 v6, v5, 3, v6")
        A("v_lshrrev_b32 v4, 1, v4\nv_and_b32 v5, 1, v3\nv_lshl_add_u32 v4, v5, 1, v4")
        A("v_lshl_add_u32 v6, v4, 5, v6\nv_add_u32 v8, s74, v6")
        for nb in range(1, 4):
            A(f"v_xor_b32 v{8 + nb}, {nb << 5}, v8")
        A("v_and_b32 v4, 7, v0\nv_lshlrev_b32 v4, 16, v4\nv_bfe_u32 v5, v0, 3, 1")
        A("v_lshl_add_u32 v4, v5, 6, v4\nv_lshl_add_u32 v4, v3, 4, v4")
        A("v_cmp_ne_u32 s[32:33], 0, v5")
        A("s_xor_b32 s72, s66, 1\ns_lshl_b32 s72, s72, 19\ns_lshl_b32 s4, s63, 11\ns_add_u32 s72, s72, s4")
        A("s_lshl_b32 s4, s65, 9\ns_add_u32 s72, s72, s4\ns_lshl_b32 s4, s70, 8\ns_add_u32 s72, s72, s4")
        A(f"s_add_u32 s72, s72, {QWS}")
        for ks in range(4):
            A(f"s_waitcnt vmcnt({12 - 4 * ks})")
            for nb in range(4):
                for hf in range(2):
                    r = 64 + 16 * ks + 4 * nb + 2 * hf
                    A(f"ds_read_b64_tr_b16 v[{r}:{r + 1}], v{8 + nb} offset:{ks * 4096 + hf * 512}")
            A("s_waitcnt lgkmcnt(0)")
            for nb in range(4):
                r = 64 + 16 * ks + 4 * nb
                c = "0" if ks == 0 else f"v[{32 + 4 * nb}:{35 + 4 * nb}]"
                A(f"v_mfma_f32_16x16x32_bf16 v[{32 + 4 * nb}:{35 + 4 * nb}], v[{r}:{r + 3}], v[{16 + 4 * ks}:{19 + 4 * ks}], {c}")
        self.stamp(4)
        self.lds_wait(L_TAG, "lg", 0, 6, 7, sleep=0, sd=28)
        for r in range(4):
            A(f"s_bfe_u32 s4, s28, {(8 << 16) | (8 * r):#x}\nv_mov_b32 v{12 + r}, s4")
        for u in range(2):
            for r in range(4):
                A(f"v_cndmask_b32 v{48 + 4 * u + r}, v{32 + 8 * u + r}, v{36 + 8 * u + r}, s[32:33]")
        for u in range(2):
            for r in range(4):
                A(f"v_and_or_b32 v{48 + 4 * u + r}, v{48 + 4 * u + r}, s29, v{12 + r}")
        A("buffer_store_dwordx4 v[48:51], v4, s[24:27], s72 offen sc1")
        A("buffer_store_dwordx4 v[52:55], v4, s[24:27], s72 offen offset:128 sc1")
        self.stamp(1)
        A("s_cmp_lg_u32 s66, 0\ns_cbranch_scc1 L_h_b3")
        A("v_lshlrev_b32 v5, 4, v0")
        A("v_and_b32 v6, 31, v0\nv_lshlrev_b32 v6, 3, v6\nv_lshrrev_b32 v7, 5, v0\nv_lshl_add_u32 v6, v7, 2, v6")
        A("s_lshl_b32 s72, s64, 2\ns_add_u32 s72, s72, s65\ns_lshl_b32 s72, s72, 16")
        A(f"s_lshl_b32 s4, s63, 11\ns_add_u32 s72, s72, s4\ns_add_u32 s72, s72, {QWS + 0x80000}")
        NP = self.npoll

        def issue(k):
            A(f"buffer_load_dwordx4 v[{64 + 8 * k}:{67 + 8 * k}], v5, s[24:27], s72 offen sc1")
            A(f"buffer_load_dwordx4 v[{68 + 8 * k}:{71 + 8 * k}], v5, s[24:27], s72 offen offset:1024 sc1")
        for k in range(NP):
            issue(k)
            if k < NP - 1:
                A(f"s_sleep {self.pollgap}")
        A("L_qp_loop:")
        for k in range(NP):
            if self.stamps:
                A("s_add_u32 s98, s98, 1")
            A(f"s_waitcnt vmcnt({2 * (NP - 1)})")
            self.tagdiff(64 + 8 * k, "s28", 20, 22, True)
            self.tagdiff(68 + 8 * k, "s28", 20, 22, False)
            A(f"v_cmp_ne_u32 vcc, 0, v22\ns_cbranch_vccz L_qp_ok{k}")
            issue(k)
        self.budget("L_qp_loop")
        for k in range(NP):
            A(f"L_qp_ok{k}:")
            self.qrow(64 + 8 * k, 6, L_QOWN)
            if k < NP - 1:
                A("s_branch L_qp_ok")
        A("L_qp_ok:")
        self.lds_set(L_QOWN_F, 20, 21)
        self.stamp(2)
        A("v_lshrrev_b32 v3, 4, v0\nv_bfe_u32 v4, v0, 2, 2\nv_and_b32 v5, 3, v0")
        A("v_lshlrev_b32 v6, 13, v4\nv_lshl_add_u32 v6, v3, 10, v6\nv_lshl_add_u32 v6, v5, 4, v6")
        A("v_lshlrev_b32 v7, 8, v4")
        A("s_lshl_b32 s72, s68, 15\ns_lshr_b32 s4, s67, 2\ns_lshl_b32 s5, s4, 12\ns_add_u32 s72, s72, s5")
        A("s_lshl_b32 s73, s68, 10\ns_lshl_b32 s5, s4, 7\ns_add_u32 s73, s73, s5")
        A("s_lshl_b32 s5, s69, 8\ns_add_u32 s72, s72, s5\ns_lshl_b32 s5, s69, 5\ns_add_u32 s73, s73, s5")
        A("s_and_b32 s4, s67, 3\ns_lshl_b32 s5, s4, 6\ns_add_u32 s72, s72, s5")
        A("s_lshl_b32 s5, s4, 3\ns_add_u32 s73, s73, s5")
        A(f"s_add_u32 s72, s72, {PREC}\ns_add_u32 s73, s73, {HDR}")
        self.lds_wait(L_FLA, "eq", 4, 20, 21, sleep=8)
        self.combine(128, 6, 7, 72, 73)
        self.lds_wait(L_QB_F, "lg", 0, 20, 21, sleep=8)
        A("s_mov_b32 s6, 1")
        A("s_waitcnt vmcnt(0)")
        A("s_atomic_add s6, s[58:59], 4")
        self.lds_wait(L_PROG, "lg", 0, 20, 21, sleep=8)
        A("s_branch L_grid1")
        A("L_grid:")
        A(f"s_sleep {self.sleep_grid}")
        A("L_grid1:")
        A("global_load_dword v12, v2, s[58:59] offset:4 sc1")
        A("s_waitcnt vmcnt(0)\nv_readfirstlane_b32 s4, v12\ns_nop 0")
        A("s_cmp_ge_u32 s4, 256\ns_cbranch_scc1 L_grid_ok")
        A("s_sub_u32 s82, s82, 63")
        A("s_cmp_gt_i32 s82, 0\ns_cbranch_scc1 L_grid\ns_endpgm")
        A("L_grid_ok:")
        nun = 4 * len(self.levels)
        starts, s = [], self.SR
        for n in self.levels:
            starts.append(s)
            s += n
        st64 = sum(v << (8 * k) for k, v in enumerate(starts))
        ln32 = sum(v << (4 * k) for k, v in enumerate(self.levels))
        assert len(self.levels) <= 8 and all(n < 16 for n in self.levels) and nun + 1 <= 48
        A(f"s_mov_b32 s70, {st64 & 0xffffffff:#x}\ns_mov_b32 s71, {st64 >> 32:#x}\ns_mov_b32 s72, {ln32:#x}")
        A(f"s_lshl_b32 s73, s63, 1\ns_add_u32 s73, s73, s64\ns_lshl_b32 s73, s73, 8\ns_add_u32 s73, s73, {CNT}")
        A("s_lshl_b32 s74, s64, 7\ns_add_u32 s74, s74, s63\ns_lshl_b32 s74, s74, 20")
        A(f"s_mov_b32 s75, {L_QUEUE}\nv_mov_b32 v3, {L_REQ}")
        A("L_cl:")
        self.lds_wait(None, "gt", "s75", 3, 4, sleep=self.clsleep)
        if nun:
            A("s_mov_b32 s76, 1\ns_atomic_add s76, s[60:61], s73 glc\ns_waitcnt lgkmcnt(0)")
        else:
            A("s_mov_b32 s76, 0")
        A("s_lshr_b32 s78, s76, 2\ns_and_b32 s79, s76, 3")
        A("s_lshl_b32 s4, s78, 3\ns_lshr_b64 s[4:5], s[70:71], s4\ns_and_b32 s4, s4, 0xff\ns_lshl_b32 s4, s4, 14")
        A("s_lshl_b32 s5, s78, 2\ns_lshr_b32 s5, s72, s5\ns_and_b32 s5, s5, 15\ns_or_b32 s4, s4, s5")
        A("s_mul_i32 s5, s79, 0x2000100\ns_add_u32 s4, s4, s5\ns_add_u32 s4, s4, s74")
        A(f"s_cmp_ge_u32 s76, {nun}\ns_cselect_b32 s4, 0x80, s4")
        A("v_mov_b32 v5, s75\nv_mov_b32 v6, s4")
        A("s_mov_b64 exec, 1\nds_write_b32 v5, v6\ns_mov_b64 exec, -1")
        A("s_add_u32 s75, s75, 4")
        A("s_cmp_lg_u32 s4, 0x80\ns_cbranch_scc1 L_cl")
        A("s_branch L_h_b3")
        A("L_noprod:")
        A("s_cmp_lg_u32 s66, 2\ns_cbranch_scc1 L_w7")
        A("s_mul_i32 s34, s84, 0x9e3779b1\ns_or_b32 s34, s34, 1")
        A("s_mov_b32 s32, s34\ns_mov_b32 s33, 0\ns_lshl_b32 s4, s63, 3")
        A("s_atomic_cmpswap s[32:33], s[58:59], s4 glc")
        A("s_barrier")
        A("s_waitcnt lgkmcnt(0)")
        A("s_cmp_eq_u32 s32, 0\ns_cselect_b32 s28, s34, s32")
        self.lds_set(L_TAG, 20, 21, val="s28")
        self.stamp(4)
        A(f"s_lshl_b32 s72, s67, 16\ns_lshl_b32 s4, s68, 13\ns_add_u32 s72, s72, s4\ns_add_u32 s72, s72, {QWS}")
        A(f"s_mov_b32 s73, 0x800\ns_mov_b32 s74, {L_QA}\ns_lshl_b32 s75, s68, 5")
        A("s_branch L_gather")
        A("L_w7:")
        A("s_barrier")
        if self.codepf:
            A("s_cmp_ge_u32 s63, 2\ns_cbranch_scc1 L_nopf")
            A("s_getpc_b64 s[4:5]")
            A("L_pc:")
            A(f"s_sub_u32 s4, s4, L_pc-{NAME}_kernel\ns_subb_u32 s5, s5, 0")
            A("s_lshl_b32 s6, s63, 13")
            A("v_lshlrev_b32 v3, 7, v0\nv_mov_b32 v5, s5\nv_add_u32 v3, s6, v3")
            A(f"v_min_u32 v3, L_code_end-{NAME}_kernel-4, v3")
            A("v_add_co_u32 v4, vcc, s4, v3\ns_nop 1\nv_addc_co_u32 v5, vcc, 0, v5, vcc")
            A("global_load_dword v10, v[4:5], off")
            A("L_nopf:")
        A(f"s_lshl_b32 s72, s64, 18\ns_lshl_b32 s4, s63, 11\ns_add_u32 s72, s72, s4\ns_add_u32 s72, s72, {QWS + 0x80000}")
        A(f"s_mov_b32 s73, 0x10000\ns_mov_b32 s74, {L_QB}\ns_lshl_b32 s75, s63, 3")
        A("L_gather:")
        A("v_lshlrev_b32 v5, 4, v0")
        A("v_and_b32 v6, 31, v0\nv_lshlrev_b32 v6, 3, v6\nv_lshrrev_b32 v7, 5, v0\nv_lshl_add_u32 v6, v7, 2, v6")
        A("v_add_u32 v6, s74, v6")
        A("s_sub_u32 s76, 3, s66\ns_lshl_b32 s76, s76, 3")
        for j in range(4):
            A(f"v_mov_b32 v{12 + j}, s75\ns_add_u32 s75, s75, s76")
        self.lds_wait(L_QOWN_F, "lg", 0, 20, 21, sleep=4)
        A("L_g_loop:")
        A("s_mov_b32 s4, s72")
        for j in range(4):
            A(f"global_load_dword v{16 + j}, v{12 + j}, s[58:59] sc1")
            A(f"buffer_load_dwordx4 v[{64 + 8 * j}:{67 + 8 * j}], v5, s[24:27], s4 offen sc1")
            A(f"buffer_load_dwordx4 v[{68 + 8 * j}:{71 + 8 * j}], v5, s[24:27], s4 offen offset:1024 sc1")
            A("s_add_u32 s4, s4, s73")
        if self.stamps:
            A("s_add_u32 s98, s98, 1")
        A("s_waitcnt vmcnt(0)")
        for j in range(4):
            self.tagdiff(64 + 8 * j, f"v{16 + j}", 20, 22, j == 0)
            self.tagdiff(68 + 8 * j, f"v{16 + j}", 20, 22, False)
        A("v_and_b32 v16, v16, v17\nv_and_b32 v18, v18, v19\nv_and_b32 v16, v16, v18")
        A("v_not_b32 v16, v16\nv_and_or_b32 v22, v16, 1, v22")
        A("v_cmp_ne_u32 vcc, 0, v22\ns_cbranch_vccz L_g_ok")
        self.budget("L_g_loop")
        A("L_g_ok:")
        for j in range(4):
            self.qrow(64 + 8 * j, 6, 256 * j)
        A("s_cmp_lg_u32 s66, 2\ns_cbranch_scc1 L_clear")
        self.lds_set(L_QA_F, 20, 21)
        self.stamp(2)
        A("s_branch L_h_b3")
        A("L_clear:")
        self.stamp(2)
        for r in range(20, 24):
            A(f"v_mov_b32 v{r}, -1")
        self.y_voff(24, 25)
        A(f"s_lshl_b32 s72, s62, 13\ns_lshl_b32 s4, s63, 6\ns_add_u32 s72, s72, s4\ns_add_u32 s72, s72, {YWS}")
        for k in range(4):
            A("buffer_store_dwordx4 v[20:23], v24, s[24:27], s72 offen sc1")
            A("s_add_u32 s72, s72, 0x40000")
        self.brec_addr(26, 27, 80, 81)
        A("buffer_store_dwordx4 v[20:23], v26, s[24:27], s80 offen sc1")
        A("s_mov_b64 exec, 0x1111")
        A("buffer_store_dwordx2 v[20:21], v27, s[24:27], s81 offen sc1")
        A("s_mov_b64 exec, -1")
        A("s_cmp_lg_u32 s65, 0\ns_cbranch_scc1 L_clear2")
        A(f"s_lshl_b32 s72, s63, 1\ns_add_u32 s72, s72, s64\ns_lshl_b32 s72, s72, 8\ns_add_u32 s72, s72, {CNT}")
        A("s_mov_b64 exec, 1")
        A("buffer_store_dword v2, v2, s[24:27], s72 offen sc1")
        A("s_mov_b64 exec, -1")
        A("L_clear2:")
        A("s_waitcnt vmcnt(0)")
        self.lds_set(L_QB_F, 28, 29)
        A("L_h_b3:")
        A("s_setprio 3")
        A("s_lshr_b32 s70, s66, 1\ns_xor_b32 s70, s70, 1\ns_and_b32 s71, s66, 1")
        A("s_cmp_eq_u32 s70, 1")
        self.srd_sel(8, 44, 54, 0x400000)
        self.srd(12, 56, 0x4000)
        A("v_lshrrev_b32 v4, 3, v0\nv_and_b32 v5, 7, v0\nv_lshlrev_b32 v4, 10, v4\nv_lshl_add_u32 v4, v5, 4, v4")
        for k in range(1, 4):
            A(f"v_xor_b32 v{4 + k}, {k << 5}, v4")
        A("s_lshl_b32 s72, s63, 17\ns_lshl_b32 s4, s71, 16\ns_add_u32 s72, s72, s4")
        A("s_lshl_b32 s4, s62, 7\ns_add_u32 s72, s72, s4")
        A(f"s_lshl_b32 s73, s70, 14\ns_add_u32 s73, s73, {L_ST}")
        A("s_lshl_b32 s4, s71, 13\ns_add_u32 s4, s4, s73\ns_mov_b32 m0, s4")
        A("v_lshrrev_b32 v3, 4, v0\nv_bfe_u32 v12, v0, 2, 2\nv_and_b32 v13, 3, v0")
        A("v_lshl_add_u32 v8, v12, 3, v3\nv_lshlrev_b32 v8, 7, v8\nv_lshl_add_u32 v8, v13, 3, v8")
        A("v_lshl_add_u32 v8, v12, 5, v8\nv_add_u32 v8, s73, v8")
        for nb in range(1, 4):
            A(f"v_xor_b32 v{8 + nb}, {nb << 5}, v8")
        A("v_lshlrev_b32 v14, 8, v13\nv_lshl_add_u32 v14, v12, 6, v14\nv_lshl_add_u32 v14, v3, 4, v14")
        A("v_lshlrev_b32 v15, 5, v13\nv_lshl_add_u32 v15, v3, 3, v15")
        A("s_lshl_b32 s74, s70, 18\ns_lshl_b32 s4, s63, 13\ns_add_u32 s74, s74, s4")
        A(f"s_lshl_b32 s4, s71, 12\ns_add_u32 s74, s74, s4\ns_add_u32 s74, s74, {PREC}")
        A("s_lshl_b32 s75, s70, 13\ns_lshl_b32 s4, s63, 8\ns_add_u32 s75, s75, s4")
        A(f"s_lshl_b32 s4, s71, 7\ns_add_u32 s75, s75, s4\ns_add_u32 s75, s75, {HDR}")
        self.y_voff(60, 61)
        A("s_lshl_b32 s76, s70, 19\ns_lshl_b32 s4, s62, 13\ns_add_u32 s76, s76, s4")
        A(f"s_add_u32 s78, s76, {YWS}")
        A("s_lshl_b32 s4, s71, 18\ns_add_u32 s76, s78, s4\ns_lshl_b32 s4, s63, 6\ns_add_u32 s76, s76, s4")
        A("s_lshr_b32 s4, s63, 2\ns_lshl_b32 s5, s4, 16\ns_add_u32 s78, s78, s5")
        A("s_lshl_b32 s79, s4, 11\ns_and_b32 s4, s63, 3\ns_lshl_b32 s5, s4, 11\ns_add_u32 s78, s78, s5")
        A("s_lshl_b32 s5, s4, 3\ns_add_u32 s79, s79, s5\ns_lshl_b32 s5, s70, 10\ns_add_u32 s79, s79, s5")
        A("s_lshl_b32 s5, s62, 7\ns_add_u32 s79, s79, s5")
        A("v_lshlrev_b32 v61, 4, v0")
        A("v_lshlrev_b32 v62, 5, v3\nv_lshl_add_u32 v62, v13, 1, v62")
        A(f"s_lshl_b32 s4, s70, 2\ns_add_u32 s4, s4, {L_WOC}\nv_mov_b32 v63, s4\nv_mov_b32 v59, 1")
        A("s_waitcnt lgkmcnt(0)")
        A("s_barrier")
        self.stamp(5)
        if self.trigA or self.trigB:
            adr = lambda t: {None: L_PROG, 'last': L_LAST, 'flush': L_FLC}[t[0] if t else None]
            thr = lambda t: t[1] if t else 0
            A(f"s_cmp_eq_u32 s70, 1\ns_cselect_b32 s4, {adr(self.trigB)}, {adr(self.trigA)}")
            A(f"s_cselect_b32 s5, {thr(self.trigB)}, {thr(self.trigA)}\nv_mov_b32 v58, s4")
            self.lds_wait(None, "ge", "s5", 58, 57, sleep=1)
        for i in range(8):
            A(f"buffer_load_dwordx4 v{4 + (i & 3)}, s[8:11], s72 offen {self.nt} lds")
            if i < 7:
                A("s_add_u32 m0, m0, 0x400\ns_add_u32 s72, s72, 0x2000")
        A("s_waitcnt vmcnt(0)")
        A("s_mov_b64 exec, 1\nds_add_u32 v63, v59\ns_mov_b64 exec, -1")
        A("L_wo_spin:")
        A("ds_read_b32 v59, v63\ns_waitcnt lgkmcnt(0)\nv_readfirstlane_b32 s4, v59\ns_nop 0")
        A("s_cmp_eq_u32 s4, 2\ns_cbranch_scc1 L_wo_ok")
        self.budget("L_wo_spin")
        A("L_wo_ok:")
        for ks in range(4):
            if ks >= 1:
                A("s_waitcnt lgkmcnt(7)")
            for nb in range(4):
                for hf in range(2):
                    r = 64 + 16 * ks + 4 * nb + 2 * hf
                    A(f"ds_read_b64_tr_b16 v[{r}:{r + 1}], v{8 + nb} offset:{ks * 4096 + hf * 512}")
        self.stamp(3)
        if self.h1wait:
            A("s_cmp_eq_u32 s70, 0\ns_cbranch_scc1 L_h1")
            self.lds_wait(L_FLC, "ge", self.h1wait, 58, 57, sleep=1)
        if self.h1mode == 'hdr':
            A("L_h0:")
            A("buffer_load_dwordx2 v[32:33], v15, s[24:27], s75 offen sc1")
            A("s_waitcnt vmcnt(0)\nv_max_u32 v34, v32, v33\nv_cmp_eq_u32 vcc, -1, v34\ns_cbranch_vccz L_h1")
            self.budget("L_h0")
        A("L_h1:")
        for ks in range(4):
            A(f"buffer_load_dwordx4 v[{16 + 4 * ks}:{19 + 4 * ks}], v14, s[24:27], s74 offen offset:{1024 * ks} sc1")
        A("buffer_load_dwordx2 v[32:33], v15, s[24:27], s75 offen sc1")
        if self.stamps:
            A("s_add_u32 s98, s98, 0x100")
        A("s_waitcnt vmcnt(0)")
        A("v_max3_u32 v34, v16, v17, v18\nv_max3_u32 v35, v19, v20, v21\nv_max3_u32 v36, v22, v23, v24")
        A("v_max3_u32 v37, v25, v26, v27\nv_max3_u32 v34, v34, v28, v29\nv_max3_u32 v35, v35, v30, v31")
        A("v_max3_u32 v36, v36, v32, v33\nv_max3_u32 v34, v34, v35, v37\nv_max_u32 v34, v34, v36")
        A("v_cmp_eq_u32 vcc, -1, v34\ns_cbranch_vccz L_h1_ok")
        self.budget("L_h1")
        A("L_h1_ok:")
        A("s_waitcnt lgkmcnt(0)")
        for ks in range(4):
            for nb in range(4):
                r = 64 + 16 * ks + 4 * nb
                c = "0" if ks == 0 else f"v[{40 + 4 * nb}:{43 + 4 * nb}]"
                A(f"v_mfma_f32_16x16x32_bf16 v[{40 + 4 * nb}:{43 + 4 * nb}], v[{16 + 4 * ks}:{19 + 4 * ks}], v[{r}:{r + 3}], {c}")
        q1 = "quad_perm:[1,0,3,2] row_mask:0xf bank_mask:0xf"
        q2 = "quad_perm:[2,3,0,1] row_mask:0xf bank_mask:0xf"
        A(f"v_max_f32_dpp v34, v32, v32 {q1}\ns_nop 1\nv_max_f32_dpp v35, v34, v34 {q2}")
        A("v_sub_f32 v32, v32, v35\nv_exp_f32 v32, v32\ns_nop 0\nv_mul_f32 v33, v33, v32\ns_nop 1")
        A(f"v_add_f32_dpp v34, v33, v33 {q1}\ns_nop 1\nv_add_f32_dpp v35, v34, v34 {q2}")
        A("v_rcp_f32 v35, v35\ns_nop 0\nv_mul_f32 v32, v32, v35\ns_nop 1")
        for s in range(4):
            for nb in range(4):
                op = "v_mul_f32_dpp" if s == 0 else "v_fmac_f32_dpp"
                A(f"{op} v{36 + nb}, v32, v{40 + 4 * nb + s} quad_perm:[{s},{s},{s},{s}] row_mask:0xf bank_mask:0xf")
        for nb in range(4):
            A(f"v_min_u32 v{36 + nb}, -2, v{36 + nb}")
        A("buffer_store_dwordx4 v[36:39], v60, s[24:27], s76 offen sc1")
        self.stamp(6)
        A("s_cmp_lg_u32 s71, 0\ns_cbranch_scc1 L_hfin")
        A("L_h2:")
        A("buffer_load_dwordx4 v[16:19], v61, s[24:27], s78 offen sc1")
        A("buffer_load_dwordx4 v[20:23], v61, s[24:27], s78 offen offset:1024 sc1")
        if self.stamps:
            A("s_add_u32 s98, s98, 0x10000")
        A("s_waitcnt vmcnt(0)")
        A("v_max3_u32 v24, v16, v17, v18\nv_max3_u32 v25, v19, v20, v21\nv_max3_u32 v24, v24, v22, v23")
        A("v_max_u32 v24, v24, v25")
        A("v_cmp_eq_u32 vcc, -1, v24\ns_cbranch_vccz L_h2_ok")
        self.budget("L_h2")
        A("L_h2_ok:")
        for r in range(4):
            A(f"v_add_f32 v{16 + r}, v{16 + r}, v{20 + r}")
        A("s_nop 1\nv_permlane32_swap_b32 v16, v18\nv_permlane32_swap_b32 v17, v19\ns_nop 0")
        A("v_add_f32 v16, v16, v18\nv_add_f32 v17, v17, v19")
        A("s_nop 1\nv_permlane16_swap_b32 v16, v17\ns_nop 0\nv_add_f32 v16, v16, v17\ns_nop 1")
        A("v_add_f32_dpp v17, v16, v16 row_ror:4 row_mask:0xf bank_mask:0xf\ns_nop 1")
        A("v_add_f32_dpp v16, v17, v17 row_ror:8 row_mask:0xf bank_mask:0xf")
        A("v_cvt_pk_bf16_f32 v16, v16, v16")
        A("s_mov_b32 exec_lo, 0x000f000f\ns_mov_b32 exec_hi, 0x000f000f")
        A("buffer_store_short v16, v62, s[12:15], s79 offen")
        if self.calib is not None:
            wg, k = self.calib
            A(f"s_cmp_lg_u32 s2, {wg}\ns_cbranch_scc1 L_cal_end\ns_cmp_lg_u32 s66, 0\ns_cbranch_scc1 L_cal_end")
            if k == 'end':
                A("s_memrealtime s[6:7]\ns_waitcnt lgkmcnt(0)\ns_sub_u32 s5, s6, s84")
            elif k is None:
                A("s_mov_b32 s5, 0")
            else:
                A(f"s_sub_u32 s5, s{84 + 2 * k}, s84")
            A("s_add_u32 s5, s5, 15000")
            A("L_cal:\ns_memrealtime s[6:7]\ns_waitcnt lgkmcnt(0)\ns_sub_u32 s6, s6, s84\ns_cmp_lt_u32 s6, s5\ns_cbranch_scc1 L_cal")
            A("L_cal_end:")
        if self.stamps:
            A("s_cmp_lg_u32 s66, 0\ns_cbranch_scc1 L_hfin")
            A("s_waitcnt vmcnt(0)")
            self.write_stamps(with_main=True)
            A("s_endpgm")
        A("L_hfin:")
        self.write_stamps()


if __name__ == "__main__":
    out = sys.argv[1]
    kw = eval("dict(" + (sys.argv[2] if len(sys.argv) > 2 else "") + ")")
    open(out, "w").write(G(**kw).gen())
```

```python
import sys, math, struct, re

NAME = "concat_heads__sliding_block_cached__mha_block_cached__decode"
REF = f"cdna_kernels/{NAME}.s.ref"

QWS, PREC, HDR, CNT, YWS, PWS, WSEND = 0x100000, 0x200000, 0x280000, 0x290000, 0x300000, 0x400000, 0x600000
STAMP = 0x10000
L_QOWN_F, L_FLC, L_REQ, L_WOC, L_PROG = 0, 4, 8, 12, 20
L_QA_F, L_CLR_F, L_TAG, L_FLA, L_LAST, L_PRDY, L_ZERO = 24, 28, 32, 36, 40, 44, 48
L_ML = 0x40
L_QUEUE = 0xF0
L_QOWN, L_QA = 0x400, 0x500
L_FL = 0x1000
L_ST = 0x4000
L_SC = L_ST
L_P = 0xC000
LDS_SIZE = 0x14000


def f2u(x):
    return struct.unpack("<I", struct.pack("<f", x))[0]


CSC = 128 ** -0.5 * math.log2(math.e)
BIG = 0x7FFFFFFF
OOB = 0x10000000


class G:
    def __init__(self, **kw):
        o = dict(stamps=False, SV=16, LA=2, mask=5, nt="nt", nmin=2, nmax=12, gm=4,
                 sleep_grid=64, codepf=True, steps=False, clsleep=1, gridat=11, calib=None,
                 npoll=4, pollgap=16, thr=6, trigB=None, trigA=None, h1wait=0, lds=LDS_SIZE,
                 xh=((0, 18), (3, 19)), amap=1, aorder=1, aforce=7, yclear=0, ppol='sc1', nopub=False, ypol='sc1', pclear=0, aclear=0, cpol='sc1')
        assert set(kw) <= set(o), set(kw) - set(o)
        o.update(kw)
        self.__dict__.update(o)
        self.NS = 64 - self.SV
        assert self.SV > 4 + self.LA and self.SV <= 32 and self.NS - 1 + 4 * self.nmax < 128 and self.LA >= 1
        assert self.aforce + 4 <= self.gridat <= 14
        self.L = []
        self.tail = []
        self.uid = 0

    def A(self, s):
        for line in s.strip("\n").split("\n"):
            line = line.strip()
            if not line:
                continue
            self.L.append(line if line.endswith(":") else "    " + line)

    def lab(self, p):
        self.uid += 1
        return f"L_{p}_{self.uid}"

    def stamp(self, k):
        if self.stamps:
            self.A(f"s_memrealtime s[{84 + 2 * k}:{85 + 2 * k}]\ns_waitcnt lgkmcnt(0)")

    def write_stamps(self, with_main=False):
        if not self.stamps:
            return
        A = self.A
        A("s_mov_b64 exec, 1")
        A("s_lshl_b32 s4, s2, 8\ns_lshl_b32 s5, s3, 5\ns_add_u32 s4, s4, s5")
        A(f"s_add_u32 s4, s4, {STAMP}")
        A("v_mov_b32 v4, s4")
        for k in range(8):
            A(f"v_mov_b32 v{8 + k}, s{84 + 2 * k}")
        A("buffer_store_dwordx4 v[8:11], v4, s[24:27], 0 offen")
        A("buffer_store_dwordx4 v[12:15], v4, s[24:27], 0 offen offset:16")
        if with_main:
            A("s_memrealtime s[6:7]\ns_waitcnt lgkmcnt(0)")
            A("s_lshl_b32 s4, s2, 4\nv_mov_b32 v5, s4")
            A("v_mov_b32 v16, s84\nv_mov_b32 v17, s85\nv_mov_b32 v18, s6\nv_mov_b32 v19, s7")
            A("buffer_store_dwordx4 v[16:19], v5, s[24:27], 0 offen")

    def srd(self, d, lo, size):
        self.A(f"s_mov_b32 s{d}, s{lo}\ns_and_b32 s{d + 1}, s{lo + 1}, 0xffff\n"
               f"s_mov_b32 s{d + 2}, {size:#x}\ns_mov_b32 s{d + 3}, 0x20000")

    def srd_sel(self, d, loA, loB, size):
        self.A(f"s_cselect_b32 s{d}, s{loB}, s{loA}\ns_cselect_b32 s{d + 1}, s{loB + 1}, s{loA + 1}\n"
               f"s_and_b32 s{d + 1}, s{d + 1}, 0xffff\n"
               f"s_mov_b32 s{d + 2}, {size:#x}\ns_mov_b32 s{d + 3}, 0x20000")

    def budget(self, retry):
        self.A(f"s_sub_u32 s82, s82, 1\ns_cmp_lg_u32 s82, 0\ns_cbranch_scc1 {retry}\ns_endpgm")

    def lds_wait(self, addr, cmp_, val, va, vd, sleep=1, sd=4):
        sp, ok = self.lab("sp"), self.lab("ok")
        if addr is not None:
            self.A(f"v_mov_b32 v{va}, {addr}")
        self.A(f"{sp}:\nds_read_b32 v{vd}, v{va}\ns_waitcnt lgkmcnt(0)\nv_readfirstlane_b32 s{sd}, v{vd}\ns_nop 0")
        self.A(f"s_cmp_{cmp_}_u32 s{sd}, {val}\ns_cbranch_scc1 {ok}")
        if sleep:
            self.A(f"s_sleep {sleep}")
        self.budget(sp)
        self.A(f"{ok}:")

    def lds_set(self, addr, va, vd, op="ds_write_b32", val=1):
        self.A(f"v_mov_b32 v{va}, {addr}\nv_mov_b32 v{vd}, {val}")
        self.A(f"s_mov_b64 exec, 1\n{op} v{va}, v{vd}\ns_mov_b64 exec, -1")

    def tagdiff(self, d, tag, t, acc, first):
        A = self.A
        A(f"v_perm_b32 v{t}, v{d + 1}, v{d}, s30\nv_perm_b32 v{t + 1}, v{d + 3}, v{d + 2}, s31")
        A(f"v_or_b32 v{t}, v{t}, v{t + 1}")
        A(f"v_xor_b32 v{acc if first else t}, {tag}, v{t}")
        if not first:
            A(f"v_or_b32 v{acc}, v{acc}, v{t}")

    def qrow(self, d, vaddr, off):
        A = self.A
        for r in range(8):
            A(f"v_and_b32 v{d + r}, s29, v{d + r}")
        for r in range(4):
            A(f"v_add_f32 v{d + r}, v{d + r}, v{d + 4 + r}")
        A(f"s_nop 1\nv_permlane32_swap_b32 v{d}, v{d + 2}\nv_permlane32_swap_b32 v{d + 1}, v{d + 3}\ns_nop 0")
        A(f"v_add_f32 v{d}, v{d}, v{d + 2}\nv_add_f32 v{d + 1}, v{d + 1}, v{d + 3}")
        A(f"v_cvt_pk_bf16_f32 v{d}, v{d}, v{d + 1}")
        A(f"ds_write_b32 v{vaddr}, v{d} offset:{off}")

    def tile(self, X, Q, acc, m, R, l, bias, kwait, vwait, issueK=None):
        A = self.A
        D, S, T = 40, 56, 60
        if kwait is not None:
            A(f"s_waitcnt vmcnt({kwait})")
        for t in range(4):
            A(f"v_mfma_f32_16x16x32_bf16 v[{D + 4 * t}:{D + 4 * t + 3}], v[{X + 4 * t}:{X + 4 * t + 3}], v[{Q}:{Q + 3}], 0")
        if issueK:
            issueK()
            A("s_nop 1")
        else:
            A("s_nop 5")
        for c in range(4):
            for t in range(4):
                dpp = f"quad_perm:[{c},{c},{c},{c}] row_mask:0xf bank_mask:0xf"
                if c == 0 and bias is None:
                    A(f"v_mov_b32_dpp v{S + t}, v{D + 4 * t} {dpp}")
                else:
                    A(f"v_add_f32_dpp v{S + t}, v{D + 4 * t + c}, v{bias if c == 0 else S + t} {dpp}")
        rs, back = self.lab("rs"), self.lab("bk")
        A(f"v_max3_f32 v{T}, v{S}, v{S + 1}, v{S + 2}")
        A(f"v_max_f32 v{T}, v{T}, v{S + 3}")
        A(f"v_cmp_gt_f32 vcc, v{T}, v{m}")
        A(f"s_cbranch_vccnz {rs}")
        A(f"{back}:")
        for t in range(4):
            A(f"v_fma_f32 v{S + t}, v{S + t}, s77, -v{R}")
        for t in range(4):
            A(f"v_exp_f32 v{S + t}, v{S + t}")
        A(f"v_add_f32 v{T}, v{S}, v{S + 1}")
        A(f"v_cvt_pk_bf16_f32 v{S}, v{S}, v{S}")
        A(f"v_add_f32 v{T + 1}, v{S + 2}, v{S + 3}")
        for t in range(1, 4):
            A(f"v_cvt_pk_bf16_f32 v{S + t}, v{S + t}, v{S + t}")
        for t in range(4):
            A(f"v_and_b32 v{D + 2 * t}, v{S + t}, v4")
            A(f"v_and_b32 v{D + 2 * t + 1}, v{S + t}, v5")
        A(f"v_add_f32 v{l}, v{l}, v{T}")
        A(f"v_add_f32 v{l}, v{l}, v{T + 1}")
        if vwait is not None:
            A(f"s_waitcnt vmcnt({vwait})")
        for t in range(4):
            V = X + 16 + 4 * t
            A(f"v_mfma_f32_16x16x16_bf16 v[{acc}:{acc + 3}], v[{V}:{V + 1}], v[{D + 2 * t}:{D + 2 * t + 1}], v[{acc}:{acc + 3}]")
            A(f"v_mfma_f32_16x16x16_bf16 v[{acc + 4}:{acc + 7}], v[{V + 2}:{V + 3}], v[{D + 2 * t}:{D + 2 * t + 1}], v[{acc + 4}:{acc + 7}]")
        o = [f"{rs}:",
             f"v_mov_b32 v{T + 1}, v{T}", "s_nop 1",
             f"v_permlane32_swap_b32 v{T + 1}, v{T}", "s_nop 0",
             f"v_max_f32 v{T}, v{T}, v{T + 1}",
             f"v_mov_b32 v{T + 1}, v{T}", "s_nop 1",
             f"v_permlane16_swap_b32 v{T + 1}, v{T}", "s_nop 0",
             f"v_max3_f32 v{m}, v{m}, v{T}, v{T + 1}",
             f"v_mul_f32 v{T}, s77, v{m}",
             f"v_sub_f32 v{T + 1}, v{R}, v{T}",
             f"v_exp_f32 v{T + 1}, v{T + 1}",
             f"v_mov_b32 v{R}, v{T}",
             f"v_mul_f32 v{l}, v{l}, v{T + 1}"]
        for i in range(8):
            o.append(f"v_mul_f32 v{acc + i}, v{acc + i}, v{T + 1}")
        o.append(f"s_branch {back}")
        self.tail.append("\n".join(o))

    def loads(self, dst, voff, srd, soff):
        for t in range(4):
            self.A(f"buffer_load_dwordx4 v[{dst + 4 * t}:{dst + 4 * t + 3}], v{voff}, s[{srd}:{srd + 3}], s{soff} offen offset:{1024 * t} {self.nt}")

    def flush_write(self, acc, R):
        A = self.A
        A(f"s_mul_i32 s4, s3, 0xc00\ns_add_u32 s4, s4, {L_FL}")
        A("v_lshlrev_b32 v60, 4, v0\nv_lshlrev_b32 v61, 3, v0")
        A("v_add_u32 v60, s4, v60\nv_add_u32 v61, s4, v61")
        A("s_nop 3")
        A(f"ds_write_b128 v60, v[{acc}:{acc + 3}]")
        A(f"ds_write_b128 v60, v[{acc + 4}:{acc + 7}] offset:1024")
        if R is not None:
            A(f"ds_write_b64 v61, v[{R}:{R + 1}] offset:2048")

    def combine(self, b, vrec, vhdr, srec, shdr):
        A = self.A
        a = lambda w: b + 12 * w
        t = b + 48
        A(f"v_lshlrev_b32 v{t}, 4, v0\nv_lshlrev_b32 v{t + 1}, 3, v0")
        for w in range(4):
            A(f"ds_read_b64 v[{a(w) + 8}:{a(w) + 9}], v{t + 1} offset:{L_FL + 0xc00 * w + 2048}")
        for w in range(4):
            A(f"ds_read_b128 v[{a(w)}:{a(w) + 3}], v{t} offset:{L_FL + 0xc00 * w}")
            A(f"ds_read_b128 v[{a(w) + 4}:{a(w) + 7}], v{t} offset:{L_FL + 0xc00 * w + 1024}")
        A("s_waitcnt lgkmcnt(8)")
        Rm, Ls = t + 2, t + 3
        A(f"v_max3_f32 v{Rm}, v{a(0) + 8}, v{a(1) + 8}, v{a(2) + 8}")
        A(f"v_max_f32 v{Rm}, v{Rm}, v{a(3) + 8}")
        for w in range(4):
            A(f"v_sub_f32 v{a(w) + 8}, v{a(w) + 8}, v{Rm}")
        for w in range(4):
            A(f"v_exp_f32 v{a(w) + 8}, v{a(w) + 8}")
        A(f"v_mul_f32 v{Ls}, v{a(0) + 8}, v{a(0) + 9}")
        for w in range(1, 4):
            A(f"v_fmac_f32 v{Ls}, v{a(w) + 8}, v{a(w) + 9}")
        A(f"v_mov_b32 v{t}, v{Ls}")
        A("s_waitcnt lgkmcnt(6)")
        for i in range(8):
            A(f"v_mul_f32 v{a(0) + i}, v{a(0) + 8}, v{a(0) + i}")
        A(f"v_permlane32_swap_b32 v{t}, v{Ls}")
        A("s_waitcnt lgkmcnt(4)")
        A(f"v_add_f32 v{Ls}, v{Ls}, v{t}")
        A(f"v_mov_b32 v{t}, v{Ls}")
        for i in range(8):
            A(f"v_fmac_f32 v{a(0) + i}, v{a(1) + 8}, v{a(1) + i}")
        A(f"v_permlane16_swap_b32 v{t}, v{Ls}")
        A("s_waitcnt lgkmcnt(2)")
        A(f"v_add_f32 v{Ls}, v{Ls}, v{t}")
        for i in range(8):
            A(f"v_fmac_f32 v{a(0) + i}, v{a(2) + 8}, v{a(2) + i}")
        A("s_waitcnt lgkmcnt(0)")
        for i in range(8):
            A(f"v_fmac_f32 v{a(0) + i}, v{a(3) + 8}, v{a(3) + i}")
        o = t + 4
        for k in range(4):
            A(f"v_cvt_pk_bf16_f32 v{o + k}, v{a(0) + 2 * k}, v{a(0) + 2 * k + 1}")
        for k in range(4):
            A(f"v_min_u32 v{o + k}, -2, v{o + k}")
        A(f"v_min_u32 v{Rm}, -2, v{Rm}\nv_min_u32 v{Ls}, -2, v{Ls}")
        A(f"buffer_store_dwordx4 v[{o}:{o + 3}], v{vrec}, s[24:27], s{srec} offen sc1")
        A("s_mov_b64 exec, 0x1111")
        A(f"buffer_store_dwordx2 v[{Rm}:{Ls}], v{vhdr}, s[24:27], s{shdr} offen sc1")
        A("s_mov_b64 exec, -1")

    def combine_sum(self, b, vrec, srec):
        A = self.A
        for w in range(4):
            A(f"ds_read_b128 v[{b + 8 * w}:{b + 8 * w + 3}], v2 offset:{L_FL + 0xc00 * w}")
            A(f"ds_read_b128 v[{b + 8 * w + 4}:{b + 8 * w + 7}], v2 offset:{L_FL + 0xc00 * w + 1024}")
        for w in range(1, 4):
            A(f"s_waitcnt lgkmcnt({6 - 2 * w})")
            for i in range(8):
                A(f"v_add_f32 v{b + i}, v{b + i}, v{b + 8 * w + i}")
        o = b + 32
        for k in range(4):
            A(f"v_cvt_pk_bf16_f32 v{o + k}, v{b + 2 * k}, v{b + 2 * k + 1}")
        for k in range(4):
            A(f"v_min_u32 v{o + k}, -2, v{o + k}")
        A(f"buffer_store_dwordx4 v[{o}:{o + 3}], v{vrec}, s[24:27], s{srec} offen sc1")

    def brec_addr(self, vrec, t, srec):
        A = self.A
        A(f"v_lshrrev_b32 v{vrec}, 4, v0\nv_and_b32 v{t}, 15, v0")
        A(f"v_lshlrev_b32 v{vrec}, 10, v{vrec}")
        A(f"v_lshl_add_u32 v{vrec}, v{t}, 4, v{vrec}")
        A(f"s_lshl_b32 s{srec}, s63, 13\ns_lshl_b32 s4, s64, 12\ns_add_u32 s{srec}, s{srec}, s4")
        A(f"s_lshl_b32 s4, s65, 8\ns_add_u32 s{srec}, s{srec}, s4\ns_add_u32 s{srec}, s{srec}, {PREC + 0x40000}")

    def xlane(self, op, v, t):
        A = self.A
        for ctl in ("quad_perm:[1,0,3,2]", "quad_perm:[2,3,0,1]", "row_ror:4", "row_ror:8"):
            A(f"s_nop 1\n{op}_dpp v{v}, v{v}, v{v} {ctl} row_mask:0xf bank_mask:0xf")
        for sw in ("v_permlane16_swap_b32", "v_permlane32_swap_b32"):
            A(f"v_mov_b32 v{t}, v{v}\ns_nop 1\n{sw} v{t}, v{v}\ns_nop 0\n{op} v{v}, v{v}, v{t}")

    def y_voff(self, v, t):
        A = self.A
        A(f"v_lshrrev_b32 v{v}, 4, v0\nv_lshlrev_b32 v{v}, 16, v{v}")
        A(f"v_bfe_u32 v{t}, v0, 2, 2\nv_lshl_add_u32 v{v}, v{t}, 11, v{v}")
        A(f"v_and_b32 v{t}, 3, v0\nv_lshl_add_u32 v{v}, v{t}, 4, v{v}")

    def gen(self):
        A = self.A
        hdr = open(REF).read().split("\n")
        for line in hdr:
            if line.startswith("; @launch"):
                self.L.append(f"; @launch grid=(256,1,1) block=(512,1,1) lds={self.lds}")
                break
            self.L.append(line)
        self.L += ['.amdgcn_target "amdgcn-amd-amdhsa--gfx950"', ".text", f".globl {NAME}_kernel", ".p2align 8",
                   f".type {NAME}_kernel,@function", f"{NAME}_kernel:"]
        A("s_cmp_ge_u32 s2, 256\ns_cbranch_scc1 L_end")
        A("s_load_dwordx16 s[36:51], s[0:1], 0")
        A("s_load_dwordx8 s[52:59], s[0:1], 64")
        A("s_load_dwordx2 s[60:61], s[0:1], 96")
        A("s_memrealtime s[84:85]")
        A("v_lshrrev_b32 v1, 6, v0\nv_and_b32 v0, 63, v0")
        A("v_mov_b32 v2, 0")
        A("v_readfirstlane_b32 s3, v1")
        A("v_lshlrev_b32 v1, 4, v0\nv_mov_b32 v4, 0\nv_mov_b32 v5, 0\nv_mov_b32 v6, 0\nv_mov_b32 v7, 0")
        A("s_and_b32 s62, s2, 7\ns_lshr_b32 s63, s2, 3")
        A(f"s_and_b32 s4, s62, {self.mask}\ns_bcnt1_i32_b32 s4, s4\ns_and_b32 s64, s4, 1")
        A("s_and_b32 s65, s62, 3")
        if self.amap == 0:
            A("s_lshr_b32 s67, s2, 5\ns_bfe_u32 s68, s2, 0x30002\ns_and_b32 s69, s2, 3")
        else:
            A("s_bfe_u32 s67, s63, 0x10003\ns_lshr_b32 s4, s62, 2\ns_lshl1_add_u32 s67, s4, s67")
            A("s_lshr_b32 s4, s63, 4\ns_lshl2_add_u32 s67, s4, s67")
            A("s_and_b32 s68, s63, 4\ns_or_b32 s68, s68, s65\ns_and_b32 s69, s63, 3")
        A(f"s_mov_b32 s77, {f2u(CSC):#x}")
        A("s_mov_b32 s82, 0x400000")
        A("s_cmp_lg_u32 s3, 0\ns_cbranch_scc1 L_noinit")
        A("ds_write_b128 v1, v[4:7]")
        A("L_noinit:")
        A("s_waitcnt lgkmcnt(0)")
        if self.stamps:
            for k in range(1, 8):
                A(f"s_mov_b32 s{84 + 2 * k}, 0")
        self.srd(24, 60, WSEND)
        A("s_cmp_ge_u32 s3, 4\ns_cbranch_scc1 L_helper")
        self.stream()
        A("L_helper:")
        self.helper()
        A("L_end:\ns_endpgm")
        for blk in self.tail:
            A(blk)
        A("L_code_end:")
        self.L += ['.section .rodata,"a"', ".p2align 6", f".amdhsa_kernel {NAME}_kernel",
                   "  .amdhsa_next_free_vgpr 256", "  .amdhsa_next_free_sgpr 102", "  .amdhsa_accum_offset 256",
                   "  .amdhsa_group_segment_fixed_size 0", "  .amdhsa_kernarg_size 104",
                   "  .amdhsa_user_sgpr_count 2", "  .amdhsa_user_sgpr_kernarg_segment_ptr 1",
                   "  .amdhsa_system_sgpr_workgroup_id_x 1", ".end_amdhsa_kernel"]
        return "\n".join(self.L) + "\n"

    def stream(self):
        A = self.A
        self.srd(8, 48, 0x10000000)
        self.srd(12, 50, 0x10000000)
        self.srd(16, 38, 0x4000000)
        self.srd(20, 40, 0x4000000)
        A("v_lshrrev_b32 v3, 4, v0\nv_bfe_u32 v4, v0, 2, 2\nv_and_b32 v5, 3, v0")
        A("v_lshlrev_b32 v1, 8, v4\nv_lshl_add_u32 v1, v3, 6, v1\nv_lshl_add_u32 v1, v5, 4, v1")
        A("v_lshlrev_b32 v2, 4, v0")
        A("s_lshl_b32 s78, s3, 12")
        A("s_lshl_b32 s4, s64, 2\ns_add_u32 s4, s4, s65\ns_lshl_b32 s4, s4, 5\ns_add_u32 s4, s4, s63")
        A("s_lshl_b32 s70, s4, 20\ns_add_u32 s70, s70, s78")
        A("s_mov_b32 s74, 0")
        for hb, ab in self.xh:
            A(f"s_bfe_u32 s4, s63, {0x10000 + hb:#x}\ns_lshl_b32 s4, s4, {ab}\ns_or_b32 s74, s74, s4")
        A("s_lshl3_add_u32 s4, s67, s68\ns_lshl_b32 s4, s4, 20\ns_lshl_b32 s5, s69, 16\ns_add_u32 s79, s4, s5")
        A("s_add_u32 s79, s79, s78\ns_add_u32 s79, s79, 0xc0000")
        A("s_barrier")

        def thr():
            if self.thr is not None:
                A(f"s_waitcnt vmcnt({self.thr})")
        for sl in range(4):
            A("s_xor_b32 s73, s70, s74")
            thr()
            self.loads(64 + 16 * sl, 1, 8, 73)
            A("s_add_u32 s70, s70, 0x4000")
        order = [(a, kv) for kv in range(2) for a in range(4)] if self.aorder else [(a, kv) for a in range(4) for kv in range(2)]
        for a, kv in order:
            A(f"s_add_u32 s73, s79, {0x4000 * a}")
            thr()
            self.loads(128 + 32 * a + 16 * kv, 1 + kv, 16 + 4 * kv, 73)
        A("v_lshlrev_b32 v6, 6, v5\nv_lshl_add_u32 v6, v3, 4, v6\nv_lshl_add_u32 v6, v4, 2, v6")
        A(f"s_add_u32 s4, s78, {L_SC}\nv_add_u32 v6, s4, v6")
        A("v_mov_b32 v3, v4")
        A("v_and_b32 v8, 1, v5\nv_lshlrev_b32 v8, 4, v8\nv_mov_b32 v7, 0xffff\nv_lshlrev_b32 v8, v8, v7")
        A("v_cmp_le_u32 vcc, 2, v5\ns_nop 1")
        A("v_cndmask_b32 v5, 0, v8, vcc\nv_xor_b32 v4, v5, v8")
        for r in list(range(12, 16)) + list(range(32, 40)) + [7, 9]:
            A(f"v_mov_b32 v{r}, 0")
        A("v_mov_b32 v10, 0xff7fffff\nv_mul_f32 v8, s77, v10")
        for c in range(4):
            A(f"s_mov_b32 s{28 + 2 * c}, {0x11111111 << c:#x}\ns_mov_b32 s{29 + 2 * c}, s{28 + 2 * c}")
        A(f"s_mov_b32 s72, 16\ns_mov_b32 s79, 0")
        self.brec_addr(11, 60, 80)
        if self.steps:
            A("v_mov_b32 v62, 0\nv_mov_b32 v63, 0\ns_mov_b32 s83, 0")
        self.stamp(1)
        self.lds_wait(L_QOWN_F, "lg", 0, 60, 61)
        A(f"v_and_b32 v60, 0xff, v1\nds_read_b128 v[40:43], v60 offset:{L_QOWN}")
        A("s_waitcnt lgkmcnt(0)")
        for t in range(4):
            A(f"v_cmp_eq_u32 vcc, {t}, v3\ns_nop 1")
            for r in range(4):
                A(f"v_cndmask_b32 v{16 + 4 * t + r}, 0, v{40 + r}, vcc")
        self.stamp(2)

        def step(sl):
            if self.steps and sl in (0, 2):
                A(f"s_memrealtime s[6:7]\ns_waitcnt lgkmcnt(0)\ns_mov_b32 m0, s83\nv_writelane_b32 v{62 + sl // 2}, s6, m0")
                if sl == 2:
                    A("s_add_u32 s83, s83, 1")
        A("L_k:")
        for sl in range(4):
            X = 64 + 16 * sl
            step(sl)
            A("s_waitcnt vmcnt(12)")
            for t in range(4):
                A(f"v_mfma_f32_16x16x32_bf16 v[40:43], v[{X + 4 * t}:{X + 4 * t + 3}], v[{16 + 4 * t}:{19 + 4 * t}], {'0' if t == 0 else 'v[40:43]'}")
            A("s_xor_b32 s73, s70, s74")
            self.loads(X, 1, 8, 73)
            A("s_add_u32 s70, s70, 0x4000\ns_nop 1")
            for c in range(4):
                dpp = f"quad_perm:[{c},{c},{c},{c}] row_mask:0xf bank_mask:0xf"
                A(f"v_mov_b32_dpp v{56 + c}, v{40 + c} {dpp}" if c < 2 else f"v_add_f32_dpp v{54 + c}, v{40 + c}, v{54 + c} {dpp}")
                if c == 1:
                    A("s_nop 0")
            A("v_add_f32 v56, v56, v57")
            A(f"v_cndmask_b32 v7, v7, v56, s[{28 + 2 * sl}:{29 + 2 * sl}]")
        A("ds_write_b32 v6, v7\nv_add_u32 v6, 0x100, v6")
        A("s_sub_u32 s72, s72, 1\ns_cmp_le_u32 s72, 1\ns_cbranch_scc1 L_kend")
        A("s_cmp_ge_u32 s79, 5\ns_cbranch_scc1 L_k")
        A("s_cmp_eq_u32 s79, 4\ns_cbranch_scc1 L_a4")
        A("s_cmp_eq_u32 s79, 1\ns_cbranch_scc1 L_a1")
        A("s_cmp_eq_u32 s79, 2\ns_cbranch_scc1 L_a2")
        A("s_cmp_eq_u32 s79, 3\ns_cbranch_scc1 L_a3")
        A(f"v_mov_b32 v60, {L_QA_F}")
        A("L_a_spin:")
        A(f"ds_read_b32 v61, v60\nds_read_b128 v[12:15], v1 offset:{L_QA}\ns_waitcnt lgkmcnt(0)")
        A("v_readfirstlane_b32 s4, v61\ns_nop 0")
        A("s_cmp_lg_u32 s4, 0\ns_cbranch_scc1 L_a0")
        A(f"s_cmp_gt_u32 s72, {16 - self.aforce}\ns_cbranch_scc1 L_k")
        self.budget("L_a_spin")
        for a in range(4):
            A(f"L_a{a}:")
            if a == 0:
                A("s_waitcnt vmcnt(16)")
            self.tile(128 + 32 * a, 12, 32, 10, 8, 9, None, None, None)
            A(f"s_mov_b32 s79, {a + 1}")
            if a < 3:
                A("s_branch L_k")
        self.flush_write(32, 8)
        self.lds_set(L_FLA, 60, 61, op="ds_add_u32")
        self.stamp(3)
        A("s_branch L_k")
        A("L_a4:")
        A(f"s_cmp_gt_u32 s72, {16 - self.gridat}\ns_cbranch_scc1 L_k")
        self.lds_set(L_PROG, 60, 61)
        A("s_mov_b32 s79, 5\ns_branch L_k")
        A("L_kend:")
        A("s_cmp_eq_u32 s72, 0\ns_cbranch_scc1 L_soft")
        A("s_mov_b32 s8, s12\ns_mov_b32 s9, s13\nv_mov_b32 v1, v2\ns_sub_u32 s70, s70, 0x100000\ns_branch L_k")
        A("L_soft:")
        A(f"s_add_u32 s4, s78, {L_SC}\nv_add_u32 v6, s4, v2")
        for k in range(4):
            A(f"ds_read_b128 v[{128 + 4 * k}:{131 + 4 * k}], v6 offset:{1024 * k}")
        A("v_mov_b32 v60, 0x0c0c0c0c")
        for t in range(4):
            A(f"s_mov_b32 s4, {((2 * t + 1) << 8 | 2 * t) * 0x10001:#x}")
            A(f"v_bfi_b32 v{16 + 2 * t}, v4, s4, v60\nv_bfi_b32 v{17 + 2 * t}, v5, s4, v60")
        for r in range(32, 40):
            A(f"v_mov_b32 v{r}, 0")
        A("v_lshrrev_b32 v30, 4, v0\nv_lshlrev_b32 v30, 3, v30")
        A(f"s_lshr_b32 s81, s78, 1\ns_lshl_b32 s5, s65, 13\ns_add_u32 s5, s5, s81\ns_add_u32 s5, s5, {L_P}")
        A(f"v_cmp_eq_u32 vcc, s65, v3\nv_add_u32 v60, s5, v30\nv_mov_b32 v31, {L_ZERO}")
        A("v_cndmask_b32 v24, v31, v60, vcc\nv_cndmask_b32 v29, 0, 32, vcc")
        for sl in range(1, 5):
            A(f"v_add_u32 v{24 + sl}, v{23 + sl}, v29")
        A("v_lshlrev_b32 v6, 3, v0\nv_add_u32 v6, s5, v6")
        A("v_mov_b32 v8, 0xff7fffff")
        for k in range(4):
            A(f"s_waitcnt lgkmcnt({3 - k})")
            A(f"v_max3_f32 v8, v8, v{128 + 4 * k}, v{129 + 4 * k}\nv_max3_f32 v8, v8, v{130 + 4 * k}, v{131 + 4 * k}")
        self.xlane("v_max_f32", 8, 60)
        A("v_mul_f32 v8, s77, v8")
        for r in range(128, 144):
            A(f"v_fma_f32 v{r}, v{r}, s77, -v8")
        for r in range(128, 144):
            A(f"v_exp_f32 v{r}, v{r}")
        for k in range(4):
            A(f"v_add_f32 v{56 + k}, v{128 + k}, v{132 + k}")
        for u in range(2):
            for k in range(4):
                A(f"v_add_f32 v{56 + k}, v{56 + k}, v{136 + 4 * u + k}")
        A("v_add_f32 v56, v56, v57\nv_add_f32 v58, v58, v59\nv_add_f32 v9, v56, v58")
        self.xlane("v_add_f32", 9, 60)
        A("v_max_u32 v9, 1, v9")
        A(f"s_lshl_b32 s4, s3, 3\nv_mov_b32 v60, s4\nv_mov_b32 v61, 0")
        A(f"s_mov_b64 exec, 1\nds_write_b64 v60, v[8:9] offset:{L_ML}\ns_mov_b64 exec, -1")
        A("L_ml:")
        A(f"ds_read_b128 v[40:43], v61 offset:{L_ML}\nds_read_b128 v[44:47], v61 offset:{L_ML + 16}\ns_waitcnt lgkmcnt(0)")
        A("v_min3_u32 v60, v41, v43, v45\nv_min_u32 v60, v60, v47\nv_cmp_eq_u32 vcc, 0, v60\ns_cbranch_vccz L_ml_ok")
        self.budget("L_ml")
        A("L_ml_ok:")
        A("v_max3_f32 v60, v40, v42, v44\nv_max_f32 v60, v60, v46")
        for r in (40, 42, 44, 46, 8):
            A(f"v_sub_f32 v{r}, v{r}, v60")
        for r in (40, 42, 44, 46, 8):
            A(f"v_exp_f32 v{r}, v{r}")
        A("v_mul_f32 v9, v40, v41\nv_fmac_f32 v9, v42, v43\nv_fmac_f32 v9, v44, v45\nv_fmac_f32 v9, v46, v47")
        A("v_rcp_f32 v9, v9\ns_nop 0\nv_mul_f32 v8, v8, v9")
        for r in range(128, 144):
            A(f"v_mul_f32 v{r}, v{r}, v8")
        for k in range(8):
            A(f"v_cvt_pk_bf16_f32 v{128 + k}, v{128 + 2 * k}, v{129 + 2 * k}")
        for k in range(4):
            A(f"ds_write_b64 v6, v[{128 + 2 * k}:{129 + 2 * k}] offset:{512 * k}")
        self.lds_set(L_PRDY, 60, 61, op="ds_add_u32")
        self.stamp(7)
        A(f"s_mov_b32 s71, {self.SV - 4}\ns_mov_b32 s75, {L_QUEUE}\ns_mov_b32 s76, 0")
        A(f"s_lshl1_add_u32 s79, s63, s64\ns_lshl_b32 s79, s79, 15\ns_add_u32 s79, s79, {PWS - L_P}")
        A("L_loop:")
        for sl in range(4):
            X = 64 + 16 * sl
            A(f"s_cmp_le_u32 s71, {self.LA}\ns_cbranch_scc1 L_slow{sl}")
            A(f"L_cont{sl}:")
            step(sl)
            A("s_waitcnt vmcnt(12)")
            A(f"ds_read_b64 v[56:57], v{24 + sl}")
            A(f"s_xor_b32 s73, s70, s74\nv_mov_b32 v{24 + sl}, v28\nv_add_u32 v28, v28, v29")
            A("s_waitcnt lgkmcnt(0)")
            for r in range(8):
                A(f"v_perm_b32 v{40 + r}, v57, v56, v{16 + r}")
            for t in range(4):
                V = X + 4 * t
                A(f"v_mfma_f32_16x16x16_bf16 v[32:35], v[{V}:{V + 1}], v[{40 + 2 * t}:{41 + 2 * t}], v[32:35]")
                A(f"v_mfma_f32_16x16x16_bf16 v[36:39], v[{V + 2}:{V + 3}], v[{40 + 2 * t}:{41 + 2 * t}], v[36:39]")
            A(f"s_cmp_eq_u32 s71, {BIG}\ns_cbranch_scc1 L_exit")
            self.loads(X, 2, 12, 73)
            A("s_add_u32 s70, s70, 0x4000\ns_sub_u32 s71, s71, 1")
            sp, got, dn, rq, la, own = (f"L_{n}{sl}" for n in ("spin", "got", "done", "req", "last", "own"))
            o = [f"L_slow{sl}:",
                 "s_cmp_lg_u32 s71, 0", f"s_cbranch_scc1 {rq}",
                 "s_cmp_eq_u32 s76, 2", f"s_cbranch_scc1 {la}",
                 "v_mov_b32 v60, s75",
                 f"{sp}:",
                 "ds_read_b32 v61, v60", "s_waitcnt lgkmcnt(0)",
                 "v_readfirstlane_b32 s4, v61",
                 "s_nop 0",
                 "s_cmp_lg_u32 s4, 0", f"s_cbranch_scc1 {got}",
                 "s_sub_u32 s82, s82, 1", "s_cmp_lg_u32 s82, 0", f"s_cbranch_scc1 {sp}", "s_endpgm",
                 f"{got}:",
                 "s_add_u32 s75, s75, 4",
                 "s_cmp_eq_u32 s4, 0x80", f"s_cbranch_scc1 {dn}",
                 "s_and_b32 s71, s4, 0x3f", "s_bfe_u32 s72, s4, 0x20008",
                 "s_and_b32 s70, s4, 0xffffc000", "s_add_u32 s70, s70, s78", "s_mov_b32 s76, 0",
                 "s_bfe_u32 s4, s4, 0x6000e", "s_lshl_b32 s4, s4, 5", "s_lshl_b32 s5, s72, 13",
                 "s_add_u32 s4, s4, s5", "s_add_u32 s4, s4, s81", f"s_add_u32 s4, s4, {L_P}",
                 "v_cmp_eq_u32 vcc, s72, v3", "v_add_u32 v60, s4, v30", "s_mov_b32 m0, s4",
                 "v_cndmask_b32 v28, v31, v60, vcc", "v_cndmask_b32 v29, 0, 32, vcc",
                 "s_cmp_eq_u32 s72, s65", f"s_cbranch_scc1 {own}",
                 "s_lshl_b32 s5, s71, 1", "s_bfm_b64 exec, s5, 0", "s_add_u32 s4, s4, s79",
                 "buffer_load_dwordx4 v2, s[24:27], s4 offen sc1 lds",
                 "s_mov_b64 exec, -1",
                 f"{own}:",
                 f"s_cmp_le_u32 s71, {self.LA}", f"s_cbranch_scc0 L_cont{sl}",
                 f"{rq}:",
                 "s_cmp_lg_u32 s76, 0", f"s_cbranch_scc1 L_cont{sl}",
                 "s_mov_b32 s76, 1", "s_add_u32 s4, s75, 4",
                 f"v_mov_b32 v60, {L_REQ}", "v_mov_b32 v61, s4",
                 "s_mov_b64 exec, 1", "ds_max_u32 v60, v61", "s_mov_b64 exec, -1",
                 f"s_branch L_cont{sl}",
                 f"{dn}:",
                 f"s_mov_b32 s70, {OOB:#x}", "s_mov_b32 s71, 3", "s_mov_b32 s76, 2"]
            if self.stamps:
                o += ["s_memrealtime s[92:93]", "s_waitcnt lgkmcnt(0)"]
            o += ["s_barrier",
                  f"s_branch L_cont{sl}",
                  f"{la}:",
                  f"s_mov_b32 s71, {BIG:#x}"]
            if 'last' in (str(self.trigA) + str(self.trigB)):
                o += [f"v_mov_b32 v60, {L_LAST}", "v_mov_b32 v61, 1",
                      "s_mov_b64 exec, 1", "ds_add_u32 v60, v61", "s_mov_b64 exec, -1"]
            o += [f"s_branch L_cont{sl}"]
            self.tail.append("\n".join(o))
        A("s_branch L_loop")
        A("L_exit:")
        if self.steps:
            A(f"s_lshl_b32 s4, s2, 2\ns_add_u32 s4, s4, s3\ns_lshl_b32 s4, s4, 9\ns_add_u32 s4, s4, 0x20000")
            A("v_lshlrev_b32 v60, 3, v0\nbuffer_store_dwordx2 v[62:63], v60, s[24:27], s4 offen\ns_nop 2")
        self.flush_write(32, None)
        A(f"v_mov_b32 v62, {L_FLC}\nv_mov_b32 v63, 1")
        A("s_mov_b64 exec, 1\nds_add_rtn_u32 v62, v62, v63\ns_mov_b64 exec, -1")
        A("s_waitcnt lgkmcnt(0)")
        A("v_readfirstlane_b32 s4, v62")
        self.stamp(5)
        A("s_nop 0\ns_cmp_lg_u32 s4, 3\ns_cbranch_scc1 L_sfin")
        self.combine_sum(128, 11, 80)
        self.stamp(6)
        A("L_sfin:")
        self.write_stamps()
        A("s_endpgm")

    def helper(self):
        A = self.A
        A("s_setprio 3")
        A("s_sub_u32 s66, s3, 4")
        A("s_mov_b32 s29, 0xffffff00\ns_mov_b32 s30, 0x0c0c0400\ns_mov_b32 s31, 0x04000c0c")
        A("s_cmp_ge_u32 s66, 2\ns_cbranch_scc1 L_noprod")
        A("s_cmp_eq_u32 s66, 0\ns_cbranch_scc1 L_prio_b\ns_setprio 2\nL_prio_b:")
        A("s_cselect_b32 s12, s46, s36\ns_cselect_b32 s13, s47, s37")
        self.srd_sel(8, 42, 52, 0x400000)
        A("s_and_b32 s13, s13, 0xffff\ns_mov_b32 s14, 0x2000\ns_mov_b32 s15, 0x20000")
        A("v_lshrrev_b32 v3, 4, v0\nv_and_b32 v4, 7, v0")
        A("v_lshlrev_b32 v5, 10, v4\nv_lshl_add_u32 v5, v3, 4, v5")
        A("s_lshl_b32 s72, s65, 8")
        A("v_lshrrev_b32 v6, 3, v0\nv_lshlrev_b32 v6, 13, v6")
        A("v_and_b32 v7, 1, v3\nv_lshlrev_b32 v7, 1, v7\nv_xor_b32 v7, v7, v4")
        A("v_lshl_add_u32 v6, v7, 4, v6\nv_xor_b32 v7, 64, v6")
        A("s_lshr_b32 s70, s62, 2")
        A("s_lshl_b32 s73, s65, 20\ns_lshl_b32 s4, s63, 8\ns_add_u32 s73, s73, s4")
        A("s_lshl_b32 s4, s70, 7\ns_add_u32 s73, s73, s4")
        A(f"s_lshl_b32 s74, s66, 14\ns_add_u32 s74, s74, {L_ST}")
        A("s_mov_b32 m0, s74")
        for ks in range(4):
            A(f"buffer_load_dwordx4 v[{16 + 4 * ks}:{19 + 4 * ks}], v5, s[12:15], s72 offen offset:{64 * ks}")
        for i in range(16):
            A(f"buffer_load_dwordx4 v{6 + (i & 1)}, s[8:11], s73 offen {self.nt} lds")
            if i < 15:
                A("s_add_u32 m0, m0, 0x400\ns_add_u32 s73, s73, 0x10000")
        A("s_barrier")
        A("v_bfe_u32 v4, v0, 2, 2\nv_and_b32 v5, 3, v0")
        A("v_lshl_add_u32 v6, v3, 3, v4\nv_lshlrev_b32 v6, 7, v6\nv_lshl_add_u32 v6, v5, 3, v6")
        A("v_lshrrev_b32 v4, 1, v4\nv_and_b32 v5, 1, v3\nv_lshl_add_u32 v4, v5, 1, v4")
        A("v_lshl_add_u32 v6, v4, 5, v6\nv_add_u32 v8, s74, v6")
        for nb in range(1, 4):
            A(f"v_xor_b32 v{8 + nb}, {nb << 5}, v8")
        A("v_and_b32 v4, 7, v0\nv_lshlrev_b32 v4, 16, v4\nv_bfe_u32 v5, v0, 3, 1")
        A("v_lshl_add_u32 v4, v5, 6, v4\nv_lshl_add_u32 v4, v3, 4, v4")
        A("v_cmp_ne_u32 s[32:33], 0, v5")
        A("s_xor_b32 s72, s66, 1\ns_lshl_b32 s72, s72, 19\ns_lshl_b32 s4, s63, 11\ns_add_u32 s72, s72, s4")
        A("s_lshl_b32 s4, s65, 9\ns_add_u32 s72, s72, s4\ns_lshl_b32 s4, s70, 8\ns_add_u32 s72, s72, s4")
        A(f"s_add_u32 s72, s72, {QWS}")
        for ks in range(4):
            A(f"s_waitcnt vmcnt({12 - 4 * ks})")
            for nb in range(4):
                for hf in range(2):
                    r = 64 + 16 * ks + 4 * nb + 2 * hf
                    A(f"ds_read_b64_tr_b16 v[{r}:{r + 1}], v{8 + nb} offset:{ks * 4096 + hf * 512}")
            A("s_waitcnt lgkmcnt(0)")
            for nb in range(4):
                r = 64 + 16 * ks + 4 * nb
                c = "0" if ks == 0 else f"v[{32 + 4 * nb}:{35 + 4 * nb}]"
                A(f"v_mfma_f32_16x16x32_bf16 v[{32 + 4 * nb}:{35 + 4 * nb}], v[{r}:{r + 3}], v[{16 + 4 * ks}:{19 + 4 * ks}], {c}")
        self.stamp(4)
        self.lds_wait(L_TAG, "lg", 0, 6, 7, sleep=0, sd=28)
        for r in range(4):
            A(f"s_bfe_u32 s4, s28, {(8 << 16) | (8 * r):#x}\nv_mov_b32 v{12 + r}, s4")
        for u in range(2):
            for r in range(4):
                A(f"v_cndmask_b32 v{48 + 4 * u + r}, v{32 + 8 * u + r}, v{36 + 8 * u + r}, s[32:33]")
        for u in range(2):
            for r in range(4):
                A(f"v_and_or_b32 v{48 + 4 * u + r}, v{48 + 4 * u + r}, s29, v{12 + r}")
        A("buffer_store_dwordx4 v[48:51], v4, s[24:27], s72 offen sc1")
        A("buffer_store_dwordx4 v[52:55], v4, s[24:27], s72 offen offset:128 sc1")
        self.stamp(1)
        A("s_cmp_lg_u32 s66, 0\ns_cbranch_scc1 L_h_b3")
        A("v_lshlrev_b32 v5, 4, v0")
        A("v_and_b32 v6, 31, v0\nv_lshlrev_b32 v6, 3, v6\nv_lshrrev_b32 v7, 5, v0\nv_lshl_add_u32 v6, v7, 2, v6")
        A("s_lshl_b32 s72, s64, 2\ns_add_u32 s72, s72, s65\ns_lshl_b32 s72, s72, 16")
        A(f"s_lshl_b32 s4, s63, 11\ns_add_u32 s72, s72, s4\ns_add_u32 s72, s72, {QWS + 0x80000}")
        NP = self.npoll

        def issue(k):
            A(f"buffer_load_dwordx4 v[{64 + 8 * k}:{67 + 8 * k}], v5, s[24:27], s72 offen sc1")
            A(f"buffer_load_dwordx4 v[{68 + 8 * k}:{71 + 8 * k}], v5, s[24:27], s72 offen offset:1024 sc1")
        for k in range(NP):
            issue(k)
            if k < NP - 1:
                A(f"s_sleep {self.pollgap}")
        A("L_qp_loop:")
        for k in range(NP):
            if self.stamps:
                A("s_add_u32 s98, s98, 1")
            A(f"s_waitcnt vmcnt({2 * (NP - 1)})")
            self.tagdiff(64 + 8 * k, "s28", 20, 22, True)
            self.tagdiff(68 + 8 * k, "s28", 20, 22, False)
            A(f"v_cmp_ne_u32 vcc, 0, v22\ns_cbranch_vccz L_qp_ok{k}")
            issue(k)
        self.budget("L_qp_loop")
        for k in range(NP):
            A(f"L_qp_ok{k}:")
            self.qrow(64 + 8 * k, 6, L_QOWN)
            if k < NP - 1:
                A("s_branch L_qp_ok")
        A("L_qp_ok:")
        self.lds_set(L_QOWN_F, 20, 21)
        self.stamp(2)
        A("v_lshrrev_b32 v3, 4, v0\nv_bfe_u32 v4, v0, 2, 2\nv_and_b32 v5, 3, v0")
        A("v_lshlrev_b32 v6, 13, v4\nv_lshl_add_u32 v6, v3, 10, v6\nv_lshl_add_u32 v6, v5, 4, v6")
        A("v_lshlrev_b32 v7, 8, v4")
        A("s_lshl_b32 s72, s68, 15\ns_lshr_b32 s4, s67, 2\ns_lshl_b32 s5, s4, 12\ns_add_u32 s72, s72, s5")
        A("s_lshl_b32 s73, s68, 10\ns_lshl_b32 s5, s4, 7\ns_add_u32 s73, s73, s5")
        A("s_lshl_b32 s5, s69, 8\ns_add_u32 s72, s72, s5\ns_lshl_b32 s5, s69, 5\ns_add_u32 s73, s73, s5")
        A("s_and_b32 s4, s67, 3\ns_lshl_b32 s5, s4, 6\ns_add_u32 s72, s72, s5")
        A("s_lshl_b32 s5, s4, 3\ns_add_u32 s73, s73, s5")
        A(f"s_add_u32 s72, s72, {PREC}\ns_add_u32 s73, s73, {HDR}")
        self.lds_wait(L_FLA, "eq", 4, 20, 21, sleep=8)
        self.combine(128, 6, 7, 72, 73)
        self.lds_wait(L_CLR_F, "lg", 0, 20, 21, sleep=8)
        A("s_mov_b32 s6, 1")
        A("s_waitcnt vmcnt(0)")
        A("s_atomic_add s6, s[58:59], 4")
        self.lds_wait(L_PROG, "lg", 0, 20, 21, sleep=8)
        A("s_branch L_grid1")
        A("L_grid:")
        A(f"s_sleep {self.sleep_grid}")
        A("L_grid1:")
        A("global_load_dword v12, v2, s[58:59] offset:4 sc1")
        A("s_waitcnt vmcnt(0)\nv_readfirstlane_b32 s4, v12\ns_nop 0")
        A("s_cmp_ge_u32 s4, 256\ns_cbranch_scc1 L_grid_ok")
        A("s_sub_u32 s82, s82, 63")
        A("s_cmp_gt_i32 s82, 0\ns_cbranch_scc1 L_grid\ns_endpgm")
        A("L_grid_ok:")
        NS = self.NS
        A(f"s_lshl1_add_u32 s73, s63, s64\ns_lshl_b32 s72, s73, 15\ns_lshl_b32 s73, s73, 8\ns_add_u32 s73, s73, {CNT}")
        A(f"s_lshl_b32 s4, s65, 13\ns_add_u32 s72, s72, s4\ns_add_u32 s72, s72, {PWS}\ns_add_u32 s4, s4, {L_P}")
        A("v_lshlrev_b32 v5, 4, v0\nv_add_u32 v6, s4, v5")
        self.lds_wait(L_PRDY, "eq", 4, 20, 21, sleep=8)
        for k in range(8):
            A(f"ds_read_b128 v[{64 + 4 * k}:{67 + 4 * k}], v6 offset:{1024 * k}")
        A("s_add_u32 s5, s72, 0x1000\ns_waitcnt lgkmcnt(0)")
        for half in (() if self.nopub else (1, 0)):
            if half == 0:
                if self.SV == 32:
                    break
                A(f"s_mov_b64 exec, -1\ns_lshl_b64 exec, exec, {2 * self.SV}")
            for w in range(4):
                k = 2 * w + half
                A(f"buffer_store_dwordx4 v[{64 + 4 * k}:{67 + 4 * k}], v5, s[24:27], s{72 if k < 4 else 5} offen offset:{1024 * (k & 3)} {self.ppol}")
        A("s_mov_b64 exec, -1")
        A("s_lshl_b32 s78, s65, 3\ns_lshl_b32 s70, 0x80, s78\ns_mov_b32 s76, s70")
        A("s_waitcnt vmcnt(0)")
        A("s_atomic_add s76, s[60:61], s73 glc")
        A("s_lshl_b32 s74, s64, 7\ns_add_u32 s74, s74, s63\ns_lshl_b32 s74, s74, 20")
        A(f"s_add_u32 s74, s74, {self.SV << 14}")
        A(f"s_mov_b32 s75, {L_QUEUE}\nv_mov_b32 v3, {L_REQ}")
        A("s_waitcnt lgkmcnt(0)\ns_add_u32 s76, s76, s70")
        A("L_cl:")
        A("s_mov_b32 s70, 0\ns_mov_b32 s71, 0")
        for j in range(4):
            A(f"s_bfe_u32 s4, s76, {0x70000 + 8 * j:#x}\ns_min_u32 s4, s4, {NS}\ns_sub_u32 s4, {NS}, s4\ns_add_u32 s70, s70, s4")
            A(f"s_bitcmp1_b32 s76, {8 * j + 7}\ns_cselect_b32 s4, s4, 0")
            A(f"s_cmp_eq_u32 s65, {j}\ns_cselect_b32 s5, 0x104, 4\ns_mul_i32 s4, s4, s5\ns_or_b32 s4, s4, {j}")
            A("s_max_u32 s71, s71, s4")
        A("s_mov_b32 s4, 0x80\ns_cmp_eq_u32 s70, 0\ns_cbranch_scc1 L_post")
        A(f"s_mul_i32 s70, s70, {self.gm}\ns_lshr_b32 s70, s70, 5\ns_max_u32 s70, s70, {self.nmin}\ns_min_u32 s70, s70, {self.nmax}")
        A("s_bfe_u32 s4, s71, 0x60002\ns_min_u32 s70, s70, s4")
        A("s_and_b32 s79, s71, 3\ns_lshl_b32 s78, s79, 3\ns_lshl_b32 s71, s70, s78")
        self.lds_wait(None, "gt", "s75", 3, 4, sleep=self.clsleep)
        A("s_mov_b32 s76, s71\ns_cmp_lg_u32 s70, 0\ns_cbranch_scc1 L_cl1\ns_sleep 32")
        A("L_cl1:")
        A("s_atomic_add s76, s[60:61], s73 glc")
        if self.stamps:
            A("s_add_u32 s98, s98, 0x1000000")
        A("s_mul_i32 s5, s79, 0x2000100\ns_add_u32 s5, s5, s74")
        A("s_waitcnt lgkmcnt(0)")
        A(f"s_lshr_b32 s4, s76, s78\ns_and_b32 s4, s4, 0x7f\ns_add_u32 s76, s76, s71\ns_min_u32 s4, s4, {NS}")
        A(f"s_sub_u32 s6, {NS}, s4\ns_min_u32 s70, s70, s6\ns_lshl_b32 s4, s4, 14\ns_add_u32 s4, s4, s5\ns_add_u32 s4, s4, s70")
        A("s_cmp_lg_u32 s70, 0\ns_cbranch_scc1 L_post")
        A("s_sub_u32 s82, s82, 15\ns_cmp_gt_i32 s82, 0\ns_cbranch_scc1 L_cl\ns_endpgm")
        A("L_post:")
        A("v_mov_b32 v5, s75\nv_mov_b32 v6, s4")
        A("s_mov_b64 exec, 1\nds_write_b32 v5, v6\ns_mov_b64 exec, -1")
        A("s_add_u32 s75, s75, 4")
        A("s_cmp_lg_u32 s4, 0x80\ns_cbranch_scc1 L_cl")
        A("s_branch L_h_b3")
        A("L_noprod:")
        A("s_cmp_lg_u32 s66, 2\ns_cbranch_scc1 L_w7")
        A("s_mul_i32 s34, s84, 0x9e3779b1\ns_or_b32 s34, s34, 1")
        A("s_mov_b32 s32, s34\ns_mov_b32 s33, 0\ns_lshl_b32 s4, s63, 3")
        A("s_atomic_cmpswap s[32:33], s[58:59], s4 glc")
        A("s_barrier")
        A("s_waitcnt lgkmcnt(0)")
        A("s_cmp_eq_u32 s32, 0\ns_cselect_b32 s28, s34, s32")
        self.lds_set(L_TAG, 20, 21, val="s28")
        self.stamp(4)
        A(f"s_lshl_b32 s72, s67, 16\ns_lshl_b32 s4, s68, 13\ns_add_u32 s72, s72, s4\ns_add_u32 s72, s72, {QWS}")
        A("s_lshl_b32 s75, s68, 5")
        A("s_branch L_gather")
        A("L_w7:")
        A("s_barrier")
        if self.codepf:
            A("s_cmp_ge_u32 s63, 2\ns_cbranch_scc1 L_nopf")
            A("s_getpc_b64 s[4:5]")
            A("L_pc:")
            A(f"s_sub_u32 s4, s4, L_pc-{NAME}_kernel\ns_subb_u32 s5, s5, 0")
            A("s_lshl_b32 s6, s63, 13")
            A("v_lshlrev_b32 v3, 7, v0\nv_mov_b32 v5, s5\nv_add_u32 v3, s6, v3")
            A(f"v_min_u32 v3, L_code_end-{NAME}_kernel-4, v3")
            A("v_add_co_u32 v4, vcc, s4, v3\ns_nop 1\nv_addc_co_u32 v5, vcc, 0, v5, vcc")
            A("global_load_dword v10, v[4:5], off")
            A("L_nopf:")
        self.lds_wait(L_QOWN_F, "lg", 0, 20, 21, sleep=4)
        self.lds_wait(L_TAG, "lg", 0, 6, 7, sleep=0, sd=28)
        A("s_branch L_clear")
        A("L_gather:")
        A("v_lshlrev_b32 v5, 4, v0")
        A("v_and_b32 v6, 31, v0\nv_lshlrev_b32 v6, 3, v6\nv_lshrrev_b32 v7, 5, v0\nv_lshl_add_u32 v6, v7, 2, v6")
        for j in range(4):
            A(f"v_mov_b32 v{12 + j}, s75\ns_add_u32 s75, s75, 8")
        self.lds_wait(L_QOWN_F, "lg", 0, 20, 21, sleep=4)
        A("L_g_loop:")
        A("s_mov_b32 s4, s72")
        for j in range(4):
            A(f"global_load_dword v{16 + j}, v{12 + j}, s[58:59] sc1")
            A(f"buffer_load_dwordx4 v[{64 + 8 * j}:{67 + 8 * j}], v5, s[24:27], s4 offen sc1")
            A(f"buffer_load_dwordx4 v[{68 + 8 * j}:{71 + 8 * j}], v5, s[24:27], s4 offen offset:1024 sc1")
            A("s_add_u32 s4, s4, 0x800")
        if self.stamps:
            A("s_add_u32 s98, s98, 1")
        A("s_waitcnt vmcnt(0)")
        for j in range(4):
            self.tagdiff(64 + 8 * j, f"v{16 + j}", 20, 22, j == 0)
            self.tagdiff(68 + 8 * j, f"v{16 + j}", 20, 22, False)
        A("v_and_b32 v16, v16, v17\nv_and_b32 v18, v18, v19\nv_and_b32 v16, v16, v18")
        A("v_not_b32 v16, v16\nv_and_or_b32 v22, v16, 1, v22")
        A("v_cmp_ne_u32 vcc, 0, v22\ns_cbranch_vccz L_g_ok")
        self.budget("L_g_loop")
        A("L_g_ok:")
        for j in range(4):
            self.qrow(64 + 8 * j, 6, L_QA + 256 * j)
        self.lds_set(L_QA_F, 20, 21)
        self.stamp(2)
        A("s_branch L_h_b3")
        A("L_clear:")
        self.stamp(2)
        for r in range(20, 24):
            A(f"v_mov_b32 v{r}, -1")
        if self.yclear == 1:
            self.y_voff(24, 25)
            A(f"s_lshl_b32 s72, s62, 13\ns_lshl_b32 s4, s63, 6\ns_add_u32 s72, s72, s4\ns_add_u32 s72, s72, {YWS}")
            for k in range(4):
                A("buffer_store_dwordx4 v[20:23], v24, s[24:27], s72 offen sc1")
                A("s_add_u32 s72, s72, 0x40000")
        if self.yclear in (2, 3):
            A(f"v_lshlrev_b32 v24, 4, v0\ns_lshl_b32 s72, s2, 12\ns_add_u32 s72, s72, {YWS}")
            for k in range(4):
                if self.yclear == 2:
                    A(f"buffer_load_dwordx4 v[{64 + 4 * k}:{67 + 4 * k}], v24, s[24:27], s72 offen offset:{1024 * k}")
                else:
                    A(f"buffer_store_dwordx4 v[20:23], v24, s[24:27], s72 offen offset:{1024 * k} {self.cpol}")
        if self.pclear:
            A(f"v_lshlrev_b32 v24, 4, v0\ns_lshl_b32 s72, s2, 13\ns_add_u32 s72, s72, {PWS}\ns_add_u32 s5, s72, 0x1000")
            for half in (1, 0):
                if half == 0:
                    A(f"s_lshl_b64 exec, -1, {2 * self.SV}")
                for w in range(4):
                    k = 2 * w + half
                    if self.pclear == 1:
                        A(f"buffer_store_dwordx4 v[20:23], v24, s[24:27], s{72 if k < 4 else 5} offen offset:{1024 * (k & 3)} {self.cpol}")
                    else:
                        A(f"buffer_load_dwordx4 v[{80 + 4 * k}:{83 + 4 * k}], v24, s[24:27], s{72 if k < 4 else 5} offen offset:{1024 * (k & 3)}")
            A("s_mov_b64 exec, -1")
        if self.aclear:
            A(f"v_lshlrev_b32 v24, 4, v0\ns_lshl_b32 s72, s2, 10\ns_add_u32 s72, s72, {PREC}")
            A(f"buffer_load_dwordx4 v[120:123], v24, s[24:27], s72 offen")
            A(f"s_lshl_b32 s72, s2, 5\ns_add_u32 s72, s72, {HDR}")
            A(f"buffer_load_dword v124, v2, s[24:27], s72 offen")
        self.brec_addr(26, 27, 80)
        A("buffer_store_dwordx4 v[20:23], v26, s[24:27], s80 offen sc1")
        A("s_cmp_lg_u32 s65, 0\ns_cbranch_scc1 L_clear2")
        A(f"s_lshl_b32 s72, s63, 1\ns_add_u32 s72, s72, s64\ns_lshl_b32 s72, s72, 8\ns_add_u32 s72, s72, {CNT}")
        A("s_mov_b64 exec, 1")
        A("buffer_store_dword v2, v2, s[24:27], s72 offen sc1")
        A("s_mov_b64 exec, -1")
        A("L_clear2:")
        A("s_waitcnt vmcnt(0)")
        self.lds_set(L_CLR_F, 28, 29)
        A("L_h_b3:")
        A("s_setprio 3")
        A("s_lshr_b32 s70, s66, 1\ns_xor_b32 s70, s70, 1\ns_and_b32 s71, s66, 1")
        A("s_cmp_eq_u32 s70, 1")
        self.srd_sel(8, 44, 54, 0x400000)
        self.srd(12, 56, 0x4000)
        A("v_lshrrev_b32 v4, 3, v0\nv_and_b32 v5, 7, v0\nv_lshlrev_b32 v4, 10, v4\nv_lshl_add_u32 v4, v5, 4, v4")
        for k in range(1, 4):
            A(f"v_xor_b32 v{4 + k}, {k << 5}, v4")
        A("s_lshl_b32 s72, s63, 17\ns_lshl_b32 s4, s71, 16\ns_add_u32 s72, s72, s4")
        A("s_lshl_b32 s4, s62, 7\ns_add_u32 s72, s72, s4")
        A(f"s_lshl_b32 s73, s70, 14\ns_add_u32 s73, s73, {L_ST}")
        A("s_lshl_b32 s4, s71, 13\ns_add_u32 s4, s4, s73\ns_mov_b32 m0, s4")
        A("v_lshrrev_b32 v3, 4, v0\nv_bfe_u32 v12, v0, 2, 2\nv_and_b32 v13, 3, v0")
        A("v_lshl_add_u32 v8, v12, 3, v3\nv_lshlrev_b32 v8, 7, v8\nv_lshl_add_u32 v8, v13, 3, v8")
        A("v_lshl_add_u32 v8, v12, 5, v8\nv_add_u32 v8, s73, v8")
        for nb in range(1, 4):
            A(f"v_xor_b32 v{8 + nb}, {nb << 5}, v8")
        A("v_lshlrev_b32 v14, 8, v13\nv_lshl_add_u32 v14, v12, 6, v14\nv_lshl_add_u32 v14, v3, 4, v14")
        A("v_lshlrev_b32 v15, 5, v13\nv_lshl_add_u32 v15, v3, 3, v15")
        A("s_lshl_b32 s74, s70, 18\ns_lshl_b32 s4, s63, 13\ns_add_u32 s74, s74, s4")
        A(f"s_lshl_b32 s4, s71, 12\ns_add_u32 s74, s74, s4\ns_add_u32 s74, s74, {PREC}")
        A("s_lshl_b32 s75, s70, 13\ns_lshl_b32 s4, s63, 8\ns_add_u32 s75, s75, s4")
        A(f"s_lshl_b32 s4, s71, 7\ns_add_u32 s75, s75, s4\ns_add_u32 s75, s75, {HDR}")
        self.y_voff(60, 61)
        A("s_lshl_b32 s76, s70, 19\ns_lshl_b32 s4, s62, 13\ns_add_u32 s76, s76, s4")
        A(f"s_add_u32 s78, s76, {YWS}")
        A("s_lshl_b32 s4, s71, 18\ns_add_u32 s76, s78, s4\ns_lshl_b32 s4, s63, 6\ns_add_u32 s76, s76, s4")
        A("s_lshr_b32 s4, s63, 2\ns_lshl_b32 s5, s4, 16\ns_add_u32 s78, s78, s5")
        A("s_lshl_b32 s79, s4, 11\ns_and_b32 s4, s63, 3\ns_lshl_b32 s5, s4, 11\ns_add_u32 s78, s78, s5")
        A("s_lshl_b32 s5, s4, 3\ns_add_u32 s79, s79, s5\ns_lshl_b32 s5, s70, 10\ns_add_u32 s79, s79, s5")
        A("s_lshl_b32 s5, s62, 7\ns_add_u32 s79, s79, s5")
        A("v_lshlrev_b32 v61, 4, v0")
        A("v_lshlrev_b32 v62, 5, v3\nv_lshl_add_u32 v62, v13, 1, v62")
        A(f"s_lshl_b32 s4, s70, 2\ns_add_u32 s4, s4, {L_WOC}\nv_mov_b32 v63, s4\nv_mov_b32 v59, 1")
        for r in range(4):
            A(f"s_bfe_u32 s4, s28, {(8 << 16) | (8 * r):#x}\nv_mov_b32 v{128 + r}, s4")
        A("v_lshrrev_b32 v134, 2, v0\nv_lshlrev_b32 v134, 3, v134")
        A("s_waitcnt lgkmcnt(0)")
        A("s_barrier")
        self.stamp(5)
        if self.trigA or self.trigB:
            adr = lambda t: {None: L_PROG, 'last': L_LAST, 'flush': L_FLC}[t[0] if t else None]
            thr = lambda t: t[1] if t else 0
            A(f"s_cmp_eq_u32 s70, 1\ns_cselect_b32 s4, {adr(self.trigB)}, {adr(self.trigA)}")
            A(f"s_cselect_b32 s5, {thr(self.trigB)}, {thr(self.trigA)}\nv_mov_b32 v58, s4")
            self.lds_wait(None, "ge", "s5", 58, 57, sleep=1)
        A("global_load_dword v132, v134, s[58:59] sc1\nglobal_load_dword v133, v134, s[58:59] offset:128 sc1")
        for i in range(8):
            A(f"buffer_load_dwordx4 v{4 + (i & 3)}, s[8:11], s72 offen {self.nt} lds")
            if i < 7:
                A("s_add_u32 m0, m0, 0x400\ns_add_u32 s72, s72, 0x2000")
        A("s_waitcnt vmcnt(0)")
        A("s_mov_b64 exec, 1\nds_add_u32 v63, v59\ns_mov_b64 exec, -1")
        A("L_wo_spin:")
        A("ds_read_b32 v59, v63\ns_waitcnt lgkmcnt(0)\nv_readfirstlane_b32 s4, v59\ns_nop 0")
        A("s_cmp_eq_u32 s4, 2\ns_cbranch_scc1 L_wo_ok")
        self.budget("L_wo_spin")
        A("L_wo_ok:")
        for ks in range(4):
            if ks >= 1:
                A("s_waitcnt lgkmcnt(7)")
            for nb in range(4):
                for hf in range(2):
                    r = 64 + 16 * ks + 4 * nb + 2 * hf
                    A(f"ds_read_b64_tr_b16 v[{r}:{r + 1}], v{8 + nb} offset:{ks * 4096 + hf * 512}")
        self.stamp(3)
        if self.h1wait:
            A("s_cmp_eq_u32 s70, 0\ns_cbranch_scc1 L_h0")
            self.lds_wait(L_FLC, "ge", self.h1wait, 58, 57, sleep=1)
            A("L_h0:")
        A("s_cmp_eq_u32 s70, 1\ns_cbranch_scc1 L_h1")
        A("buffer_load_dwordx2 v[32:33], v15, s[24:27], s75 offen sc1")
        A("L_h1:")
        for ks in range(4):
            A(f"buffer_load_dwordx4 v[{16 + 4 * ks}:{19 + 4 * ks}], v14, s[24:27], s74 offen offset:{1024 * ks} sc1")
        if self.stamps:
            A("s_add_u32 s98, s98, 0x100")
        A("s_waitcnt vmcnt(0)")
        A("v_max3_u32 v34, v16, v17, v18\nv_max3_u32 v35, v19, v20, v21\nv_max3_u32 v36, v22, v23, v24")
        A("v_max3_u32 v37, v25, v26, v27\nv_max3_u32 v34, v34, v28, v29\nv_max3_u32 v35, v35, v30, v31")
        A("v_max3_u32 v34, v34, v35, v37\nv_max_u32 v34, v34, v36")
        A("v_cmp_eq_u32 vcc, -1, v34\ns_cbranch_vccz L_h1_ok")
        self.budget("L_h1")
        A("L_h1_ok:")
        A("s_waitcnt lgkmcnt(0)")
        for ks in range(4):
            for nb in range(4):
                r = 64 + 16 * ks + 4 * nb
                c = "0" if ks == 0 else f"v[{40 + 4 * nb}:{43 + 4 * nb}]"
                A(f"v_mfma_f32_16x16x32_bf16 v[{40 + 4 * nb}:{43 + 4 * nb}], v[{16 + 4 * ks}:{19 + 4 * ks}], v[{r}:{r + 3}], {c}")
        A("s_cmp_eq_u32 s70, 0\ns_cbranch_scc1 L_wgt")
        A("s_nop 3")
        for nb in range(4):
            A(f"v_add_f32 v{36 + nb}, v{40 + 4 * nb}, v{41 + 4 * nb}")
        for s in range(2, 4):
            for nb in range(4):
                A(f"v_add_f32 v{36 + nb}, v{36 + nb}, v{40 + 4 * nb + s}")
        A("s_branch L_ysto")
        A("L_wgt:")
        q1 = "quad_perm:[1,0,3,2] row_mask:0xf bank_mask:0xf"
        q2 = "quad_perm:[2,3,0,1] row_mask:0xf bank_mask:0xf"
        A(f"v_max_f32_dpp v34, v32, v32 {q1}\ns_nop 1\nv_max_f32_dpp v35, v34, v34 {q2}")
        A("v_sub_f32 v32, v32, v35\nv_exp_f32 v32, v32\ns_nop 0\nv_mul_f32 v33, v33, v32\ns_nop 1")
        A(f"v_add_f32_dpp v34, v33, v33 {q1}\ns_nop 1\nv_add_f32_dpp v35, v34, v34 {q2}")
        A("v_rcp_f32 v35, v35\ns_nop 0\nv_mul_f32 v32, v32, v35\ns_nop 1")
        for s in range(4):
            for nb in range(4):
                op = "v_mul_f32_dpp" if s == 0 else "v_fmac_f32_dpp"
                A(f"{op} v{36 + nb}, v32, v{40 + 4 * nb + s} quad_perm:[{s},{s},{s},{s}] row_mask:0xf bank_mask:0xf")
        A("L_ysto:")
        for nb in range(4):
            A(f"v_and_or_b32 v{36 + nb}, v{36 + nb}, s29, v{128 + nb}")
        A(f"buffer_store_dwordx4 v[36:39], v60, s[24:27], s76 offen {self.ypol}")
        self.stamp(6)
        A("s_cmp_lg_u32 s71, 0\ns_cbranch_scc1 L_hfin")
        A("L_h2:")
        A("buffer_load_dwordx4 v[16:19], v61, s[24:27], s78 offen sc1")
        A("buffer_load_dwordx4 v[20:23], v61, s[24:27], s78 offen offset:1024 sc1")
        if self.stamps:
            A("s_add_u32 s98, s98, 0x10000")
        A("s_waitcnt vmcnt(0)")
        self.tagdiff(16, "v132", 24, 26, True)
        self.tagdiff(20, "v133", 24, 26, False)
        A("v_cmp_ne_u32 vcc, 0, v26\ns_cbranch_vccz L_h2_ok")
        self.budget("L_h2")
        A("L_h2_ok:")
        for r in range(8):
            A(f"v_and_b32 v{16 + r}, s29, v{16 + r}")
        for r in range(4):
            A(f"v_add_f32 v{16 + r}, v{16 + r}, v{20 + r}")
        A("s_nop 1\nv_permlane32_swap_b32 v16, v18\nv_permlane32_swap_b32 v17, v19\ns_nop 0")
        A("v_add_f32 v16, v16, v18\nv_add_f32 v17, v17, v19")
        A("s_nop 1\nv_permlane16_swap_b32 v16, v17\ns_nop 0\nv_add_f32 v16, v16, v17\ns_nop 1")
        A("v_add_f32_dpp v17, v16, v16 row_ror:4 row_mask:0xf bank_mask:0xf\ns_nop 1")
        A("v_add_f32_dpp v16, v17, v17 row_ror:8 row_mask:0xf bank_mask:0xf")
        A("v_cvt_pk_bf16_f32 v16, v16, v16")
        A("s_mov_b32 exec_lo, 0x000f000f\ns_mov_b32 exec_hi, 0x000f000f")
        A("buffer_store_short v16, v62, s[12:15], s79 offen")
        if self.calib is not None:
            wg, k = self.calib
            A(f"s_cmp_lg_u32 s2, {wg}\ns_cbranch_scc1 L_cal_end\ns_cmp_lg_u32 s66, 0\ns_cbranch_scc1 L_cal_end")
            if k == 'end':
                A("s_memrealtime s[6:7]\ns_waitcnt lgkmcnt(0)\ns_sub_u32 s5, s6, s84")
            elif k is None:
                A("s_mov_b32 s5, 0")
            else:
                A(f"s_sub_u32 s5, s{84 + 2 * k}, s84")
            A("s_add_u32 s5, s5, 15000")
            A("L_cal:\ns_memrealtime s[6:7]\ns_waitcnt lgkmcnt(0)\ns_sub_u32 s6, s6, s84\ns_cmp_lt_u32 s6, s5\ns_cbranch_scc1 L_cal")
            A("L_cal_end:")
        if self.stamps:
            A("s_cmp_lg_u32 s66, 0\ns_cbranch_scc1 L_hfin")
            A("s_waitcnt vmcnt(0)")
            self.write_stamps(with_main=True)
            A("s_endpgm")
        A("L_hfin:")
        self.write_stamps()


if __name__ == "__main__":
    out = sys.argv[1]
    kw = eval("dict(" + (sys.argv[2] if len(sys.argv) > 2 else "") + ")")
    open(out, "w").write(G(**kw).gen())
```

```python
import sys, math, struct, re

NAME = "concat_heads__sliding_block_cached__mha_block_cached__decode"
REF = f"cdna_kernels/{NAME}.s.ref"

CNT, RP, RY, RR, WSEND = 0x290000, 0x400000, 0x600000, 0x800000, 0xa00000
STAMP = 0x10000
L_QOWN_F, L_FLC, L_REQ, L_WOC, L_PROG = 0, 4, 8, 12, 20
L_QA_F, L_CLR_F, L_TAG, L_FLA, L_LAST, L_PRDY, L_ZERO = 24, 28, 32, 36, 40, 44, 48
L_ML = 0x40
L_QUEUE = 0xF0
L_QOWN, L_QA = 0x400, 0x500
L_FL = 0x1000
L_ST = 0x4000
L_SC = L_ST
L_P = 0xC000
L_KX = L_P
LDS_SIZE = 0x14000


def f2u(x):
    return struct.unpack("<I", struct.pack("<f", x))[0]


CSC = 128 ** -0.5 * math.log2(math.e)
BIG = 0x7FFFFFFF
OOB = 0x10000000


class G:
    def __init__(self, **kw):
        o = dict(stamps=False, SV=32, LA=2, mask=5, nt="nt", nmin=2, nmax=12, gm=4,
                 sleep_grid=64, codepf=True, steps=False, clsleep=1, gridat=11, calib=None,
                 npoll=4, pollgap=16, thr=6, trigB=None, trigA=None, h1wait=0, lds=LDS_SIZE,
                 xh=((0, 18), (3, 19)), amap=1, aforce=6, yclear=1, ppol='sc1', nopub=False, ypol='sc1', cpol='sc1',
                 scat=(15, 16, 17, 18, 19, 20), qlin=1, clin=0, pord='RKV', dbg=(), xa=(), qy=0, kw=12, vw=12, w=None,
                 ptail=1, aopen=1, sopen=1, vopen=0, vlast=0)
        assert set(kw) <= set(o), set(kw) - set(o)
        o.update(kw)
        self.__dict__.update(o)
        if self.w is not None:
            self.kw = self.vw = self.thr = self.w
        self.NS = 64 - self.SV
        assert self.SV > 4 + self.LA and self.SV < 64 and self.NS - 1 + 4 * self.nmax < 128 and self.LA >= 1
        self.kx = 'L' in self.pord
        self.NP = 15 if self.kx else 16
        if self.kx:
            self.lds = max(self.lds, L_KX + 0x10000)
        assert self.aforce + 4 + self.kx <= self.gridat <= self.NP - 2
        comp = {15: (7, 8), 16: (9,), 17: (10,), 18: (11,), 19: (10, 14), 20: (8, 12)}
        if self.scat:
            self.PSH, self.SM = 7, [sum(1 << c for c in comp[b]) | 1 << b for b in self.scat]
        else:
            self.PSH, self.SM = 13, [128 << b for b in range(6)]
        self.L = []
        self.tail = []
        self.uid = 0

    def A(self, s):
        for line in s.strip("\n").split("\n"):
            line = line.strip()
            if not line:
                continue
            self.L.append(line if line.endswith(":") else "    " + line)

    def lab(self, p):
        self.uid += 1
        return f"L_{p}_{self.uid}"

    def stamp(self, k):
        if self.stamps:
            self.A(f"s_memrealtime s[{84 + 2 * k}:{85 + 2 * k}]\ns_waitcnt lgkmcnt(0)")

    def write_stamps(self, with_main=False):
        if not self.stamps:
            return
        A = self.A
        A("s_mov_b64 exec, 1")
        A("s_lshl_b32 s4, s2, 8\ns_lshl_b32 s5, s3, 5\ns_add_u32 s4, s4, s5")
        A(f"s_add_u32 s4, s4, {STAMP}")
        A("v_mov_b32 v4, s4")
        for k in range(8):
            A(f"v_mov_b32 v{8 + k}, s{84 + 2 * k}")
        A("buffer_store_dwordx4 v[8:11], v4, s[24:27], 0 offen")
        A("buffer_store_dwordx4 v[12:15], v4, s[24:27], 0 offen offset:16")
        if with_main:
            A("s_memrealtime s[6:7]\ns_waitcnt lgkmcnt(0)")
            A("s_lshl_b32 s4, s2, 4\nv_mov_b32 v5, s4")
            A("v_mov_b32 v16, s84\nv_mov_b32 v17, s85\nv_mov_b32 v18, s6\nv_mov_b32 v19, s7")
            A("buffer_store_dwordx4 v[16:19], v5, s[24:27], 0 offen")

    def srd(self, d, lo, size):
        self.A(f"s_mov_b32 s{d}, s{lo}\ns_and_b32 s{d + 1}, s{lo + 1}, 0xffff\n"
               f"s_mov_b32 s{d + 2}, {size:#x}\ns_mov_b32 s{d + 3}, 0x20000")

    def srd_sel(self, d, loA, loB, size):
        self.A(f"s_cselect_b32 s{d}, s{loB}, s{loA}\ns_cselect_b32 s{d + 1}, s{loB + 1}, s{loA + 1}\n"
               f"s_and_b32 s{d + 1}, s{d + 1}, 0xffff\n"
               f"s_mov_b32 s{d + 2}, {size:#x}\ns_mov_b32 s{d + 3}, 0x20000")

    def budget(self, retry):
        self.A(f"s_sub_u32 s82, s82, 1\ns_cmp_lg_u32 s82, 0\ns_cbranch_scc1 {retry}\ns_endpgm")

    def lds_wait(self, addr, cmp_, val, va, vd, sleep=1, sd=4):
        sp, ok = self.lab("sp"), self.lab("ok")
        if addr is not None:
            self.A(f"v_mov_b32 v{va}, {addr}")
        self.A(f"{sp}:\nds_read_b32 v{vd}, v{va}\ns_waitcnt lgkmcnt(0)\nv_readfirstlane_b32 s{sd}, v{vd}\ns_nop 0")
        self.A(f"s_cmp_{cmp_}_u32 s{sd}, {val}\ns_cbranch_scc1 {ok}")
        if sleep:
            self.A(f"s_sleep {sleep}")
        self.budget(sp)
        self.A(f"{ok}:")

    def lds_set(self, addr, va, vd, op="ds_write_b32", val=1):
        self.A(f"v_mov_b32 v{va}, {addr}\nv_mov_b32 v{vd}, {val}")
        self.A(f"s_mov_b64 exec, 1\n{op} v{va}, v{vd}\ns_mov_b64 exec, -1")

    def tagdiff(self, d, tag, t, acc, first):
        A = self.A
        A(f"v_perm_b32 v{t}, v{d + 1}, v{d}, s30\nv_perm_b32 v{t + 1}, v{d + 3}, v{d + 2}, s31")
        A(f"v_or_b32 v{t}, v{t}, v{t + 1}")
        A(f"v_xor_b32 v{acc if first else t}, {tag}, v{t}")
        if not first:
            A(f"v_or_b32 v{acc}, v{acc}, v{t}")

    def qrow(self, d, vaddr, off):
        A = self.A
        for r in range(8):
            A(f"v_and_b32 v{d + r}, s29, v{d + r}")
        for r in range(4):
            A(f"v_add_f32 v{d + r}, v{d + r}, v{d + 4 + r}")
        A(f"s_nop 1\nv_permlane32_swap_b32 v{d}, v{d + 2}\nv_permlane32_swap_b32 v{d + 1}, v{d + 3}\ns_nop 0")
        A(f"v_add_f32 v{d}, v{d}, v{d + 2}\nv_add_f32 v{d + 1}, v{d + 1}, v{d + 3}")
        A(f"v_cvt_pk_bf16_f32 v{d}, v{d}, v{d + 1}")
        A(f"ds_write_b16 v{vaddr}, v{d} offset:{off}\nds_write_b16_d16_hi v{vaddr}, v{d} offset:{off + 32}")

    def tile(self, X, Q, acc, m, R, l, bias, kwait, vwait, issueK=None):
        A = self.A
        D, S, T = 40, 56, 60
        if kwait is not None:
            A(f"s_waitcnt vmcnt({kwait})")
        for t in range(4):
            A(f"v_mfma_f32_16x16x32_bf16 v[{D + 4 * t}:{D + 4 * t + 3}], v[{X + 4 * t}:{X + 4 * t + 3}], v[{Q}:{Q + 3}], 0")
        if issueK:
            issueK()
            A("s_nop 1")
        else:
            A("s_nop 5")
        for c in range(4):
            for t in range(4):
                dpp = f"quad_perm:[{c},{c},{c},{c}] row_mask:0xf bank_mask:0xf"
                if c == 0 and bias is None:
                    A(f"v_mov_b32_dpp v{S + t}, v{D + 4 * t} {dpp}")
                else:
                    A(f"v_add_f32_dpp v{S + t}, v{D + 4 * t + c}, v{bias if c == 0 else S + t} {dpp}")
        rs, back = self.lab("rs"), self.lab("bk")
        A(f"v_max3_f32 v{T}, v{S}, v{S + 1}, v{S + 2}")
        A(f"v_max_f32 v{T}, v{T}, v{S + 3}")
        A(f"v_cmp_gt_f32 vcc, v{T}, v{m}")
        A(f"s_cbranch_vccnz {rs}")
        A(f"{back}:")
        for t in range(4):
            A(f"v_fma_f32 v{S + t}, v{S + t}, s77, -v{R}")
        for t in range(4):
            A(f"v_exp_f32 v{S + t}, v{S + t}")
        A(f"v_add_f32 v{T}, v{S}, v{S + 1}")
        A(f"v_cvt_pk_bf16_f32 v{S}, v{S}, v{S}")
        A(f"v_add_f32 v{T + 1}, v{S + 2}, v{S + 3}")
        for t in range(1, 4):
            A(f"v_cvt_pk_bf16_f32 v{S + t}, v{S + t}, v{S + t}")
        for t in range(4):
            A(f"v_and_b32 v{D + 2 * t}, v{S + t}, v4")
            A(f"v_and_b32 v{D + 2 * t + 1}, v{S + t}, v5")
        A(f"v_add_f32 v{l}, v{l}, v{T}")
        A(f"v_add_f32 v{l}, v{l}, v{T + 1}")
        if vwait is not None:
            A(f"s_waitcnt vmcnt({vwait})")
        for t in range(4):
            V = X + 16 + 4 * t
            A(f"v_mfma_f32_16x16x16_bf16 v[{acc}:{acc + 3}], v[{V}:{V + 1}], v[{D + 2 * t}:{D + 2 * t + 1}], v[{acc}:{acc + 3}]")
            A(f"v_mfma_f32_16x16x16_bf16 v[{acc + 4}:{acc + 7}], v[{V + 2}:{V + 3}], v[{D + 2 * t}:{D + 2 * t + 1}], v[{acc + 4}:{acc + 7}]")
        o = [f"{rs}:",
             f"v_mov_b32 v{T + 1}, v{T}", "s_nop 1",
             f"v_permlane32_swap_b32 v{T + 1}, v{T}", "s_nop 0",
             f"v_max_f32 v{T}, v{T}, v{T + 1}",
             f"v_mov_b32 v{T + 1}, v{T}", "s_nop 1",
             f"v_permlane16_swap_b32 v{T + 1}, v{T}", "s_nop 0",
             f"v_max3_f32 v{m}, v{m}, v{T}, v{T + 1}",
             f"v_mul_f32 v{T}, s77, v{m}",
             f"v_sub_f32 v{T + 1}, v{R}, v{T}",
             f"v_exp_f32 v{T + 1}, v{T + 1}",
             f"v_mov_b32 v{R}, v{T}",
             f"v_mul_f32 v{l}, v{l}, v{T + 1}"]
        for i in range(8):
            o.append(f"v_mul_f32 v{acc + i}, v{acc + i}, v{T + 1}")
        o.append(f"s_branch {back}")
        self.tail.append("\n".join(o))

    def loads(self, dst, voff, srd, soff, w=None, skip=None, mid={}):
        w = w if isinstance(w, tuple) else (w, None, None, None)
        if skip:
            self.A(skip if isinstance(skip, str) else f"s_cmp_lg_u32 s{skip}, 0")
        for t in range(4):
            if w[t] is not None and w[t] < 12 + t:
                if skip:
                    lb = self.lab("nw")
                    self.A(f"s_cbranch_scc1 {lb}\ns_waitcnt vmcnt({w[t]})\n{lb}:")
                else:
                    self.A(f"s_waitcnt vmcnt({w[t]})")
            self.A(f"buffer_load_dwordx4 v[{dst + 4 * t}:{dst + 4 * t + 3}], v{voff}, s[{srd}:{srd + 3}], s{soff} offen offset:{1024 * t} {self.nt}")
            if t in mid:
                self.A(mid[t])

    def flush_write(self, acc, R):
        A = self.A
        A(f"s_mul_i32 s4, s3, 0xc00\ns_add_u32 s4, s4, {L_FL}")
        A("v_lshlrev_b32 v60, 4, v0\nv_lshlrev_b32 v61, 3, v0")
        A("v_add_u32 v60, s4, v60\nv_add_u32 v61, s4, v61")
        A("s_nop 3")
        A(f"ds_write_b128 v60, v[{acc}:{acc + 3}]")
        A(f"ds_write_b128 v60, v[{acc + 4}:{acc + 7}] offset:1024")
        if R is not None:
            A(f"ds_write_b64 v61, v[{R}:{R + 1}] offset:2048")

    def combine(self, b, vrec, vhdr, srec, shdr):
        A = self.A
        a = lambda w: b + 12 * w
        t = b + 48
        A(f"v_lshlrev_b32 v{t}, 4, v0\nv_lshlrev_b32 v{t + 1}, 3, v0")
        for w in range(4):
            A(f"ds_read_b64 v[{a(w) + 8}:{a(w) + 9}], v{t + 1} offset:{L_FL + 0xc00 * w + 2048}")
        for w in range(4):
            A(f"ds_read_b128 v[{a(w)}:{a(w) + 3}], v{t} offset:{L_FL + 0xc00 * w}")
            A(f"ds_read_b128 v[{a(w) + 4}:{a(w) + 7}], v{t} offset:{L_FL + 0xc00 * w + 1024}")
        A("s_waitcnt lgkmcnt(8)")
        Rm, Ls = t + 2, t + 3
        A(f"v_max3_f32 v{Rm}, v{a(0) + 8}, v{a(1) + 8}, v{a(2) + 8}")
        A(f"v_max_f32 v{Rm}, v{Rm}, v{a(3) + 8}")
        for w in range(4):
            A(f"v_sub_f32 v{a(w) + 8}, v{a(w) + 8}, v{Rm}")
        for w in range(4):
            A(f"v_exp_f32 v{a(w) + 8}, v{a(w) + 8}")
        A(f"v_mul_f32 v{Ls}, v{a(0) + 8}, v{a(0) + 9}")
        for w in range(1, 4):
            A(f"v_fmac_f32 v{Ls}, v{a(w) + 8}, v{a(w) + 9}")
        A(f"v_mov_b32 v{t}, v{Ls}")
        A("s_waitcnt lgkmcnt(6)")
        for i in range(8):
            A(f"v_mul_f32 v{a(0) + i}, v{a(0) + 8}, v{a(0) + i}")
        A(f"v_permlane32_swap_b32 v{t}, v{Ls}")
        A("s_waitcnt lgkmcnt(4)")
        A(f"v_add_f32 v{Ls}, v{Ls}, v{t}")
        A(f"v_mov_b32 v{t}, v{Ls}")
        for i in range(8):
            A(f"v_fmac_f32 v{a(0) + i}, v{a(1) + 8}, v{a(1) + i}")
        A(f"v_permlane16_swap_b32 v{t}, v{Ls}")
        A("s_waitcnt lgkmcnt(2)")
        A(f"v_add_f32 v{Ls}, v{Ls}, v{t}")
        for i in range(8):
            A(f"v_fmac_f32 v{a(0) + i}, v{a(2) + 8}, v{a(2) + i}")
        A("s_waitcnt lgkmcnt(0)")
        for i in range(8):
            A(f"v_fmac_f32 v{a(0) + i}, v{a(3) + 8}, v{a(3) + i}")
        o = t + 4
        for k in range(4):
            A(f"v_cvt_pk_bf16_f32 v{o + k}, v{a(0) + 2 * k}, v{a(0) + 2 * k + 1}")
        for k in range(4):
            A(f"v_min_u32 v{o + k}, -2, v{o + k}")
        A(f"v_min_u32 v{Rm}, -2, v{Rm}\nv_min_u32 v{Ls}, -2, v{Ls}")
        A(f"buffer_store_dwordx4 v[{o}:{o + 3}], v{vrec}, s[24:27], s{srec} offen sc1")
        A("s_mov_b64 exec, 0x1111")
        A(f"buffer_store_dwordx2 v[{Rm}:{Ls}], v{vhdr}, s[24:27], s{shdr} offen sc1")
        A("s_mov_b64 exec, -1")

    def combine_sum(self, b, vrec, srec):
        A = self.A
        for w in range(4):
            A(f"ds_read_b128 v[{b + 8 * w}:{b + 8 * w + 3}], v2 offset:{L_FL + 0xc00 * w}")
            A(f"ds_read_b128 v[{b + 8 * w + 4}:{b + 8 * w + 7}], v2 offset:{L_FL + 0xc00 * w + 1024}")
        for w in range(1, 4):
            A(f"s_waitcnt lgkmcnt({6 - 2 * w})")
            for i in range(8):
                A(f"v_add_f32 v{b + i}, v{b + i}, v{b + 8 * w + i}")
        o = b + 32
        for k in range(4):
            A(f"v_cvt_pk_bf16_f32 v{o + k}, v{b + 2 * k}, v{b + 2 * k + 1}")
        for k in range(4):
            A(f"v_min_u32 v{o + k}, -2, v{o + k}")
        A(f"buffer_store_dwordx4 v[{o}:{o + 3}], v{vrec}, s[24:27], s{srec} offen sc1")

    def brec_addr(self, vrec, t, srec):
        A = self.A
        self.line8(vrec, t)
        A(f"s_lshl1_add_u32 s4, s63, s64\ns_lshl2_add_u32 s4, s4, s65\ns_lshl_b32 s4, s4, {self.PSH}")
        A(f"v_xor_b32 v{vrec}, s4, v{vrec}\ns_mov_b32 s{srec}, {RR}")

    def xlane(self, op, v, t):
        A = self.A
        for ctl in ("quad_perm:[1,0,3,2]", "quad_perm:[2,3,0,1]", "row_ror:4", "row_ror:8"):
            A(f"s_nop 1\n{op}_dpp v{v}, v{v}, v{v} {ctl} row_mask:0xf bank_mask:0xf")
        for sw in ("v_permlane16_swap_b32", "v_permlane32_swap_b32"):
            A(f"v_mov_b32 v{t}, v{v}\ns_nop 1\n{sw} v{t}, v{v}\ns_nop 0\n{op} v{v}, v{v}, v{t}")

    def M(self, lam, SM=None):
        m = 0
        for b in range(6):
            if lam >> b & 1:
                m ^= (SM or self.SM)[b]
        return m

    def vx(self, d, t, items, src=0):
        out = []
        for bit, m in items:
            m = m if isinstance(m, str) else f"{m:#x}"
            out += [f"v_bfe_i32 v{t}, v{src}, {bit}, 1", f"v_and_b32 v{t}, {m}, v{t}", f"v_xor_b32 v{d}, v{d}, v{t}"]
        return "\n".join(out)

    def sx(self, d, items):
        for sreg, bit, m in items:
            self.A(f"s_bitcmp1_b32 s{sreg}, {bit}\ns_cselect_b32 s4, {m:#x}, 0\ns_xor_b32 s{d}, s{d}, s4")

    def line8(self, d, t):
        self.A(f"v_and_b32 v{d}, 7, v0\nv_lshlrev_b32 v{d}, 4, v{d}")
        self.A(self.vx(d, t, [(3 + b, self.SM[b]) for b in range(3)]))

    def gen(self):
        A = self.A
        hdr = open(REF).read().split("\n")
        for line in hdr:
            if line.startswith("; @launch"):
                self.L.append(f"; @launch grid=(256,1,1) block=(512,1,1) lds={self.lds}")
                break
            self.L.append(line)
        self.L += ['.amdgcn_target "amdgcn-amd-amdhsa--gfx950"', ".text", f".globl {NAME}_kernel", ".p2align 8",
                   f".type {NAME}_kernel,@function", f"{NAME}_kernel:"]
        A("s_cmp_ge_u32 s2, 256\ns_cbranch_scc1 L_end")
        A("s_load_dwordx16 s[36:51], s[0:1], 0")
        A("s_load_dwordx8 s[52:59], s[0:1], 64")
        A("s_load_dwordx2 s[60:61], s[0:1], 96")
        A("s_memrealtime s[84:85]")
        A("v_lshrrev_b32 v1, 6, v0\nv_and_b32 v0, 63, v0")
        A("v_mov_b32 v2, 0")
        A("v_readfirstlane_b32 s3, v1")
        A("v_lshlrev_b32 v1, 4, v0\nv_mov_b32 v4, 0\nv_mov_b32 v5, 0\nv_mov_b32 v6, 0\nv_mov_b32 v7, 0")
        A("s_and_b32 s62, s2, 7\ns_lshr_b32 s63, s2, 3")
        A(f"s_and_b32 s4, s62, {self.mask}\ns_bcnt1_i32_b32 s4, s4\ns_and_b32 s64, s4, 1")
        A("s_and_b32 s65, s62, 3")
        if self.amap == 0:
            A("s_lshr_b32 s67, s2, 5\ns_bfe_u32 s68, s2, 0x30002\ns_and_b32 s69, s2, 3")
        else:
            A("s_bfe_u32 s67, s63, 0x10003\ns_lshr_b32 s4, s62, 2\ns_lshl1_add_u32 s67, s4, s67")
            A("s_lshr_b32 s4, s63, 4\ns_lshl2_add_u32 s67, s4, s67")
            A("s_and_b32 s68, s63, 4\ns_or_b32 s68, s68, s65\ns_and_b32 s69, s63, 3")
        A(f"s_mov_b32 s77, {f2u(CSC):#x}")
        A("s_mov_b32 s82, 0x400000")
        A("s_cmp_lg_u32 s3, 0\ns_cbranch_scc1 L_noinit")
        A("ds_write_b128 v1, v[4:7]")
        A("L_noinit:")
        A("s_waitcnt lgkmcnt(0)")
        if self.stamps:
            for k in range(1, 8):
                A(f"s_mov_b32 s{84 + 2 * k}, 0")
        self.srd(24, 60, WSEND)
        A("s_cmp_ge_u32 s3, 4\ns_cbranch_scc1 L_helper")
        self.stream()
        A("L_helper:")
        self.helper()
        A("L_end:\ns_endpgm")
        for blk in self.tail:
            A(blk)
        A("L_code_end:")
        self.L += ['.section .rodata,"a"', ".p2align 6", f".amdhsa_kernel {NAME}_kernel",
                   "  .amdhsa_next_free_vgpr 256", "  .amdhsa_next_free_sgpr 102", "  .amdhsa_accum_offset 256",
                   "  .amdhsa_group_segment_fixed_size 0", "  .amdhsa_kernarg_size 104",
                   "  .amdhsa_user_sgpr_count 2", "  .amdhsa_user_sgpr_kernarg_segment_ptr 1",
                   "  .amdhsa_system_sgpr_workgroup_id_x 1", ".end_amdhsa_kernel"]
        return "\n".join(self.L) + "\n"

    def stream(self):
        A = self.A
        self.srd(8, 48, 0x10000000)
        self.srd(12, 50, 0x10000000)
        self.srd(16, 38, 0x4000000)
        self.srd(20, 40, 0x4000000)
        A("v_lshrrev_b32 v3, 4, v0\nv_bfe_u32 v4, v0, 2, 2\nv_and_b32 v5, 3, v0")
        A("v_lshlrev_b32 v1, 8, v4\nv_lshl_add_u32 v1, v3, 6, v1\nv_lshl_add_u32 v1, v5, 4, v1")
        A("v_lshlrev_b32 v2, 4, v0")
        A("s_lshl_b32 s78, s3, 12")
        A("s_lshl_b32 s4, s64, 2\ns_add_u32 s4, s4, s65\ns_lshl_b32 s4, s4, 5\ns_add_u32 s4, s4, s63")
        A("s_lshl_b32 s70, s4, 20\ns_add_u32 s70, s70, s78")
        A("s_mov_b32 s74, 0")
        for hb, ab in self.xh:
            A(f"s_bfe_u32 s4, s63, {0x10000 + hb:#x}\ns_lshl_b32 s4, s4, {ab}\ns_or_b32 s74, s74, s4")
        A("s_lshl3_add_u32 s4, s67, s68\ns_lshl_b32 s4, s4, 20\ns_lshl_b32 s5, s69, 16\ns_add_u32 s79, s4, s5")
        A("s_add_u32 s79, s79, s78\ns_add_u32 s79, s79, 0xc0000")
        self.sx(79, [(2, b, 1 << ab) for b, ab in self.xa])
        if 'noA' in self.dbg:
            A("s_add_u32 s79, s70, 0x80000\ns_xor_b32 s79, s79, s74")
            self.srd(16, 50, 0x10000000)
            self.srd(20, 50, 0x10000000)
            A("s_add_u32 s20, s20, 0x10000\ns_addc_u32 s21, s21, 0")
        A("s_barrier")

        tl = list(self.thr) if isinstance(self.thr, list) else [self.thr] * (4 * len(self.pord) - self.ptail) + [None] * self.ptail
        if self.kx:
            A(f"s_add_u32 s71, s70, 0xf0000\ns_lshl_b32 s76, s3, 14\ns_add_u32 s76, s76, {L_KX}")
        for seg in self.pord:
            for a in range(4):
                if seg == 'R':
                    A("s_xor_b32 s73, s70, s74")
                    self.loads(64 + 16 * a, 1, 8, 73, tl.pop(0))
                    A("s_add_u32 s70, s70, 0x4000")
                elif seg == 'L':
                    A(f"s_add_u32 m0, s76, {0x1000 * a}\ns_xor_b32 s73, s71, s74")
                    w = tl.pop(0)
                    w = w if isinstance(w, tuple) else (w, None, None, None)
                    for t in range(4):
                        if w[t] is not None:
                            A(f"s_waitcnt vmcnt({w[t]})")
                        A(f"buffer_load_dwordx4 v1, s[8:11], s73 offen offset:{1024 * t} {self.nt} lds")
                    A("s_add_u32 s71, s71, 0x4000")
                else:
                    kv = 'KV'.index(seg)
                    A(f"s_xor_b32 s73, s79, {0x4000 * a}")
                    self.loads(128 + 32 * a + 16 * kv, 1 + kv, 16 + 4 * kv, 73, tl.pop(0))
        A("v_lshlrev_b32 v6, 6, v5\nv_lshl_add_u32 v6, v3, 4, v6\nv_lshl_add_u32 v6, v4, 2, v6")
        A(f"s_add_u32 s4, s78, {L_SC}\nv_add_u32 v6, s4, v6")
        A("v_mov_b32 v3, v4")
        A("v_and_b32 v8, 1, v5\nv_lshlrev_b32 v8, 4, v8\nv_mov_b32 v7, 0xffff\nv_lshlrev_b32 v8, v8, v7")
        A("v_cmp_le_u32 vcc, 2, v5\ns_nop 1")
        A("v_cndmask_b32 v5, 0, v8, vcc\nv_xor_b32 v4, v5, v8")
        for r in list(range(12, 16)) + list(range(32, 40)) + [7, 9]:
            A(f"v_mov_b32 v{r}, 0")
        A("v_mov_b32 v10, 0xff7fffff\nv_mul_f32 v8, s77, v10")
        for c in range(4):
            A(f"s_mov_b32 s{28 + 2 * c}, {0x11111111 << c:#x}\ns_mov_b32 s{29 + 2 * c}, s{28 + 2 * c}")
        A(f"s_mov_b32 s72, {self.NP}\ns_mov_b32 s79, 0\ns_mov_b32 s36, 0\ns_mov_b32 s37, 1")
        self.brec_addr(11, 60, 80)
        if self.steps:
            A("v_mov_b32 v62, 0\nv_mov_b32 v63, 0\ns_mov_b32 s83, 0")
        self.stamp(1)
        self.lds_wait(L_QOWN_F, "lg", 0, 60, 61)
        A(f"v_and_b32 v60, 0xff, v1\nds_read_b128 v[40:43], v60 offset:{L_QOWN}")
        A("s_waitcnt lgkmcnt(0)")
        for t in range(4):
            A(f"v_cmp_eq_u32 vcc, {t}, v3\ns_nop 1")
            for r in range(4):
                A(f"v_cndmask_b32 v{16 + 4 * t + r}, 0, v{40 + r}, vcc")
        self.stamp(2)

        def step(sl, extra=""):
            if self.steps and sl in (0, 2):
                return {0: "s_memrealtime s[6:7]",
                        1: f"s_waitcnt lgkmcnt(0)\ns_mov_b32 m0, s83\nv_writelane_b32 v{62 + sl // 2}, s6, m0\n" + extra,
                        3: "s_add_u32 s83, s83, 1" if sl == 2 else ""}
            return {1: extra}
        A("L_k:")
        for sl in range(4):
            X = 64 + 16 * sl
            A("s_waitcnt vmcnt(12)")
            for t in range(4):
                A(f"v_mfma_f32_16x16x32_bf16 v[40:43], v[{X + 4 * t}:{X + 4 * t + 3}], v[{16 + 4 * t}:{19 + 4 * t}], {'0' if t == 0 else 'v[40:43]'}")
            A("s_xor_b32 s73, s70, s74")
            self.loads(X, 1, 8, 73, self.kw, skip=36 + (sl >= 4 - self.aopen), mid=step(sl))
            A("s_add_u32 s70, s70, 0x4000\ns_nop 1")
            for c in range(4):
                dpp = f"quad_perm:[{c},{c},{c},{c}] row_mask:0xf bank_mask:0xf"
                A(f"v_mov_b32_dpp v{56 + c}, v{40 + c} {dpp}" if c < 2 else f"v_add_f32_dpp v{54 + c}, v{40 + c}, v{54 + c} {dpp}")
                if c == 1:
                    A("s_nop 0")
            A("v_add_f32 v56, v56, v57")
            A(f"v_cndmask_b32 v7, v7, v56, s[{28 + 2 * sl}:{29 + 2 * sl}]")
        A("ds_write_b32 v6, v7\nv_add_u32 v6, 0x100, v6")
        A("s_sub_u32 s72, s72, 1\ns_cmp_le_u32 s72, 1\ns_cbranch_scc1 L_kend")
        A("s_cmp_ge_u32 s79, 6\ns_cbranch_scc1 L_k")
        A("s_cmp_eq_u32 s79, 5\ns_cbranch_scc1 L_a5")
        if self.kx:
            A("s_cmp_eq_u32 s79, 4\ns_cbranch_scc1 L_a4")
        A("s_cmp_eq_u32 s79, 1\ns_cbranch_scc1 L_a1")
        A("s_cmp_eq_u32 s79, 2\ns_cbranch_scc1 L_a2")
        A("s_cmp_eq_u32 s79, 3\ns_cbranch_scc1 L_a3")
        A(f"v_mov_b32 v60, {L_QA_F}")
        A("L_a_spin:")
        A(f"ds_read_b32 v61, v60\nds_read_b128 v[12:15], v1 offset:{L_QA}\ns_waitcnt lgkmcnt(0)")
        A("v_readfirstlane_b32 s4, v61\ns_nop 0")
        A("s_cmp_lg_u32 s4, 0\ns_cbranch_scc1 L_a0")
        A(f"s_cmp_gt_u32 s72, {self.NP - self.aforce}\ns_cbranch_scc1 L_k")
        self.budget("L_a_spin")
        for a in range(4):
            A(f"L_a{a}:")
            if a == 0:
                A("s_waitcnt vmcnt(16)")
            self.tile(128 + 32 * a, 12, 32, 10, 8, 9, None, None, None)
            A(f"s_mov_b32 s79, {a + 1 if a < 3 or self.kx else 5}")
            if a < 3:
                A("s_branch L_k")
        self.flush_write(32, 8)
        self.lds_set(L_FLA, 60, 61, op="ds_add_u32")
        if not self.kx:
            A("s_mov_b32 s37, 0")
        self.stamp(3)
        A("s_branch L_k")
        if self.kx:
            A("L_a4:")
            A("v_add_u32 v60, s76, v2\ns_lshl_b32 s4, s72, 8")
            for sl in range(4):
                for k in {0: range(12), 1: range(12, 16)}.get(sl, ()):
                    A(f"ds_read_b128 v[{128 + 4 * k}:{131 + 4 * k}], v60 offset:{1024 * k}")
                A(f"s_waitcnt lgkmcnt({min(8, 12 - 4 * sl)})")
                for t in range(4):
                    X, D = 128 + 16 * sl + 4 * t, 40 + 4 * sl
                    A(f"v_mfma_f32_16x16x32_bf16 v[{D}:{D + 3}], v[{X}:{X + 3}], v[{16 + 4 * t}:{19 + 4 * t}], {'0' if t == 0 else f'v[{D}:{D + 3}]'}")
            A("v_add_u32 v60, s4, v6")
            for sl in range(4):
                for c in range(4):
                    dpp = f"quad_perm:[{c},{c},{c},{c}] row_mask:0xf bank_mask:0xf"
                    D = 40 + 4 * sl + c
                    A(f"v_mov_b32_dpp v{56 + c}, v{D} {dpp}" if c < 2 else f"v_add_f32_dpp v{54 + c}, v{D}, v{54 + c} {dpp}")
                    if c == 1:
                        A("s_nop 0")
                A("v_add_f32 v56, v56, v57")
                A(f"v_cndmask_b32 v61, v61, v56, s[{28 + 2 * sl}:{29 + 2 * sl}]")
            A("ds_write_b32 v60, v61\ns_mov_b32 s79, 5\ns_mov_b32 s37, 0\ns_branch L_k")
        A("L_a5:")
        A(f"s_cmp_gt_u32 s72, {self.NP - self.gridat}\ns_cbranch_scc1 L_k")
        self.lds_set(L_PROG, 60, 61)
        A("s_mov_b32 s79, 6\ns_branch L_k")
        A("L_kend:")
        A("s_cmp_eq_u32 s72, 0\ns_cbranch_scc1 L_soft")
        A("s_mov_b32 s8, s12\ns_mov_b32 s9, s13\nv_mov_b32 v1, v2")
        A(f"s_mov_b32 s36, {self.sopen}\ns_mov_b32 s37, {self.sopen}")
        A(f"s_sub_u32 s70, s70, {self.NP << 16:#x}\ns_branch L_k")
        A("L_soft:")
        A(f"s_add_u32 s4, s78, {L_SC}\nv_add_u32 v6, s4, v2")
        for k in range(4):
            A(f"ds_read_b128 v[{128 + 4 * k}:{131 + 4 * k}], v6 offset:{1024 * k}")
        A("v_mov_b32 v60, 0x0c0c0c0c")
        for t in range(4):
            A(f"s_mov_b32 s4, {((2 * t + 1) << 8 | 2 * t) * 0x10001:#x}")
            A(f"v_bfi_b32 v{16 + 2 * t}, v4, s4, v60\nv_bfi_b32 v{17 + 2 * t}, v5, s4, v60")
        for r in range(32, 40):
            A(f"v_mov_b32 v{r}, 0")
        A("v_lshrrev_b32 v30, 4, v0\nv_lshlrev_b32 v30, 3, v30")
        A(f"s_lshr_b32 s81, s78, 1\ns_lshl_b32 s5, s65, 13\ns_add_u32 s5, s5, s81\ns_add_u32 s5, s5, {L_P}")
        A(f"v_cmp_eq_u32 vcc, s65, v3\nv_add_u32 v60, s5, v30\nv_mov_b32 v31, {L_ZERO}")
        A("v_cndmask_b32 v24, v31, v60, vcc\nv_cndmask_b32 v29, 0, 32, vcc")
        for sl in range(1, 5):
            A(f"v_add_u32 v{24 + sl}, v{23 + sl}, v29")
        A("v_lshlrev_b32 v6, 3, v0\nv_add_u32 v6, s5, v6")
        A("v_mov_b32 v8, 0xff7fffff")
        for k in range(4):
            A(f"s_waitcnt lgkmcnt({3 - k})")
            A(f"v_max3_f32 v8, v8, v{128 + 4 * k}, v{129 + 4 * k}\nv_max3_f32 v8, v8, v{130 + 4 * k}, v{131 + 4 * k}")
        self.xlane("v_max_f32", 8, 60)
        A("v_mul_f32 v8, s77, v8")
        for r in range(128, 144):
            A(f"v_fma_f32 v{r}, v{r}, s77, -v8")
        for r in range(128, 144):
            A(f"v_exp_f32 v{r}, v{r}")
        for k in range(4):
            A(f"v_add_f32 v{56 + k}, v{128 + k}, v{132 + k}")
        for u in range(2):
            for k in range(4):
                A(f"v_add_f32 v{56 + k}, v{56 + k}, v{136 + 4 * u + k}")
        A("v_add_f32 v56, v56, v57\nv_add_f32 v58, v58, v59\nv_add_f32 v9, v56, v58")
        self.xlane("v_add_f32", 9, 60)
        A("v_max_u32 v9, 1, v9")
        A(f"s_lshl_b32 s4, s3, 3\nv_mov_b32 v60, s4\nv_mov_b32 v61, 0")
        A(f"s_mov_b64 exec, 1\nds_write_b64 v60, v[8:9] offset:{L_ML}\ns_mov_b64 exec, -1")
        A("L_ml:")
        A(f"ds_read_b128 v[40:43], v61 offset:{L_ML}\nds_read_b128 v[44:47], v61 offset:{L_ML + 16}\ns_waitcnt lgkmcnt(0)")
        A("v_min3_u32 v60, v41, v43, v45\nv_min_u32 v60, v60, v47\nv_cmp_eq_u32 vcc, 0, v60\ns_cbranch_vccz L_ml_ok")
        self.budget("L_ml")
        A("L_ml_ok:")
        A("v_max3_f32 v60, v40, v42, v44\nv_max_f32 v60, v60, v46")
        for r in (40, 42, 44, 46, 8):
            A(f"v_sub_f32 v{r}, v{r}, v60")
        for r in (40, 42, 44, 46, 8):
            A(f"v_exp_f32 v{r}, v{r}")
        A("v_mul_f32 v9, v40, v41\nv_fmac_f32 v9, v42, v43\nv_fmac_f32 v9, v44, v45\nv_fmac_f32 v9, v46, v47")
        A("v_rcp_f32 v9, v9\ns_nop 0\nv_mul_f32 v8, v8, v9")
        for r in range(128, 144):
            A(f"v_mul_f32 v{r}, v{r}, v8")
        for k in range(8):
            A(f"v_cvt_pk_bf16_f32 v{128 + k}, v{128 + 2 * k}, v{129 + 2 * k}")
        for k in range(4):
            A(f"ds_write_b64 v6, v[{128 + 2 * k}:{129 + 2 * k}] offset:{512 * k}")
        self.lds_set(L_PRDY, 60, 61, op="ds_add_u32")
        self.stamp(7)
        A(f"s_mov_b32 s71, {self.SV - 4}\ns_mov_b32 s75, {L_QUEUE}\ns_mov_b32 s76, 0")
        A(f"s_lshl1_add_u32 s79, s63, s64\ns_lshl_b32 s79, s79, {self.PSH + 2}\ns_mov_b32 s33, {RP}")
        self.sx(79, [(3, b, self.SM[4 + b]) for b in range(2)])
        perms = "s_waitcnt lgkmcnt(0)\n" + "\n".join(f"v_perm_b32 v{40 + r}, v57, v56, v{16 + r}" for r in range(8))
        A("ds_read_b64 v[56:57], v24\ns_mov_b32 s36, 0")
        A(perms)
        A("L_loop:")
        for sl in range(4):
            X = 64 + 16 * sl
            A(f"s_cmp_le_u32 s71, {self.LA}\ns_cbranch_scc1 L_slow{sl}")
            A(f"L_cont{sl}:")
            A("s_waitcnt vmcnt(12)")
            A(f"ds_read_b64 v[56:57], v{24 + ((sl + 1) & 3)}")
            for t in range(4):
                V = X + 4 * t
                A(f"v_mfma_f32_16x16x16_bf16 v[32:35], v[{V}:{V + 1}], v[{40 + 2 * t}:{41 + 2 * t}], v[32:35]")
                A(f"v_mfma_f32_16x16x16_bf16 v[36:39], v[{V + 2}:{V + 3}], v[{40 + 2 * t}:{41 + 2 * t}], v[36:39]")
            A(f"s_xor_b32 s73, s70, s74\nv_mov_b32 v{24 + sl}, v28\nv_add_u32 v28, v28, v29")
            A(f"s_cmp_gt_u32 s71, 64\ns_cbranch_scc1 L_drain{sl}")
            self.loads(X, 2, 12, 73, self.vw, skip=f's_cmp_le_u32 s71, {self.vlast}' if self.vlast else 36 if self.vopen else None, mid=step(sl, "s_nop 1\n" + perms))
            A("s_add_u32 s70, s70, 0x4000\ns_sub_u32 s71, s71, 1")
            sp, got, dn, rq, la, own = (f"L_{n}{sl}" for n in ("spin", "got", "done", "req", "last", "own"))
            o = [f"L_slow{sl}:",
                 "s_cmp_lg_u32 s71, 0", f"s_cbranch_scc1 {rq}",
                 "v_mov_b32 v60, s75",
                 f"{sp}:",
                 "ds_read_b32 v61, v60", "s_waitcnt lgkmcnt(0)",
                 "v_readfirstlane_b32 s4, v61",
                 "s_nop 0",
                 "s_cmp_lg_u32 s4, 0", f"s_cbranch_scc1 {got}",
                 "s_sub_u32 s82, s82, 1", "s_cmp_lg_u32 s82, 0", f"s_cbranch_scc1 {sp}", "s_endpgm",
                 f"{got}:",
                 "s_add_u32 s75, s75, 4",
                 "s_cmp_eq_u32 s4, 0x80", f"s_cbranch_scc1 {dn}",
                 "s_and_b32 s71, s4, 0x3f", "s_bfe_u32 s72, s4, 0x20008", "s_and_b32 s36, s4, 0x40",
                 "s_and_b32 s70, s4, 0xffffc000", "s_add_u32 s70, s70, s78", "s_mov_b32 s76, 0",
                 "s_bfe_u32 s4, s4, 0x6000e", "s_lshl_b32 s4, s4, 5", "s_lshl_b32 s5, s72, 13",
                 "s_add_u32 s4, s4, s5", "s_add_u32 s4, s4, s81", f"s_add_u32 s4, s4, {L_P}",
                 "v_cmp_eq_u32 vcc, s72, v3", "v_add_u32 v60, s4, v30", "s_mov_b32 m0, s4",
                 "v_cndmask_b32 v28, v31, v60, vcc", "v_cndmask_b32 v29, 0, 32, vcc",
                 "s_cmp_eq_u32 s72, s65", f"s_cbranch_scc1 {own}",
                 "s_lshl_b32 s5, s71, 1", "s_bfm_b64 exec, s5, 0"]
            o += ["v_add_u32 v60, s4, v2", f"s_lshl_b32 s5, s72, {self.PSH}", "s_xor_b32 s5, s5, s79",
                  "v_and_b32 v61, 0x7f, v60", self.vx(61, 59, [(7 + b, self.SM[b]) for b in range(4)], src=60),
                  "v_xor_b32 v61, s5, v61", "buffer_load_dwordx4 v61, s[24:27], s33 offen sc1 lds"]
            o += ["s_mov_b64 exec, -1",
                 f"{own}:",
                 f"s_cmp_le_u32 s71, {self.LA}", f"s_cbranch_scc0 L_cont{sl}",
                 f"{rq}:",
                 "s_cmp_lg_u32 s76, 0", f"s_cbranch_scc1 L_cont{sl}",
                 "s_mov_b32 s76, 1", "s_add_u32 s4, s75, 4",
                 f"v_mov_b32 v60, {L_REQ}", "v_mov_b32 v61, s4",
                 "s_mov_b64 exec, 1", "ds_max_u32 v60, v61", "s_mov_b64 exec, -1",
                 f"s_branch L_cont{sl}",
                 f"{dn}:",
                 "s_mov_b32 s71, 0x80"]
            if self.stamps:
                o += ["s_memrealtime s[92:93]", "s_waitcnt lgkmcnt(0)"]
            o += ["s_barrier",
                  f"s_branch L_cont{sl}",
                  f"L_drain{sl}:",
                  "s_nop 3", perms, "s_add_u32 s71, s71, 1", "s_waitcnt vmcnt(8)",
                  "s_cmp_eq_u32 s71, 0x81", f"s_cbranch_scc1 L_cont{(sl + 1) & 3}", "s_waitcnt vmcnt(4)",
                  "s_cmp_eq_u32 s71, 0x82", f"s_cbranch_scc1 L_cont{(sl + 1) & 3}"]
            if 'last' in (str(self.trigA) + str(self.trigB)):
                o += [f"v_mov_b32 v60, {L_LAST}", "v_mov_b32 v61, 1",
                      "s_mov_b64 exec, 1", "ds_add_u32 v60, v61", "s_mov_b64 exec, -1"]
            o += ["s_waitcnt vmcnt(0)",
                  "s_cmp_eq_u32 s71, 0x83", f"s_cbranch_scc1 L_cont{(sl + 1) & 3}", "s_branch L_exit"]
            self.tail.append("\n".join(o))
        A("s_branch L_loop")
        A("L_exit:")
        if self.steps:
            A(f"s_lshl_b32 s4, s2, 2\ns_add_u32 s4, s4, s3\ns_lshl_b32 s4, s4, 9\ns_add_u32 s4, s4, 0x20000")
            A("v_lshlrev_b32 v60, 3, v0\nbuffer_store_dwordx2 v[62:63], v60, s[24:27], s4 offen\ns_nop 2")
        self.flush_write(32, None)
        A(f"v_mov_b32 v62, {L_FLC}\nv_mov_b32 v63, 1")
        A("s_mov_b64 exec, 1\nds_add_rtn_u32 v62, v62, v63\ns_mov_b64 exec, -1")
        A("s_waitcnt lgkmcnt(0)")
        A("v_readfirstlane_b32 s4, v62")
        self.stamp(5)
        A("s_nop 0\ns_cmp_lg_u32 s4, 3\ns_cbranch_scc1 L_sfin")
        self.combine_sum(128, 11, 80)
        self.stamp(6)
        A("L_sfin:")
        self.write_stamps()
        A("s_endpgm")

    def helper(self):
        A = self.A
        A("s_setprio 3")
        A("s_sub_u32 s66, s3, 4")
        A("s_mov_b32 s29, 0xffffff00\ns_mov_b32 s30, 0x0c0c0400\ns_mov_b32 s31, 0x04000c0c")
        A("s_cmp_ge_u32 s66, 2\ns_cbranch_scc1 L_noprod")
        A("s_cmp_eq_u32 s66, 0\ns_cbranch_scc1 L_prio_b\ns_setprio 2\nL_prio_b:")
        A("s_cselect_b32 s12, s46, s36\ns_cselect_b32 s13, s47, s37")
        self.srd_sel(8, 42, 52, 0x400000)
        A("s_and_b32 s13, s13, 0xffff\ns_mov_b32 s14, 0x2000\ns_mov_b32 s15, 0x20000")
        A("v_lshrrev_b32 v3, 4, v0\nv_and_b32 v4, 7, v0")
        A("v_lshlrev_b32 v5, 10, v4\nv_lshl_add_u32 v5, v3, 4, v5")
        A("s_lshl_b32 s72, s65, 8")
        A("v_lshrrev_b32 v6, 3, v0\nv_lshlrev_b32 v6, 13, v6")
        A("v_and_b32 v7, 1, v3\nv_lshlrev_b32 v7, 1, v7\nv_xor_b32 v7, v7, v4")
        A("v_lshl_add_u32 v6, v7, 4, v6\nv_xor_b32 v7, 64, v6")
        A("s_lshr_b32 s70, s62, 2")
        A("s_lshl_b32 s73, s65, 20\ns_lshl_b32 s4, s63, 8\ns_add_u32 s73, s73, s4")
        A("s_lshl_b32 s4, s70, 7\ns_add_u32 s73, s73, s4")
        A(f"s_lshl_b32 s74, s66, 14\ns_add_u32 s74, s74, {L_ST}")
        A("s_mov_b32 m0, s74")
        for ks in range(4):
            A(f"buffer_load_dwordx4 v[{16 + 4 * ks}:{19 + 4 * ks}], v5, s[12:15], s72 offen offset:{64 * ks}")
        for i in range(16):
            if 'nowq' in self.dbg:
                A("s_mov_b32 s73, 0x10000000")
            A(f"buffer_load_dwordx4 v{6 + (i & 1)}, s[8:11], s73 offen {self.nt} lds")
            if i < 15:
                A("s_add_u32 m0, m0, 0x400\ns_add_u32 s73, s73, 0x10000")
        A("s_barrier")
        A("v_bfe_u32 v4, v0, 2, 2\nv_and_b32 v5, 3, v0")
        A("v_lshl_add_u32 v6, v3, 3, v4\nv_lshlrev_b32 v6, 7, v6\nv_lshl_add_u32 v6, v5, 3, v6")
        A("v_lshrrev_b32 v4, 1, v4\nv_and_b32 v5, 1, v3\nv_lshl_add_u32 v4, v5, 1, v4")
        A("v_lshl_add_u32 v6, v4, 5, v6\nv_add_u32 v8, s74, v6")
        for nb in range(1, 4):
            A(f"v_xor_b32 v{8 + nb}, {nb << 5}, v8")
        P, M = self.PSH, self.M
        PQ, QM = P, M
        if self.qlin == 1:
            PQ, QM = 12, lambda lam: self.M(lam, [128 << b for b in range(5)] + [1 << 20])
        if self.qlin == 2:
            PQ, QM = 8, lambda lam: self.M(lam, [128, 1 << 16, 1 << 17, 1 << 18, 1 << 19, 1 << 20])
        if self.qy:
            QM0 = QM
            QM = lambda lam: QM0(lam & 31)
        A("v_and_b32 v4, 7, v0\nv_lshlrev_b32 v4, 4, v4")
        A(self.vx(4, 5, [(3, QM(1)), (5, QM(4)), (4, QM(8))]))
        A(f"s_lshl_b32 s5, s2, {PQ}\ns_xor_b32 s5, s5, {QM(48):#x}")
        self.sx(5, [(66, 0, QM(16))])
        A(f"v_xor_b32 v4, s5, v4\nv_xor_b32 v5, {QM(2):#x}, v4\ns_mov_b32 s72, {RY}")
        A("s_mov_b32 s32, 0\ns_mov_b32 s33, -1")
        for ks in range(4):
            A(f"s_waitcnt vmcnt({12 - 4 * ks})")
            for nb in range(4):
                for hf in range(2):
                    r = 64 + 16 * ks + 4 * nb + 2 * hf
                    A(f"ds_read_b64_tr_b16 v[{r}:{r + 1}], v{8 + nb} offset:{ks * 4096 + hf * 512}")
            A("s_waitcnt lgkmcnt(0)")
            for nb in range(4):
                r = 64 + 16 * ks + 4 * nb
                c = "0" if ks == 0 else f"v[{32 + 4 * nb}:{35 + 4 * nb}]"
                A(f"v_mfma_f32_16x16x32_bf16 v[{32 + 4 * nb}:{35 + 4 * nb}], v[{16 + 4 * ks}:{19 + 4 * ks}], v[{r}:{r + 3}], {c}")
        self.stamp(4)
        self.lds_wait(L_TAG, "lg", 0, 6, 7, sleep=0, sd=28)
        for r in range(4):
            A(f"s_bfe_u32 s4, s28, {(8 << 16) | (8 * r):#x}\nv_mov_b32 v{12 + r}, s4")
        for u in range(2):
            for r in range(4):
                A(f"v_cndmask_b32 v{48 + 4 * u + r}, v{32 + 4 * r + u}, v{34 + 4 * r + u}, s[32:33]")
        for u in range(2):
            for r in range(4):
                A(f"v_and_or_b32 v{48 + 4 * u + r}, v{48 + 4 * u + r}, s29, v{12 + r}")
        if 'noqw' in self.dbg:
            A("s_mov_b32 s72, 0x10000000")
        A("buffer_store_dwordx4 v[48:51], v4, s[24:27], s72 offen sc1")
        A("buffer_store_dwordx4 v[52:55], v5, s[24:27], s72 offen sc1")
        self.stamp(1)
        A("s_cmp_lg_u32 s66, 0\ns_cbranch_scc1 L_h_b3")
        def qcons(d, t):
            A(f"v_and_b32 v{d}, 7, v0\nv_lshlrev_b32 v{d}, 4, v{d}")
            A(self.vx(d, t, [(3, QM(1)), (4, 4 << PQ), (5, 1 << PQ)]))
            A(f"v_and_b32 v6, 15, v0\nv_lshlrev_b32 v6, 1, v6")
            A(self.vx(6, t, [(4, 128), (5, 64)]))
        qcons(8, 7)
        A(f"s_lshl_b32 s5, s63, {PQ + 3}\ns_xor_b32 s5, s5, {QM(48):#x}")
        self.sx(5, [(65, 0, QM(2)), (65, 1, QM(4)), (64, 0, QM(8))])
        A(f"v_xor_b32 v8, s5, v8\nv_xor_b32 v9, {2 << PQ:#x}, v8")
        NP = self.npoll
        if 'nopoll' in self.dbg:
            A("s_mov_b32 s72, 0x10000000")

        def issue(k):
            A(f"buffer_load_dwordx4 v[{64 + 8 * k}:{67 + 8 * k}], v8, s[24:27], s72 offen sc1")
            A(f"buffer_load_dwordx4 v[{68 + 8 * k}:{71 + 8 * k}], v9, s[24:27], s72 offen sc1")
        for k in range(NP):
            issue(k)
            if k < NP - 1:
                A(f"s_sleep {self.pollgap}")
        A("L_qp_loop:")
        for k in range(NP):
            if self.stamps:
                A("s_add_u32 s98, s98, 1")
            A(f"s_waitcnt vmcnt({2 * (NP - 1)})")
            self.tagdiff(64 + 8 * k, "s28", 20, 22, True)
            self.tagdiff(68 + 8 * k, "s28", 20, 22, False)
            A(f"v_cmp_ne_u32 vcc, 0, v22\ns_cbranch_vccz L_qp_ok{k}")
            if 'noqw' in self.dbg or 'nopoll' in self.dbg:
                A(f"s_branch L_qp_ok{k}")
            issue(k)
        self.budget("L_qp_loop")
        for k in range(NP):
            A(f"L_qp_ok{k}:")
            self.qrow(64 + 8 * k, 6, L_QOWN)
            if k < NP - 1:
                A("s_branch L_qp_ok")
        A("L_qp_ok:")
        self.lds_set(L_QOWN_F, 20, 21)
        self.stamp(2)
        self.line8(6, 7)
        A("v_bfe_u32 v7, v0, 2, 2\nv_lshlrev_b32 v7, 3, v7")
        A(f"s_lshl3_add_u32 s4, s68, s67\ns_lshl2_add_u32 s4, s4, s69\ns_lshl_b32 s4, s4, {P}")
        A(f"s_xor_b32 s5, s4, {M(8):#x}\nv_xor_b32 v6, s5, v6\ns_xor_b32 s5, s4, {M(16):#x}\nv_xor_b32 v7, s5, v7")
        A(f"s_mov_b32 s72, {RR}")
        self.lds_wait(L_FLA, "eq", 4, 20, 21, sleep=8)
        self.combine(128, 6, 7, 72, 72)
        self.lds_wait(L_CLR_F, "lg", 0, 20, 21, sleep=8)
        A("s_mov_b32 s6, 1")
        A("s_waitcnt vmcnt(0)")
        if 'nogrid' not in self.dbg:
            A("s_atomic_add s6, s[58:59], 4")
        self.lds_wait(L_PROG, "lg", 0, 20, 21, sleep=8)
        A("s_branch L_grid_ok" if 'nogrid' in self.dbg else "s_branch L_grid1")
        A("L_grid:")
        A(f"s_sleep {self.sleep_grid}")
        A("L_grid1:")
        A("global_load_dword v12, v2, s[58:59] offset:4 sc1")
        A("s_waitcnt vmcnt(0)\nv_readfirstlane_b32 s4, v12\ns_nop 0")
        A("s_cmp_ge_u32 s4, 256\ns_cbranch_scc1 L_grid_ok")
        A("s_sub_u32 s82, s82, 63")
        A("s_cmp_gt_i32 s82, 0\ns_cbranch_scc1 L_grid\ns_endpgm")
        A("L_grid_ok:")
        NS = self.NS
        A(f"s_lshl1_add_u32 s73, s63, s64\ns_lshl_b32 s73, s73, 8\ns_add_u32 s73, s73, {CNT}")
        A(f"s_lshl_b32 s4, s65, 13\ns_add_u32 s4, s4, {L_P}")
        A("v_lshlrev_b32 v5, 4, v0\nv_add_u32 v6, s4, v5")
        self.brec_addr(96, 7, 72)
        A(f"s_mov_b32 s72, {RP}")
        for k in range(1, 8):
            A(f"v_xor_b32 v{96 + k}, {M(8 * k):#x}, v96")
        self.lds_wait(L_PRDY, "eq", 4, 20, 21, sleep=8)
        for k in range(8):
            A(f"ds_read_b128 v[{64 + 4 * k}:{67 + 4 * k}], v6 offset:{1024 * k}")
        A("s_waitcnt lgkmcnt(0)")
        for half in (() if self.nopub else (1, 0)):
            if half == 0:
                if self.SV >= 32:
                    break
                A(f"s_mov_b64 exec, -1\ns_lshl_b64 exec, exec, {2 * self.SV}")
            elif self.SV > 32:
                A(f"s_lshl_b64 exec, exec, {2 * self.SV - 64}")
            for w in range(4):
                k = 2 * w + half
                A(f"buffer_store_dwordx4 v[{64 + 4 * k}:{67 + 4 * k}], v{96 + k}, s[24:27], s72 offen {self.ppol}")
        A("s_mov_b64 exec, -1")
        A("s_lshl_b32 s78, s65, 3\ns_lshl_b32 s70, 0x80, s78\ns_mov_b32 s76, s70")
        A("s_waitcnt vmcnt(0)")
        A("s_atomic_add s76, s[60:61], s73 glc")
        A("s_lshl_b32 s74, s64, 7\ns_add_u32 s74, s74, s63\ns_lshl_b32 s74, s74, 20")
        A(f"s_add_u32 s74, s74, {self.SV << 14}")
        A(f"s_mov_b32 s75, {L_QUEUE}\nv_mov_b32 v3, {L_REQ}")
        A("s_waitcnt lgkmcnt(0)\ns_add_u32 s76, s76, s70")
        A("L_cl:")
        A("s_mov_b32 s70, 0\ns_mov_b32 s71, 0")
        for j in range(4):
            A(f"s_bfe_u32 s4, s76, {0x70000 + 8 * j:#x}\ns_min_u32 s4, s4, {NS}\ns_sub_u32 s4, {NS}, s4\ns_add_u32 s70, s70, s4")
            A(f"s_bitcmp1_b32 s76, {8 * j + 7}\ns_cselect_b32 s4, s4, 0")
            A(f"s_cmp_eq_u32 s65, {j}\ns_cselect_b32 s5, 0x104, 4\ns_mul_i32 s4, s4, s5\ns_or_b32 s4, s4, {j}")
            A("s_max_u32 s71, s71, s4")
        A("s_mov_b32 s4, 0x80\ns_cmp_eq_u32 s70, 0\ns_cbranch_scc1 L_post")
        A(f"s_cmp_le_u32 s70, {self.vopen}\ns_cselect_b32 s35, 0x40, 0")
        A(f"s_mul_i32 s70, s70, {self.gm}\ns_lshr_b32 s70, s70, 5\ns_max_u32 s70, s70, {self.nmin}\ns_min_u32 s70, s70, {self.nmax}")
        A("s_bfe_u32 s4, s71, 0x60002\ns_min_u32 s70, s70, s4")
        A("s_and_b32 s79, s71, 3\ns_lshl_b32 s78, s79, 3\ns_lshl_b32 s71, s70, s78")
        self.lds_wait(None, "gt", "s75", 3, 4, sleep=self.clsleep)
        A("s_mov_b32 s76, s71\ns_cmp_lg_u32 s70, 0\ns_cbranch_scc1 L_cl1\ns_sleep 32")
        A("L_cl1:")
        A("s_atomic_add s76, s[60:61], s73 glc")
        if self.stamps:
            A("s_add_u32 s98, s98, 0x1000000")
        A("s_mul_i32 s5, s79, 0x2000100\ns_add_u32 s5, s5, s74\ns_add_u32 s5, s5, s35")
        A("s_waitcnt lgkmcnt(0)")
        A(f"s_lshr_b32 s4, s76, s78\ns_and_b32 s4, s4, 0x7f\ns_add_u32 s76, s76, s71\ns_min_u32 s4, s4, {NS}")
        A(f"s_sub_u32 s6, {NS}, s4\ns_min_u32 s70, s70, s6\ns_lshl_b32 s4, s4, 14\ns_add_u32 s4, s4, s5\ns_add_u32 s4, s4, s70")
        A("s_cmp_lg_u32 s70, 0\ns_cbranch_scc1 L_post")
        A("s_sub_u32 s82, s82, 15\ns_cmp_gt_i32 s82, 0\ns_cbranch_scc1 L_cl\ns_endpgm")
        A("L_post:")
        A("v_mov_b32 v5, s75\nv_mov_b32 v6, s4")
        A("s_mov_b64 exec, 1\nds_write_b32 v5, v6\ns_mov_b64 exec, -1")
        A("s_add_u32 s75, s75, 4")
        A("s_cmp_lg_u32 s4, 0x80\ns_cbranch_scc1 L_cl")
        A("s_branch L_h_b3")
        A("L_noprod:")
        A("s_cmp_lg_u32 s66, 2\ns_cbranch_scc1 L_w7")
        A("s_mul_i32 s34, s84, 0x9e3779b1\ns_or_b32 s34, s34, 1")
        A("s_mov_b32 s32, s34\ns_mov_b32 s33, 0\ns_lshl_b32 s4, s63, 3")
        A("s_atomic_cmpswap s[32:33], s[58:59], s4 glc")
        A("s_barrier")
        A("s_waitcnt lgkmcnt(0)")
        A("s_cmp_eq_u32 s32, 0\ns_cselect_b32 s28, s34, s32")
        self.lds_set(L_TAG, 20, 21, val="s28")
        self.stamp(4)
        A("s_lshl_b32 s75, s68, 5")
        A("s_branch L_gather")
        A("L_w7:")
        A("s_barrier")
        if self.codepf:
            A("s_cmp_ge_u32 s63, 2\ns_cbranch_scc1 L_nopf")
            A("s_getpc_b64 s[4:5]")
            A("L_pc:")
            A(f"s_sub_u32 s4, s4, L_pc-{NAME}_kernel\ns_subb_u32 s5, s5, 0")
            A("s_lshl_b32 s6, s63, 13")
            A("v_lshlrev_b32 v3, 7, v0\nv_mov_b32 v5, s5\nv_add_u32 v3, s6, v3")
            A(f"v_min_u32 v3, L_code_end-{NAME}_kernel-4, v3")
            A("v_add_co_u32 v4, vcc, s4, v3\ns_nop 1\nv_addc_co_u32 v5, vcc, 0, v5, vcc")
            A("global_load_dword v10, v[4:5], off")
            A("L_nopf:")
        self.lds_wait(L_QOWN_F, "lg", 0, 20, 21, sleep=4)
        self.lds_wait(L_TAG, "lg", 0, 6, 7, sleep=0, sd=28)
        A("s_branch L_clear")
        A("L_gather:")
        qcons(24, 7)
        A(f"s_lshl_b32 s5, s68, {PQ + 5}\ns_xor_b32 s5, s5, {QM(32):#x}\ns_mov_b32 s72, {RY}")
        self.sx(5, [(67, b, QM(2 << b)) for b in range(3)])
        A("v_xor_b32 v24, s5, v24")
        for k in range(1, 8):
            A(f"v_xor_b32 v{24 + k}, {((k >> 1) << 3 | (k & 1) << 1) << PQ:#x}, v24")
        for j in range(4):
            A(f"v_mov_b32 v{12 + j}, s75\ns_add_u32 s75, s75, 8")
        self.lds_wait(L_QOWN_F, "lg", 0, 20, 21, sleep=4)
        if 'noqw' in self.dbg or 'nopoll' in self.dbg:
            A("s_mov_b32 s72, 0x10000000")
        A("L_g_loop:")
        for j in range(4):
            A(f"global_load_dword v{16 + j}, v{12 + j}, s[58:59] sc1")
            A(f"buffer_load_dwordx4 v[{64 + 8 * j}:{67 + 8 * j}], v{24 + 2 * j}, s[24:27], s72 offen sc1")
            A(f"buffer_load_dwordx4 v[{68 + 8 * j}:{71 + 8 * j}], v{25 + 2 * j}, s[24:27], s72 offen sc1")
        if self.stamps:
            A("s_add_u32 s98, s98, 1")
        A("s_waitcnt vmcnt(0)")
        for j in range(4):
            self.tagdiff(64 + 8 * j, f"v{16 + j}", 20, 22, j == 0)
            self.tagdiff(68 + 8 * j, f"v{16 + j}", 20, 22, False)
        A("v_and_b32 v16, v16, v17\nv_and_b32 v18, v18, v19\nv_and_b32 v16, v16, v18")
        A("v_not_b32 v16, v16\nv_and_or_b32 v22, v16, 1, v22")
        A("v_cmp_ne_u32 vcc, 0, v22\ns_cbranch_vccz L_g_ok")
        if 'noqw' in self.dbg or 'nopoll' in self.dbg:
            A("s_branch L_g_ok")
        self.budget("L_g_loop")
        A("L_g_ok:")
        for j in range(4):
            self.qrow(64 + 8 * j, 6, L_QA + 256 * j)
        self.lds_set(L_QA_F, 20, 21)
        self.stamp(2)
        A("s_branch L_h_b3")
        A("L_clear:")
        self.stamp(2)
        for r in range(20, 24):
            A(f"v_mov_b32 v{r}, -1")
        if self.yclear and self.clin:
            A(f"v_lshlrev_b32 v24, 4, v0\ns_lshl_b32 s72, s2, 12\ns_add_u32 s72, s72, {RY}")
            for k in range(4):
                A(f"buffer_store_dwordx4 v[20:23], v24, s[24:27], s72 offen offset:{1024 * k} {self.cpol}")
        elif self.yclear:
            self.line8(24, 25)
            A(f"s_lshl_b32 s4, s2, {P}\nv_xor_b32 v24, s4, v24\ns_mov_b32 s72, {RY}")
            for k in range(4):
                if k < 2 and self.yclear == 2:
                    continue
                A(f"v_xor_b32 v{30 + k}, {M(8 * k):#x}, v24")
                A(f"buffer_store_dwordx4 v[20:23], v{30 + k}, s[24:27], s72 offen {self.cpol}")
        self.brec_addr(26, 27, 80)
        if 'noclr' not in self.dbg:
            A("buffer_store_dwordx4 v[20:23], v26, s[24:27], s80 offen sc1")
        A("s_cmp_lg_u32 s65, 0\ns_cbranch_scc1 L_clear2")
        A(f"s_lshl_b32 s72, s63, 1\ns_add_u32 s72, s72, s64\ns_lshl_b32 s72, s72, 8\ns_add_u32 s72, s72, {CNT}")
        A("s_mov_b64 exec, 1")
        A("buffer_store_dword v2, v2, s[24:27], s72 offen sc1")
        A("s_mov_b64 exec, -1")
        A("L_clear2:")
        A("s_waitcnt vmcnt(0)")
        self.lds_set(L_CLR_F, 28, 29)
        A("L_h_b3:")
        A("s_setprio 3")
        A("s_lshr_b32 s70, s66, 1\ns_xor_b32 s70, s70, 1\ns_and_b32 s71, s66, 1")
        A("s_cmp_eq_u32 s70, 1")
        self.srd_sel(8, 44, 54, 0x400000)
        self.srd(12, 56, 0x4000)
        A("v_lshrrev_b32 v4, 3, v0\nv_and_b32 v5, 7, v0\nv_lshlrev_b32 v4, 10, v4\nv_lshl_add_u32 v4, v5, 4, v4")
        for k in range(1, 4):
            A(f"v_xor_b32 v{4 + k}, {k << 5}, v4")
        A("s_lshl_b32 s72, s63, 17\ns_lshl_b32 s4, s71, 16\ns_add_u32 s72, s72, s4")
        A("s_lshl_b32 s4, s62, 7\ns_add_u32 s72, s72, s4")
        A(f"s_lshl_b32 s73, s70, 14\ns_add_u32 s73, s73, {L_ST}")
        A("s_lshl_b32 s4, s71, 13\ns_add_u32 s4, s4, s73\ns_mov_b32 m0, s4")
        A("v_lshrrev_b32 v3, 4, v0\nv_bfe_u32 v12, v0, 2, 2\nv_and_b32 v13, 3, v0")
        A("v_lshl_add_u32 v8, v12, 3, v3\nv_lshlrev_b32 v8, 7, v8\nv_lshl_add_u32 v8, v13, 3, v8")
        A("v_lshl_add_u32 v8, v12, 5, v8\nv_add_u32 v8, s73, v8")
        for nb in range(1, 4):
            A(f"v_xor_b32 v{8 + nb}, {nb << 5}, v8")
        A(f"v_lshlrev_b32 v136, {P}, v13\nv_lshl_add_u32 v15, v3, {P + 2}, v136\nv_lshl_add_u32 v136, v3, 4, v136")
        A("s_cmp_eq_u32 s70, 1\ns_cbranch_scc1 L_adB")
        A(f"s_lshr_b32 s5, s63, 2\ns_lshl1_add_u32 s5, s5, s71\ns_lshl_b32 s5, s5, {P + 4}")
        A(f"s_and_b32 s4, s63, 3\ns_lshl_b32 s4, s4, 3\ns_xor_b32 s4, s4, s5\ns_xor_b32 s4, s4, {M(16):#x}")
        A(f"v_xor_b32 v15, s4, v15\ns_xor_b32 s5, s5, {M(8):#x}")
        self.sx(5, [(63, 0, 64), (63, 1, M(1))])
        A(f"v_lshl_add_u32 v136, v12, {P + 2}, v136\ns_branch L_adC")
        A("L_adB:")
        A(f"s_lshl1_add_u32 s5, s63, s71\ns_lshl_b32 s5, s5, {P + 2}")
        A(self.vx(136, 137, [(2, 64), (3, M(1))]))
        A("L_adC:")
        A(f"v_xor_b32 v136, s5, v136\ns_mov_b32 s74, {RR}\ns_mov_b32 s76, {RY}")
        for ks in range(1, 4):
            A(f"v_xor_b32 v{136 + ks}, {M(2 * ks):#x}, v136")
        self.line8(60, 61)
        A(f"s_lshl_b32 s5, s2, {P}")
        self.sx(5, [(71, 0, M(8)), (70, 0, M(16))])
        A("v_xor_b32 v60, s5, v60")
        A(f"v_lshrrev_b32 v61, 2, v0\nv_lshlrev_b32 v61, {P + 3}, v61\nv_lshl_add_u32 v61, v13, 4, v61")
        A(f"s_lshl_b32 s5, s62, {P}")
        self.sx(5, [(63, 0, 64)] + [(63, 1 + b, M(1 << b)) for b in range(4)] + [(70, 0, M(16))])
        A(f"v_xor_b32 v61, s5, v61\nv_xor_b32 v14, {128 << P:#x}, v61")
        A("s_lshr_b32 s4, s63, 2\ns_lshl_b32 s79, s4, 11\ns_and_b32 s4, s63, 3")
        A("s_lshl_b32 s5, s4, 3\ns_add_u32 s79, s79, s5\ns_lshl_b32 s5, s70, 10\ns_add_u32 s79, s79, s5")
        A("s_lshl_b32 s5, s62, 7\ns_add_u32 s79, s79, s5")
        A("v_lshlrev_b32 v62, 5, v3\nv_lshl_add_u32 v62, v13, 1, v62")
        A(f"s_lshl_b32 s4, s70, 2\ns_add_u32 s4, s4, {L_WOC}\nv_mov_b32 v63, s4\nv_mov_b32 v59, 1")
        A("s_xor_b32 s28, s28, 1")
        for r in range(4):
            A(f"s_bfe_u32 s4, s28, {(8 << 16) | (8 * r):#x}\nv_mov_b32 v{128 + r}, s4")
        A("v_lshrrev_b32 v134, 2, v0\nv_lshlrev_b32 v134, 3, v134")
        A("s_waitcnt lgkmcnt(0)")
        A("s_barrier")
        self.stamp(5)
        if self.trigA or self.trigB:
            adr = lambda t: {None: L_PROG, 'last': L_LAST, 'flush': L_FLC}[t[0] if t else None]
            thr = lambda t: t[1] if t else 0
            A(f"s_cmp_eq_u32 s70, 1\ns_cselect_b32 s4, {adr(self.trigB)}, {adr(self.trigA)}")
            A(f"s_cselect_b32 s5, {thr(self.trigB)}, {thr(self.trigA)}\nv_mov_b32 v58, s4")
            self.lds_wait(None, "ge", "s5", 58, 57, sleep=1)
        A("global_load_dword v132, v134, s[58:59] sc1\nglobal_load_dword v133, v134, s[58:59] offset:128 sc1")
        for i in range(8):
            A(f"buffer_load_dwordx4 v{4 + (i & 3)}, s[8:11], s72 offen {self.nt} lds")
            if i < 7:
                A("s_add_u32 m0, m0, 0x400\ns_add_u32 s72, s72, 0x2000")
        A("s_waitcnt vmcnt(0)")
        A("s_mov_b64 exec, 1\nds_add_u32 v63, v59\ns_mov_b64 exec, -1")
        A("v_xor_b32 v132, 1, v132\nv_xor_b32 v133, 1, v133")
        A("L_wo_spin:")
        A("ds_read_b32 v59, v63\ns_waitcnt lgkmcnt(0)\nv_readfirstlane_b32 s4, v59\ns_nop 0")
        A("s_cmp_eq_u32 s4, 2\ns_cbranch_scc1 L_wo_ok")
        self.budget("L_wo_spin")
        A("L_wo_ok:")
        for ks in range(4):
            if ks >= 1:
                A("s_waitcnt lgkmcnt(7)")
            for nb in range(4):
                for hf in range(2):
                    r = 64 + 16 * ks + 4 * nb + 2 * hf
                    A(f"ds_read_b64_tr_b16 v[{r}:{r + 1}], v{8 + nb} offset:{ks * 4096 + hf * 512}")
        self.stamp(3)
        if self.h1wait:
            A("s_cmp_eq_u32 s70, 0\ns_cbranch_scc1 L_h0")
            self.lds_wait(L_FLC, "ge", self.h1wait, 58, 57, sleep=1)
            A("L_h0:")
        A("s_cmp_eq_u32 s70, 1\ns_cbranch_scc1 L_h1")
        A("buffer_load_dwordx2 v[32:33], v15, s[24:27], s74 offen sc1")
        A("L_h1:")
        for ks in range(4):
            A(f"buffer_load_dwordx4 v[{16 + 4 * ks}:{19 + 4 * ks}], v{136 + ks}, s[24:27], s74 offen sc1")
        if self.stamps:
            A("s_add_u32 s98, s98, 0x100")
        A("s_waitcnt vmcnt(0)")
        A("v_max3_u32 v34, v16, v17, v18\nv_max3_u32 v35, v19, v20, v21\nv_max3_u32 v36, v22, v23, v24")
        A("v_max3_u32 v37, v25, v26, v27\nv_max3_u32 v34, v34, v28, v29\nv_max3_u32 v35, v35, v30, v31")
        A("v_max3_u32 v34, v34, v35, v37\nv_max_u32 v34, v34, v36")
        A("v_cmp_eq_u32 vcc, -1, v34\ns_cbranch_vccz L_h1_ok")
        self.budget("L_h1")
        A("L_h1_ok:")
        A("s_waitcnt lgkmcnt(0)")
        for ks in range(4):
            for nb in range(4):
                r = 64 + 16 * ks + 4 * nb
                c = "0" if ks == 0 else f"v[{40 + 4 * nb}:{43 + 4 * nb}]"
                A(f"v_mfma_f32_16x16x32_bf16 v[{40 + 4 * nb}:{43 + 4 * nb}], v[{16 + 4 * ks}:{19 + 4 * ks}], v[{r}:{r + 3}], {c}")
        A("s_cmp_eq_u32 s70, 0\ns_cbranch_scc1 L_wgt")
        A("s_nop 3")
        for nb in range(4):
            A(f"v_add_f32 v{36 + nb}, v{40 + 4 * nb}, v{41 + 4 * nb}")
        for s in range(2, 4):
            for nb in range(4):
                A(f"v_add_f32 v{36 + nb}, v{36 + nb}, v{40 + 4 * nb + s}")
        A("s_branch L_ysto")
        A("L_wgt:")
        q1 = "quad_perm:[1,0,3,2] row_mask:0xf bank_mask:0xf"
        q2 = "quad_perm:[2,3,0,1] row_mask:0xf bank_mask:0xf"
        A(f"v_max_f32_dpp v34, v32, v32 {q1}\ns_nop 1\nv_max_f32_dpp v35, v34, v34 {q2}")
        A("v_sub_f32 v32, v32, v35\nv_exp_f32 v32, v32\ns_nop 0\nv_mul_f32 v33, v33, v32\ns_nop 1")
        A(f"v_add_f32_dpp v34, v33, v33 {q1}\ns_nop 1\nv_add_f32_dpp v35, v34, v34 {q2}")
        A("v_rcp_f32 v35, v35\ns_nop 0\nv_mul_f32 v32, v32, v35\ns_nop 1")
        for s in range(4):
            for nb in range(4):
                op = "v_mul_f32_dpp" if s == 0 else "v_fmac_f32_dpp"
                A(f"{op} v{36 + nb}, v32, v{40 + 4 * nb + s} quad_perm:[{s},{s},{s},{s}] row_mask:0xf bank_mask:0xf")
        A("L_ysto:")
        for nb in range(4):
            A(f"v_and_or_b32 v{36 + nb}, v{36 + nb}, s29, v{128 + nb}")
        A(f"buffer_store_dwordx4 v[36:39], v60, s[24:27], s76 offen {self.ypol}")
        self.stamp(6)
        A("s_cmp_lg_u32 s71, 0\ns_cbranch_scc1 L_hfin")
        A("L_h2:")
        A("buffer_load_dwordx4 v[16:19], v61, s[24:27], s76 offen sc1")
        A("buffer_load_dwordx4 v[20:23], v14, s[24:27], s76 offen sc1")
        if self.stamps:
            A("s_add_u32 s98, s98, 0x10000")
        A("s_waitcnt vmcnt(0)")
        self.tagdiff(16, "v132", 24, 26, True)
        self.tagdiff(20, "v133", 24, 26, False)
        A("v_cmp_ne_u32 vcc, 0, v26\ns_cbranch_vccz L_h2_ok")
        self.budget("L_h2")
        A("L_h2_ok:")
        for r in range(8):
            A(f"v_and_b32 v{16 + r}, s29, v{16 + r}")
        for r in range(4):
            A(f"v_add_f32 v{16 + r}, v{16 + r}, v{20 + r}")
        A("s_nop 1\nv_permlane32_swap_b32 v16, v18\nv_permlane32_swap_b32 v17, v19\ns_nop 0")
        A("v_add_f32 v16, v16, v18\nv_add_f32 v17, v17, v19")
        A("s_nop 1\nv_permlane16_swap_b32 v16, v17\ns_nop 0\nv_add_f32 v16, v16, v17\ns_nop 1")
        A("v_add_f32_dpp v17, v16, v16 row_ror:4 row_mask:0xf bank_mask:0xf\ns_nop 1")
        A("v_add_f32_dpp v16, v17, v17 row_ror:8 row_mask:0xf bank_mask:0xf")
        A("v_cvt_pk_bf16_f32 v16, v16, v16")
        A("s_mov_b32 exec_lo, 0x000f000f\ns_mov_b32 exec_hi, 0x000f000f")
        A("buffer_store_short v16, v62, s[12:15], s79 offen")
        if self.calib is not None:
            wg, k = self.calib
            A(f"s_cmp_lg_u32 s2, {wg}\ns_cbranch_scc1 L_cal_end\ns_cmp_lg_u32 s66, 0\ns_cbranch_scc1 L_cal_end")
            if k == 'end':
                A("s_memrealtime s[6:7]\ns_waitcnt lgkmcnt(0)\ns_sub_u32 s5, s6, s84")
            elif k is None:
                A("s_mov_b32 s5, 0")
            else:
                A(f"s_sub_u32 s5, s{84 + 2 * k}, s84")
            A("s_add_u32 s5, s5, 15000")
            A("L_cal:\ns_memrealtime s[6:7]\ns_waitcnt lgkmcnt(0)\ns_sub_u32 s6, s6, s84\ns_cmp_lt_u32 s6, s5\ns_cbranch_scc1 L_cal")
            A("L_cal_end:")
        if self.stamps:
            A("s_cmp_lg_u32 s66, 0\ns_cbranch_scc1 L_hfin")
            A("s_waitcnt vmcnt(0)")
            self.write_stamps(with_main=True)
            A("s_endpgm")
        A("L_hfin:")
        self.write_stamps()


if __name__ == "__main__":
    out = sys.argv[1]
    kw = eval("dict(" + (sys.argv[2] if len(sys.argv) > 2 else "") + ")")
    open(out, "w").write(G(**kw).gen())
```

```python
import sys, math, struct, re

NAME = "concat_heads__sliding_block_cached__mha_block_cached__decode"
REF = f"cdna_kernels/{NAME}.s.ref"

XR, BD, RY, RR, WSEND = 0x280000, 0x290000, 0x600000, 0x800000, 0xa00000
STAMP = 0x10000
L_QOWN_F, L_PRG, L_CTL, L_WOC = 0, 4, 8, 12
L_LOC, L_QA_F, L_TAG, L_FLA = 20, 24, 32, 36
L_ML, L_SCH = 0x40, 0x60
L_QOWN, L_QA = 0x400, 0x500
L_FL = 0x1000
L_ST = 0x4000
L_SC = L_ST
L_P = 0xC000
L_WOA, L_WOB = 0xE400, 0x8000
LDS_SIZE = 0x12400


def f2u(x):
    return struct.unpack("<I", struct.pack("<f", x))[0]


CSC = 128 ** -0.5 * math.log2(math.e)


class G:
    def __init__(self, **kw):
        o = dict(stamps=False, steps=False, calib=None, dbg=(), nt="nt", codepf=True, npoll=4, pollgap=16,
                 lds=LDS_SIZE, xs=((3, 18), (6, 19)), xa=((3, 14),), aforce=6, qlin=2, tdel=4, tsl=4, renum=0, h1mask=1,
                 scat=(15, 16, 17, 18, 19, 20), pord='RKV', w=(4, 4, 4, 4), thr=None, kw=None, vw=None,
                 ptail=1, aopen=1, sopen=1, vlast=0, hi=(5, 5, 5, 5), lo=(3, 3, 3, 3), apre=40,
                 chk=(), bias=0, gup=7, gdn=6, dead=8, rank=7, force=None, cpol='', arec=1, csl=2, wob=None, woa=None, adel=0,
                 sch=((10, 5, ''), (22, 5, 'pa'), (40, 4, 'pa'), (56, 3, 'pa'), (76, 3, 'a'), (92, 3, 'pa'), (108, 3, 'pa')), tu=10, td=40, to=60, kap=0.99, early=10, tat=0, trigA=500, trigB=500, ptrig=504, pdel=16, ypre=1, xat=8, msl=16, hmaj=0, qpol='sc1', qpre=None, qmap=None, tpre='', tpre2='', tat2=200,
                 wb=(12, 13), p0=None)
        assert set(kw) <= set(o), set(kw) - set(o)
        o.update(kw)
        self.__dict__.update(o)
        self.thr, self.kw, self.vw = self.thr or self.w, self.kw or self.w, self.vw or self.w
        comp = {15: (7, 8), 16: (9,), 17: (10,), 18: (11,), 19: (10, 14), 20: (8, 12)}
        if self.scat:
            self.PSH, self.SM = 7, [sum(1 << c for c in comp[b]) | 1 << b for b in self.scat]
        else:
            self.PSH, self.SM = 13, [128 << b for b in range(6)]
        self.L = []
        self.tail = []
        self.uid = 0

    def A(self, s):
        for line in s.strip("\n").split("\n"):
            line = line.strip()
            if not line:
                continue
            self.L.append(line if line.endswith(":") else "    " + line)

    def lab(self, p):
        self.uid += 1
        return f"L_{p}_{self.uid}"

    def stamp(self, k):
        if self.stamps:
            self.A(f"s_memrealtime s[{84 + 2 * k}:{85 + 2 * k}]\ns_waitcnt lgkmcnt(0)")

    def write_stamps(self, with_main=False):
        if not self.stamps:
            return
        A = self.A
        A("s_mov_b64 exec, 1")
        A("s_lshl_b32 s4, s2, 8\ns_lshl_b32 s5, s3, 5\ns_add_u32 s4, s4, s5")
        A(f"s_add_u32 s4, s4, {STAMP}")
        A("v_mov_b32 v4, s4")
        for k in range(8):
            A(f"v_mov_b32 v{8 + k}, s{84 + 2 * k}")
        A("buffer_store_dwordx4 v[8:11], v4, s[24:27], 0 offen")
        A("buffer_store_dwordx4 v[12:15], v4, s[24:27], 0 offen offset:16")
        if with_main:
            A("s_memrealtime s[6:7]\ns_waitcnt lgkmcnt(0)")
            A("s_lshl_b32 s4, s2, 4\nv_mov_b32 v5, s4")
            A("v_mov_b32 v16, s84\nv_mov_b32 v17, s85\nv_mov_b32 v18, s6\nv_mov_b32 v19, s7")
            A("buffer_store_dwordx4 v[16:19], v5, s[24:27], 0 offen")

    def srd(self, d, lo, size):
        self.A(f"s_mov_b32 s{d}, s{lo}\ns_and_b32 s{d + 1}, s{lo + 1}, 0xffff\n"
               f"s_mov_b32 s{d + 2}, {size:#x}\ns_mov_b32 s{d + 3}, 0x20000")

    def srd_sel(self, d, loA, loB, size):
        self.A(f"s_cselect_b32 s{d}, s{loB}, s{loA}\ns_cselect_b32 s{d + 1}, s{loB + 1}, s{loA + 1}\n"
               f"s_and_b32 s{d + 1}, s{d + 1}, 0xffff\n"
               f"s_mov_b32 s{d + 2}, {size:#x}\ns_mov_b32 s{d + 3}, 0x20000")

    def budget(self, retry):
        self.A(f"s_sub_u32 s82, s82, 1\ns_cmp_lg_u32 s82, 0\ns_cbranch_scc1 {retry}\ns_endpgm")

    def lds_wait(self, addr, cmp_, val, va, vd, sleep=1, sd=4):
        sp, ok = self.lab("sp"), self.lab("ok")
        if addr is not None:
            self.A(f"v_mov_b32 v{va}, {addr}")
        self.A(f"{sp}:\nds_read_b32 v{vd}, v{va}\ns_waitcnt lgkmcnt(0)\nv_readfirstlane_b32 s{sd}, v{vd}\ns_nop 0")
        self.A(f"s_cmp_{cmp_}_u32 s{sd}, {val}\ns_cbranch_scc1 {ok}")
        if sleep:
            self.A(f"s_sleep {sleep}")
        self.budget(sp)
        self.A(f"{ok}:")

    def lds_set(self, addr, va, vd, op="ds_write_b32", val=1):
        self.A(f"v_mov_b32 v{va}, {addr}\nv_mov_b32 v{vd}, {val}")
        self.A(f"s_mov_b64 exec, 1\n{op} v{va}, v{vd}\ns_mov_b64 exec, -1")

    def tagdiff(self, d, tag, t, acc, first):
        A = self.A
        A(f"v_perm_b32 v{t}, v{d + 1}, v{d}, s30\nv_perm_b32 v{t + 1}, v{d + 3}, v{d + 2}, s31")
        A(f"v_or_b32 v{t}, v{t}, v{t + 1}")
        A(f"v_xor_b32 v{acc if first else t}, {tag}, v{t}")
        if not first:
            A(f"v_or_b32 v{acc}, v{acc}, v{t}")

    def qrow(self, d, vaddr, off):
        A = self.A
        for r in range(8):
            A(f"v_and_b32 v{d + r}, s29, v{d + r}")
        for r in range(4):
            A(f"v_add_f32 v{d + r}, v{d + r}, v{d + 4 + r}")
        A(f"s_nop 1\nv_permlane32_swap_b32 v{d}, v{d + 2}\nv_permlane32_swap_b32 v{d + 1}, v{d + 3}\ns_nop 0")
        A(f"v_add_f32 v{d}, v{d}, v{d + 2}\nv_add_f32 v{d + 1}, v{d + 1}, v{d + 3}")
        A(f"v_cvt_pk_bf16_f32 v{d}, v{d}, v{d + 1}")
        A(f"ds_write_b16 v{vaddr}, v{d} offset:{off}\nds_write_b16_d16_hi v{vaddr}, v{d} offset:{off + 32}")

    def tile(self, X, Q, acc, m, R, l, bias, kwait, vwait, issueK=None):
        A = self.A
        D, S, T = 40, 56, 60
        if kwait is not None:
            A(f"s_waitcnt vmcnt({kwait})")
        for t in range(4):
            A(f"v_mfma_f32_16x16x32_bf16 v[{D + 4 * t}:{D + 4 * t + 3}], v[{X + 4 * t}:{X + 4 * t + 3}], v[{Q}:{Q + 3}], 0")
        if issueK:
            issueK()
            A("s_nop 1")
        else:
            A("s_nop 5")
        for c in range(4):
            for t in range(4):
                dpp = f"quad_perm:[{c},{c},{c},{c}] row_mask:0xf bank_mask:0xf"
                if c == 0 and bias is None:
                    A(f"v_mov_b32_dpp v{S + t}, v{D + 4 * t} {dpp}")
                else:
                    A(f"v_add_f32_dpp v{S + t}, v{D + 4 * t + c}, v{bias if c == 0 else S + t} {dpp}")
        rs, back = self.lab("rs"), self.lab("bk")
        A(f"v_max3_f32 v{T}, v{S}, v{S + 1}, v{S + 2}")
        A(f"v_max_f32 v{T}, v{T}, v{S + 3}")
        A(f"v_cmp_gt_f32 vcc, v{T}, v{m}")
        A(f"s_cbranch_vccnz {rs}")
        A(f"{back}:")
        for t in range(4):
            A(f"v_fma_f32 v{S + t}, v{S + t}, s77, -v{R}")
        for t in range(4):
            A(f"v_exp_f32 v{S + t}, v{S + t}")
        A(f"v_add_f32 v{T}, v{S}, v{S + 1}")
        A(f"v_cvt_pk_bf16_f32 v{S}, v{S}, v{S}")
        A(f"v_add_f32 v{T + 1}, v{S + 2}, v{S + 3}")
        for t in range(1, 4):
            A(f"v_cvt_pk_bf16_f32 v{S + t}, v{S + t}, v{S + t}")
        for t in range(4):
            A(f"v_and_b32 v{D + 2 * t}, v{S + t}, v4")
            A(f"v_and_b32 v{D + 2 * t + 1}, v{S + t}, v5")
        A(f"v_add_f32 v{l}, v{l}, v{T}")
        A(f"v_add_f32 v{l}, v{l}, v{T + 1}")
        if vwait is not None:
            A(f"s_waitcnt vmcnt({vwait})")
        for t in range(4):
            V = X + 16 + 4 * t
            A(f"v_mfma_f32_16x16x16_bf16 v[{acc}:{acc + 3}], v[{V}:{V + 1}], v[{D + 2 * t}:{D + 2 * t + 1}], v[{acc}:{acc + 3}]")
            A(f"v_mfma_f32_16x16x16_bf16 v[{acc + 4}:{acc + 7}], v[{V + 2}:{V + 3}], v[{D + 2 * t}:{D + 2 * t + 1}], v[{acc + 4}:{acc + 7}]")
        o = [f"{rs}:",
             f"v_mov_b32 v{T + 1}, v{T}", "s_nop 1",
             f"v_permlane32_swap_b32 v{T + 1}, v{T}", "s_nop 0",
             f"v_max_f32 v{T}, v{T}, v{T + 1}",
             f"v_mov_b32 v{T + 1}, v{T}", "s_nop 1",
             f"v_permlane16_swap_b32 v{T + 1}, v{T}", "s_nop 0",
             f"v_max3_f32 v{m}, v{m}, v{T}, v{T + 1}",
             f"v_mul_f32 v{T}, s77, v{m}",
             f"v_sub_f32 v{T + 1}, v{R}, v{T}",
             f"v_exp_f32 v{T + 1}, v{T + 1}",
             f"v_mov_b32 v{R}, v{T}",
             f"v_mul_f32 v{l}, v{l}, v{T + 1}"]
        for i in range(8):
            o.append(f"v_mul_f32 v{acc + i}, v{acc + i}, v{T + 1}")
        o.append(f"s_branch {back}")
        self.tail.append("\n".join(o))

    def loads(self, dst, voff, srd, soff, w=None, modes=False, mid={}):
        w = w if isinstance(w, tuple) else (w, None, None, None)
        for t in range(4):
            if modes:
                la, go = self.lab("wa"), self.lab("go")
                self.A(f"s_cbranch_scc1 {la}\ns_waitcnt vmcnt({w[t]})\ns_cbranch_vccz {go}\ns_waitcnt vmcnt({self.lo[t]})")
                self.A(f"{la}:\ns_cbranch_vccnz {go}\ns_waitcnt vmcnt({self.hi[t]})\n{go}:")
            elif w[t] is not None:
                self.A(f"s_waitcnt vmcnt({w[t]})")
            self.A(f"buffer_load_dwordx4 v[{dst + 4 * t}:{dst + 4 * t + 3}], v{voff}, s[{srd}:{srd + 3}], s{soff} offen offset:{1024 * t} {self.nt}")
            if t in mid:
                self.A(mid[t])

    def flush_write(self, acc, R):
        A = self.A
        A(f"s_mul_i32 s4, s3, 0xc00\ns_add_u32 s4, s4, {L_FL}")
        A("v_lshlrev_b32 v60, 4, v0\nv_lshlrev_b32 v61, 3, v0")
        A("v_add_u32 v60, s4, v60\nv_add_u32 v61, s4, v61")
        A("s_nop 3")
        A(f"ds_write_b128 v60, v[{acc}:{acc + 3}]")
        A(f"ds_write_b128 v60, v[{acc + 4}:{acc + 7}] offset:1024")
        if R is not None:
            A(f"ds_write_b64 v61, v[{R}:{R + 1}] offset:2048")

    def combine(self, b, vrec, vhdr, srec, shdr):
        A = self.A
        a = lambda w: b + 12 * w
        t = b + 48
        A(f"v_lshlrev_b32 v{t}, 4, v0\nv_lshlrev_b32 v{t + 1}, 3, v0")
        for w in range(4):
            A(f"ds_read_b64 v[{a(w) + 8}:{a(w) + 9}], v{t + 1} offset:{L_FL + 0xc00 * w + 2048}")
        for w in range(4):
            A(f"ds_read_b128 v[{a(w)}:{a(w) + 3}], v{t} offset:{L_FL + 0xc00 * w}")
            A(f"ds_read_b128 v[{a(w) + 4}:{a(w) + 7}], v{t} offset:{L_FL + 0xc00 * w + 1024}")
        A("s_waitcnt lgkmcnt(8)")
        Rm, Ls = t + 2, t + 3
        A(f"v_max3_f32 v{Rm}, v{a(0) + 8}, v{a(1) + 8}, v{a(2) + 8}")
        A(f"v_max_f32 v{Rm}, v{Rm}, v{a(3) + 8}")
        for w in range(4):
            A(f"v_sub_f32 v{a(w) + 8}, v{a(w) + 8}, v{Rm}")
        for w in range(4):
            A(f"v_exp_f32 v{a(w) + 8}, v{a(w) + 8}")
        A(f"v_mul_f32 v{Ls}, v{a(0) + 8}, v{a(0) + 9}")
        for w in range(1, 4):
            A(f"v_fmac_f32 v{Ls}, v{a(w) + 8}, v{a(w) + 9}")
        A(f"v_mov_b32 v{t}, v{Ls}")
        A("s_waitcnt lgkmcnt(6)")
        for i in range(8):
            A(f"v_mul_f32 v{a(0) + i}, v{a(0) + 8}, v{a(0) + i}")
        A(f"v_permlane32_swap_b32 v{t}, v{Ls}")
        A("s_waitcnt lgkmcnt(4)")
        A(f"v_add_f32 v{Ls}, v{Ls}, v{t}")
        A(f"v_mov_b32 v{t}, v{Ls}")
        for i in range(8):
            A(f"v_fmac_f32 v{a(0) + i}, v{a(1) + 8}, v{a(1) + i}")
        A(f"v_permlane16_swap_b32 v{t}, v{Ls}")
        A("s_waitcnt lgkmcnt(2)")
        A(f"v_add_f32 v{Ls}, v{Ls}, v{t}")
        for i in range(8):
            A(f"v_fmac_f32 v{a(0) + i}, v{a(2) + 8}, v{a(2) + i}")
        A("s_waitcnt lgkmcnt(0)")
        for i in range(8):
            A(f"v_fmac_f32 v{a(0) + i}, v{a(3) + 8}, v{a(3) + i}")
        self.near([f"buffer_store_dwordx4 v[{b + 4 * u}:{b + 4 * u + 3}], v{vrec + u}, s[24:27], s{srec} offen" for u in range(2)])
        A(f"v_mov_b32 v{t + 4}, s28")
        A("s_mov_b64 exec, 0x1111\ns_waitcnt vmcnt(0)")
        self.near([f"buffer_store_dwordx3 v[{Rm}:{Rm + 2}], v{vhdr}, s[24:27], s{shdr} offen"])
        A("s_mov_b64 exec, -1")

    def near(self, ins):
        far, back = self.lab("far"), self.lab("sent")
        self.A(f"s_cmp_eq_u32 s75, 0\ns_cbranch_scc1 {far}\n" + "\n".join(ins) + f"\n{back}:")
        self.tail.append(f"{far}:\n" + "\n".join(i + " sc1" for i in ins) + f"\ns_branch {back}")

    def rows(self, op, v, t):
        for sw in ("v_permlane16_swap_b32", "v_permlane32_swap_b32"):
            self.A(f"v_mov_b32 v{t}, v{v}\ns_nop 1\n{sw} v{t}, v{v}\ns_nop 0\n{op} v{v}, v{v}, v{t}")

    def xlane(self, op, v, t):
        A = self.A
        for ctl in ("quad_perm:[1,0,3,2]", "quad_perm:[2,3,0,1]", "row_ror:4", "row_ror:8"):
            A(f"s_nop 1\n{op}_dpp v{v}, v{v}, v{v} {ctl} row_mask:0xf bank_mask:0xf")
        for sw in ("v_permlane16_swap_b32", "v_permlane32_swap_b32"):
            A(f"v_mov_b32 v{t}, v{v}\ns_nop 1\n{sw} v{t}, v{v}\ns_nop 0\n{op} v{v}, v{v}, v{t}")

    def M(self, lam, SM=None):
        m = 0
        for b in range(6):
            if lam >> b & 1:
                m ^= (SM or self.SM)[b]
        return m

    def vx(self, d, t, items, src=0):
        out = []
        for bit, m in items:
            m = m if isinstance(m, str) else f"{m:#x}"
            out += [f"v_bfe_i32 v{t}, v{src}, {bit}, 1", f"v_and_b32 v{t}, {m}, v{t}", f"v_xor_b32 v{d}, v{d}, v{t}"]
        return "\n".join(out)

    def sx(self, d, items):
        for sreg, bit, m in items:
            self.A(f"s_bitcmp1_b32 s{sreg}, {bit}\ns_cselect_b32 s4, {m:#x}, 0\ns_xor_b32 s{d}, s{d}, s4")

    def line8(self, d, t):
        self.A(f"v_and_b32 v{d}, 7, v0\nv_lshlrev_b32 v{d}, 4, v{d}")
        self.A(self.vx(d, t, [(3 + b, self.SM[b]) for b in range(3)]))

    def gen(self):
        A = self.A
        hdr = open(REF).read().split("\n")
        for line in hdr:
            if line.startswith("; @launch"):
                self.L.append(f"; @launch grid=(256,1,1) block=(512,1,1) lds={self.lds}")
                break
            self.L.append(line)
        self.L += ['.amdgcn_target "amdgcn-amd-amdhsa--gfx950"', ".text", f".globl {NAME}_kernel", ".p2align 8",
                   f".type {NAME}_kernel,@function", f"{NAME}_kernel:"]
        A("s_cmp_ge_u32 s2, 256\ns_cbranch_scc1 L_end")
        if self.renum:
            A(f"s_lshr_b32 s4, s2, 3\ns_and_b32 s4, s4, {self.renum}\ns_xor_b32 s2, s2, s4")
        if self.hmaj:
            A("s_and_b32 s4, s2, 7\ns_lshl_b32 s4, s4, 5\ns_lshr_b32 s2, s2, 3\ns_or_b32 s2, s2, s4")
        A("s_load_dwordx16 s[36:51], s[0:1], 0")
        A("s_load_dwordx8 s[52:59], s[0:1], 64")
        A("s_load_dwordx2 s[60:61], s[0:1], 96")
        A("s_memrealtime s[84:85]")
        A("v_lshrrev_b32 v1, 6, v0\nv_and_b32 v0, 63, v0")
        A("v_mov_b32 v2, 0")
        A("v_readfirstlane_b32 s3, v1")
        A("v_lshlrev_b32 v1, 4, v0\nv_mov_b32 v4, 0\nv_mov_b32 v5, 0\nv_mov_b32 v6, 0\nv_mov_b32 v7, 0")
        A("s_and_b32 s62, s2, 7\ns_lshr_b32 s63, s2, 3")
        A("s_and_b32 s65, s62, 3")
        A("s_bfe_u32 s67, s63, 0x10003\ns_lshr_b32 s4, s62, 2\ns_lshl1_add_u32 s67, s4, s67")
        A("s_lshr_b32 s4, s63, 4\ns_lshl2_add_u32 s67, s4, s67")
        A("s_and_b32 s68, s63, 4\ns_or_b32 s68, s68, s65\ns_and_b32 s69, s63, 3")
        if self.hmaj:
            A("s_mov_b32 s67, s62\ns_lshr_b32 s68, s63, 2")
        A(f"s_mov_b32 s77, {f2u(CSC):#x}")
        A("s_mov_b32 s82, 0x400000")
        A("s_cmp_lg_u32 s3, 0\ns_cbranch_scc1 L_noinit")
        A("ds_write_b128 v1, v[4:7]")
        A("L_noinit:")
        A("s_waitcnt lgkmcnt(0)")
        if self.stamps:
            for k in range(1, 8):
                A(f"s_mov_b32 s{84 + 2 * k}, 0")
        self.srd(24, 60, WSEND)
        A("s_cmp_ge_u32 s3, 4\ns_cbranch_scc1 L_helper")
        self.stream()
        A("L_helper:")
        self.helper()
        A("L_end:\ns_endpgm")
        for blk in self.tail:
            A(blk)
        A("L_code_end:")
        self.L += ['.section .rodata,"a"', ".p2align 6", f".amdhsa_kernel {NAME}_kernel",
                   "  .amdhsa_next_free_vgpr 256", "  .amdhsa_next_free_sgpr 102", "  .amdhsa_accum_offset 256",
                   "  .amdhsa_group_segment_fixed_size 0", "  .amdhsa_kernarg_size 104",
                   "  .amdhsa_user_sgpr_count 2", "  .amdhsa_user_sgpr_kernarg_segment_ptr 1",
                   "  .amdhsa_system_sgpr_workgroup_id_x 1", ".end_amdhsa_kernel"]
        return "\n".join(self.L) + "\n"

    def stream(self):
        A = self.A
        self.srd(8, 48, 0x10000000)
        self.srd(12, 50, 0x10000000)
        self.srd(16, 38, 0x4000000)
        self.srd(20, 40, 0x4000000)
        A("v_lshrrev_b32 v3, 4, v0\nv_bfe_u32 v4, v0, 2, 2\nv_and_b32 v5, 3, v0")
        A("v_lshlrev_b32 v1, 8, v4\nv_lshl_add_u32 v1, v3, 6, v1\nv_lshl_add_u32 v1, v5, 4, v1")
        A("v_lshlrev_b32 v2, 4, v0")
        A("s_lshl_b32 s81, s3, 12")
        A("s_lshl_b32 s4, s62, 5\ns_add_u32 s4, s4, s63\ns_lshl_b32 s70, s4, 20")
        hole = sum(1 << b for b in self.wb)
        inc = min(1 << b for b in range(12, 20) if b not in self.wb)
        hole &= -inc
        self.next = f"s_add_u32 s70, s70, {inc:#x}" + (f"\ns_or_b32 s70, s70, {hole:#x}" if hole else "")
        if hole:
            A(f"s_or_b32 s70, s70, {hole:#x}")
        A(f"s_mov_b32 s74, {hole:#x}")
        self.sx(74, [(2, b, 1 << ab) for b, ab in self.xs] + [(3, b, 1 << ab) for b, ab in enumerate(self.wb)])
        A("s_lshl3_add_u32 s4, s67, s68\ns_lshl_b32 s4, s4, 20\ns_lshl_b32 s5, s69, 16\ns_add_u32 s79, s4, s5")
        A("s_add_u32 s79, s79, s81\ns_add_u32 s79, s79, 0xc0000")
        self.sx(79, [(2, b, 1 << ab) for b, ab in self.xa])
        if 'noA' in self.dbg:
            A("s_add_u32 s79, s70, 0x80000\ns_xor_b32 s79, s79, s74")
            self.srd(16, 50, 0x10000000)
            self.srd(20, 50, 0x10000000)
            A("s_add_u32 s20, s20, 0x10000\ns_addc_u32 s21, s21, 0")
        A("s_barrier")

        tl = list(self.thr) if isinstance(self.thr, list) else [self.thr] * (4 * len(self.pord) - self.ptail) + [None] * self.ptail
        for seg in self.pord:
            for a in range(4):
                if seg == 'R':
                    A("s_xor_b32 s73, s70, s74")
                    self.loads(64 + 16 * a, 1, 8, 73, tl.pop(0))
                    A(self.next)
                else:
                    kv = 'KV'.index(seg)
                    A(f"s_xor_b32 s73, s79, {0x4000 * a}")
                    self.loads(128 + 32 * a + 16 * kv, 1 + kv, 16 + 4 * kv, 73, tl.pop(0))
        A("v_lshlrev_b32 v6, 6, v5\nv_lshl_add_u32 v6, v3, 4, v6\nv_lshl_add_u32 v6, v4, 2, v6")
        A(f"s_add_u32 s4, s81, {L_SC}\nv_add_u32 v6, s4, v6")
        A("v_mov_b32 v3, v4")
        A("v_and_b32 v8, 1, v5\nv_lshlrev_b32 v8, 4, v8\nv_mov_b32 v7, 0xffff\nv_lshlrev_b32 v8, v8, v7")
        A("v_cmp_le_u32 vcc, 2, v5\ns_nop 1")
        A("v_cndmask_b32 v5, 0, v8, vcc\nv_xor_b32 v4, v5, v8")
        for r in list(range(12, 16)) + list(range(32, 40)) + [7, 9]:
            A(f"v_mov_b32 v{r}, 0")
        A("v_mov_b32 v10, 0xff7fffff\nv_mov_b32 v11, v10\nv_mul_f32 v8, s77, v10")
        for c in range(4):
            A(f"s_mov_b32 s{28 + 2 * c}, {0x11111111 << c:#x}\ns_mov_b32 s{29 + 2 * c}, s{28 + 2 * c}")
        A("s_mov_b32 s71, 4\ns_mov_b32 s76, 0\ns_mov_b32 s79, 0\ns_mov_b32 s36, 0\ns_mov_b32 s37, 0x1000")
        if self.steps:
            A("v_mov_b32 v62, 0\nv_mov_b32 v63, 0\ns_mov_b32 s83, 0")
        self.stamp(1)
        self.lds_wait(L_QOWN_F, "lg", 0, 60, 61)
        A(f"v_and_b32 v60, 0xff, v1\nds_read_b128 v[40:43], v60 offset:{L_QOWN}")
        A("s_waitcnt lgkmcnt(0)")
        for t in range(4):
            A(f"v_cmp_eq_u32 vcc, {t}, v3\ns_nop 1")
            for r in range(4):
                A(f"v_cndmask_b32 v{16 + 4 * t + r}, 0, v{40 + r}, vcc")
        A("v_mov_b32 v3, 1")
        self.stamp(2)

        def pace(op):
            if self.sch:
                if self.to:
                    A(f"s_cmp_gt_i32 s76, {self.to}\ns_cselect_b32 s5, 0x1000, s{op}")
                    op = 5
                A(f"s_add_u32 s4, s76, {self.td}\ns_cmp_lt_i32 s4, s{op}\ns_cselect_b64 vcc, -1, 0")
                A(f"s_max_i32 s4, s76, s{op}\ns_cmp_gt_i32 s4, {self.tu}")
                return
            A(f"s_add_u32 s4, s76, s71\ns_cmp_lt_i32 s4, s{op}\ns_cselect_b64 vcc, -1, 0")
            A(f"s_max_i32 s4, s76, s{op}\ns_cmp_gt_i32 s4, s71")

        def mid(sl, extra=""):
            m = {0: f"s_mov_b64 exec, 1\nds_add_u32 v2, v3 offset:{L_PRG}\nds_read_b32 v58, v2 offset:{L_CTL}\ns_mov_b64 exec, -1",
                 1: "",
                 2: "s_waitcnt lgkmcnt(0)\nv_readfirstlane_b32 s76, v58\n" + extra,
                 3: self.next + "\ns_add_u32 s71, s71, 1"}
            if self.sch:
                m[0] = f"s_mov_b64 exec, 1\nds_add_u32 v2, v3 offset:{L_PRG}\nds_read_b64 v[58:59], v2 offset:{L_SCH}\ns_mov_b64 exec, -1"
                m[2] = "s_waitcnt lgkmcnt(0)\nv_readfirstlane_b32 s76, v58\nv_readfirstlane_b32 s75, v59\n" + extra
                m[3] += ("\ns_mul_i32 s4, s75, s71\ns_lshr_b32 s4, s4, 8\ns_add_u32 s76, s76, s4\ns_sub_u32 s76, s6, s76"
                         "\ns_min_i32 s76, s76, 0x400\ns_cmp_eq_u32 s75, 0\ns_cselect_b32 s76, 0, s76")
            if self.sch or self.steps and sl in (0, 2):
                m[self.tat] += "\ns_memrealtime s[6:7]"
            if self.steps and sl in (0, 2):
                m[2] += f"\ns_mov_b32 m0, s83\nv_writelane_b32 v{62 + sl // 2}, s6, m0"
                m[3] += "\ns_add_u32 s83, s83, 1" if sl == 2 else ""
            return m
        A("L_k:")
        for sl in range(4):
            X = 64 + 16 * sl
            A("s_waitcnt vmcnt(12)")
            for t in range(4):
                A(f"v_mfma_f32_16x16x32_bf16 v[40:43], v[{X + 4 * t}:{X + 4 * t + 3}], v[{16 + 4 * t}:{19 + 4 * t}], {'0' if t == 0 else 'v[40:43]'}")
            A("s_xor_b32 s73, s70, s74")
            pace(36 + (sl >= 4 - self.aopen))
            self.loads(X, 1, 8, 73, self.kw, modes=True, mid=mid(sl))
            for c in range(4):
                dpp = f"quad_perm:[{c},{c},{c},{c}] row_mask:0xf bank_mask:0xf"
                A(f"v_mov_b32_dpp v{56 + c}, v{40 + c} {dpp}" if c < 2 else f"v_add_f32_dpp v{54 + c}, v{40 + c}, v{54 + c} {dpp}")
                if c == 1:
                    A("s_nop 0")
            A("v_add_f32 v56, v56, v57")
            A(f"v_cndmask_b32 v7, v7, v56, s[{28 + 2 * sl}:{29 + 2 * sl}]")
        A("ds_write_b32 v6, v7\nv_max_f32 v11, v11, v7\nv_add_u32 v6, 0x100, v6")
        A("s_cmp_ge_u32 s71, 64\ns_cbranch_scc1 L_kend")
        A("s_cmp_ge_u32 s79, 4\ns_cbranch_scc1 L_k")
        A("s_cmp_eq_u32 s79, 1\ns_cbranch_scc1 L_a1")
        A("s_cmp_eq_u32 s79, 2\ns_cbranch_scc1 L_a2")
        A("s_cmp_eq_u32 s79, 3\ns_cbranch_scc1 L_a3")
        A(f"v_mov_b32 v60, {L_QA_F}")
        A("L_a_spin:")
        A(f"ds_read_b32 v61, v60\nds_read_b128 v[12:15], v1 offset:{L_QA}\ns_waitcnt lgkmcnt(0)")
        A("v_readfirstlane_b32 s4, v61\ns_nop 0")
        A("s_cmp_lg_u32 s4, 0\ns_cbranch_scc1 L_a0")
        A(f"s_cmp_lt_u32 s71, {4 + 4 * self.aforce}\ns_cbranch_scc1 L_k")
        self.budget("L_a_spin")
        for a in range(4):
            A(f"L_a{a}:")
            if a == 0:
                A("s_waitcnt vmcnt(16)")
            self.tile(128 + 32 * a, 12, 32, 10, 8, 9, None, None, None)
            A(f"s_mov_b32 s79, {a + 1}")
            if a < 3:
                A("s_branch L_k")
        self.flush_write(32, 8)
        self.lds_set(L_FLA, 60, 61, op="ds_add_u32")
        A("s_mov_b32 s37, 0")
        self.stamp(3)
        A("s_branch L_k")
        A("L_kend:")
        A("s_cmp_eq_u32 s71, 68\ns_cbranch_scc1 L_soft")
        A("s_mov_b32 s8, s12\ns_mov_b32 s9, s13\nv_mov_b32 v1, v2")
        A(f"s_mov_b32 s36, {0x1000 * self.sopen}\ns_mov_b32 s37, s36")
        A("s_sub_u32 s70, s70, 0x100000\ns_branch L_k")
        A("L_soft:")
        A(f"s_add_u32 s4, s81, {L_SC}\nv_add_u32 v6, s4, v2")
        for k in range(4):
            A(f"ds_read_b128 v[{128 + 4 * k}:{131 + 4 * k}], v6 offset:{1024 * k}")
        self.xlane("v_max_f32", 11, 60)
        A("v_mul_f32 v8, s77, v11")
        A(f"s_lshr_b32 s5, s81, 1\ns_add_u32 s5, s5, {L_P}")
        A("v_lshlrev_b32 v6, 3, v0\nv_add_u32 v6, s5, v6")
        A("v_lshrrev_b32 v30, 4, v0\nv_lshlrev_b32 v30, 3, v30\nv_add_u32 v30, s5, v30")
        for k in range(4):
            A(f"s_waitcnt lgkmcnt({3 - k})")
            for r in range(128 + 4 * k, 132 + 4 * k):
                A(f"v_fma_f32 v{r}, v{r}, s77, -v8")
        for r in range(128, 144):
            A(f"v_exp_f32 v{r}, v{r}")
        for k in range(8):
            A(f"v_cvt_pk_bf16_f32 v{144 + k}, v{128 + 2 * k}, v{129 + 2 * k}")
        for k in range(4):
            A(f"ds_write_b64 v6, v[{144 + 2 * k}:{145 + 2 * k}] offset:{512 * k}")
        A("ds_read_b64 v[56:57], v30")
        A("v_mov_b32 v60, 0x0c0c0c0c")
        for t in range(4):
            A(f"s_mov_b32 s4, {((2 * t + 1) << 8 | 2 * t) * 0x10001:#x}")
            A(f"v_bfi_b32 v{16 + 2 * t}, v4, s4, v60\nv_bfi_b32 v{17 + 2 * t}, v5, s4, v60")
        for r in range(32, 40):
            A(f"v_mov_b32 v{r}, 0")
        for k in range(4):
            A(f"v_add_f32 v{48 + k}, v{128 + k}, v{132 + k}")
        for u in range(2):
            for k in range(4):
                A(f"v_add_f32 v{48 + k}, v{48 + k}, v{136 + 4 * u + k}")
        A("v_add_f32 v48, v48, v49\nv_add_f32 v50, v50, v51\nv_add_f32 v9, v48, v50")
        self.xlane("v_add_f32", 9, 60)
        A("v_max_u32 v9, 1, v9")
        A("s_lshl_b32 s4, s3, 3\nv_mov_b32 v60, s4\nv_mov_b32 v31, 0")
        A(f"s_mov_b64 exec, 1\nds_write_b64 v60, v[8:9] offset:{L_ML}\ns_mov_b64 exec, -1")
        P, M = self.PSH, self.M
        A("v_and_b32 v11, 3, v0\nv_lshlrev_b32 v11, 4, v11")
        A(self.vx(11, 61, [(4, 64), (5, M(1))]))
        A(f"s_lshl_b32 s5, s2, {P}")
        self.sx(5, [(3, 0, M(2)), (3, 1, M(4))])
        A(f"v_xor_b32 v11, s5, v11\ns_mov_b32 s80, {RR}\ns_mov_b32 s36, 0")
        perms = "\n".join(f"v_perm_b32 v{40 + r}, v57, v56, v{16 + r}" for r in range(8))
        A("s_waitcnt lgkmcnt(0)")
        A(perms)
        self.stamp(7)

        def pv(sl):
            X = 64 + 16 * sl
            for t in range(4):
                V = X + 4 * t
                A(f"v_mfma_f32_16x16x16_bf16 v[32:35], v[{V}:{V + 1}], v[{40 + 2 * t}:{41 + 2 * t}], v[32:35]")
                A(f"v_mfma_f32_16x16x16_bf16 v[36:39], v[{V + 2}:{V + 3}], v[{40 + 2 * t}:{41 + 2 * t}], v[36:39]")
        A("L_v:")
        for sl in range(4):
            A(f"ds_read_b64 v[56:57], v30 offset:{32 * sl + 32}")
            A("s_xor_b32 s73, s70, s74")
            if self.vlast:
                A(f"s_cmp_ge_u32 s71, {128 - self.vlast}\ns_cselect_b32 s36, 0x1000, 0")
            pace(36)
            A("s_waitcnt vmcnt(12)")
            pv(sl)
            self.loads(64 + 16 * sl, 2, 12, 73, self.vw, modes=True, mid=mid(sl, perms))
        A("v_add_u32 v30, 0x80, v30\ns_cmp_lt_u32 s71, 128\ns_cbranch_scc1 L_v")
        self.stamp(4)
        tick = f"s_mov_b64 exec, 1\nds_add_u32 v2, v3 offset:{L_PRG}\ns_mov_b64 exec, -1"
        A(tick)
        A("L_ml:")
        A(f"ds_read_b128 v[48:51], v31 offset:{L_ML}\nds_read_b128 v[52:55], v31 offset:{L_ML + 16}\ns_waitcnt lgkmcnt(0)")
        A("v_min3_u32 v60, v49, v51, v53\nv_min_u32 v60, v60, v55\nv_cmp_eq_u32 vcc, 0, v60\ns_cbranch_vccz L_ml_ok")
        self.budget("L_ml")
        A("L_ml_ok:")
        for sl in range(4):
            if sl < 3:
                A(f"ds_read_b64 v[56:57], v30 offset:{32 * sl + 32}")
            A(f"s_waitcnt vmcnt({12 - 4 * sl})")
            pv(sl)
            if sl < 3:
                A("s_waitcnt lgkmcnt(0)")
                A(perms)
            if sl == 0:
                A("v_max3_f32 v60, v48, v50, v52\nv_max_f32 v60, v60, v54")
                for r in (48, 50, 52, 54, 8):
                    A(f"v_sub_f32 v{r}, v{r}, v60")
                for r in (48, 50, 52, 54, 8):
                    A(f"v_exp_f32 v{r}, v{r}")
                A("v_mul_f32 v9, v48, v49\nv_fmac_f32 v9, v50, v51\nv_fmac_f32 v9, v52, v53\nv_fmac_f32 v9, v54, v55")
                A("v_rcp_f32 v9, v9\ns_nop 0\nv_mul_f32 v9, v8, v9")
            if sl == 2:
                A("s_nop 0")
        A("s_mov_b32 exec_lo, 0x000f000f\ns_mov_b32 exec_hi, 0x000f000f\ns_nop 5")
        for i in range(8):
            A(f"v_mul_f32 v{32 + i}, v9, v{32 + i}")
        for k in range(4):
            A(f"v_cvt_pk_bf16_f32 v{40 + k}, v{32 + 2 * k}, v{33 + 2 * k}")
        for k in range(4):
            A(f"v_min_u32 v{40 + k}, -2, v{40 + k}")
        A("buffer_store_dwordx4 v[40:43], v11, s[24:27], s80 offen sc1")
        if self.ptrig:
            A(tick)
        self.stamp(6)
        self.stamp(5)
        if self.steps:
            A("s_mov_b64 exec, -1")
            A(f"s_lshl_b32 s4, s2, 2\ns_add_u32 s4, s4, s3\ns_lshl_b32 s4, s4, 9\ns_add_u32 s4, s4, 0x20000")
            A("v_lshlrev_b32 v60, 3, v0\nbuffer_store_dwordx2 v[62:63], v60, s[24:27], s4 offen\ns_nop 2")
        self.write_stamps()
        A("s_endpgm")

    def control(self):
        A = self.A
        A("L_ctl:")
        A(f"v_mov_b32 v58, {L_PRG}\nv_lshlrev_b32 v53, 3, v0\nv_mov_b32 v55, s28")
        A("s_lshr_b32 s4, s63, 4\ns_lshl1_add_u32 s4, s62, s4\ns_lshl_b32 s4, s4, 3\nv_mov_b32 v52, s4")
        A("s_and_b32 s35, s63, 15\ns_lshl_b32 s4, s62, 1\ns_xor_b32 s35, s35, s4")
        A("s_mov_b32 s34, 0")
        if self.p0:
            A(f"s_mov_b32 s78, {round(self.p0 * 256)}")
        if self.force:
            r0, r1 = self.force
            self.lds_wait(None, "ge", 4 * (r0 - 4), 58, 57, sleep=16)
            A(f"s_and_b32 s4, s63, 3\ns_mov_b32 s5, 0\ns_cmp_eq_u32 s4, 1\ns_cselect_b32 s5, {r1}, s5\ns_cmp_eq_u32 s4, 2\ns_cselect_b32 s5, {-r1}, s5")
            A(f"v_mov_b32 v57, s5\nds_write_b32 v58, v57 offset:{L_CTL - L_PRG}")
        for k, (c, d, lim, kp, kd) in enumerate(self.chk or [x + (0, 0) for x in self.sch]):
            A(f"s_mov_b32 s33, {BD + 0x180 * k}")
            self.lds_wait(None, "ge", 4 * (c - 5), 58, 57, sleep=8)
            self.lds_wait(None, "ge", 4 * (c - 4), 58, 57, sleep=self.csl)
            A("s_memrealtime s[6:7]\ns_waitcnt lgkmcnt(0)\ns_mov_b32 s32, s6\nv_mov_b32 v54, s6")
            A(f"s_cmp_lg_u32 s35, 0\ns_cbranch_scc1 L_cp{k}")
            A("s_mov_b64 exec, 1\nbuffer_store_dwordx2 v[54:55], v52, s[24:27], s33 offen sc1\ns_mov_b64 exec, -1")
            A(f"L_cp{k}:")
            self.lds_wait(None, "ge", 4 * (c + d - 4), 58, 57, sleep=8)
            A(f"s_mov_b64 exec, 0xffff\nbuffer_load_dwordx2 v[50:51], v53, s[24:27], s33 offen {self.cpol}")
            A("s_memrealtime s[6:7]\ns_waitcnt lgkmcnt(0)\ns_sub_u32 s6, s6, s32\nv_mov_b32 v49, s6")
            A("s_mov_b32 s7, 0x80000000\ns_mov_b32 s83, 0\ns_waitcnt vmcnt(0)")
            A("v_subrev_u32 v50, s32, v50\nv_cmp_eq_u32 vcc, s28, v51\nds_read_b32 v57, v58\nv_cndmask_b32 v50, v49, v50, vcc")
            A(f"L_cr{k}:")
            A("s_nop 0\nv_readlane_b32 s4, v50, s83\ns_nop 3\nv_cmp_gt_i32 vcc, s4, v50\ns_nop 3\ns_bcnt1_i32_b32 s5, vcc_lo")
            A(f"s_cmp_le_u32 s5, {self.rank}\ns_cselect_b32 s4, s4, s7\ns_max_i32 s7, s7, s4")
            A(f"s_add_u32 s83, s83, 1\ns_cmp_lt_u32 s83, 16\ns_cbranch_scc1 L_cr{k}")
            A(f"s_mov_b64 exec, -1\ns_sub_u32 s5, {self.bias}, s7")
            if self.stamps and k < 4:
                A(f"s_ashr_i32 s6, s5, 2\ns_add_u32 s6, s6, 128\ns_and_b32 s6, s6, 255\ns_lshl_b32 s6, s6, {8 * k}\ns_or_b32 s88, s88, s6")
            if self.sch:
                A("s_add_u32 s7, s7, s32\ns_sub_u32 s5, s7, s34\ns_mov_b32 s34, s7\ns_waitcnt lgkmcnt(0)")
                if 'p' in lim:
                    A(f"s_mul_i32 s78, s5, {round(65536 * self.kap / (c - self.sch[k - 1][0]))}\ns_lshr_b32 s78, s78, 8")
                if 'a' in lim:
                    A(f"s_mul_i32 s4, s78, {c}\ns_lshr_b32 s4, s4, 8\ns_sub_u32 s7, s7, s4\ns_sub_u32 s7, s7, {self.early}")
                    A(f"v_mov_b32 v56, s7\nv_mov_b32 v57, s78\nds_write_b64 v58, v[56:57] offset:{L_SCH - L_PRG}")
                for x in re.findall(r"\d+", lim):
                    self.lds_wait(None, "ge", 4 * (int(x) - 5), 58, 57, sleep=8)
                    A(f"ds_write_b32 v58, v2 offset:{L_SCH + 4 - L_PRG}")
                continue
            A(f"s_add_u32 s6, s5, s34\ns_mul_i32 s6, s6, {kd}\ns_mul_i32 s5, s5, {kp}\ns_add_u32 s5, s5, s6\ns_ashr_i32 s5, s5, 4")
            A("s_waitcnt lgkmcnt(0)\nv_readfirstlane_b32 s4, v57")
            A(f"s_abs_i32 s6, s5\ns_cmp_le_u32 s6, {self.dead}\ns_cbranch_scc1 L_cn{k}")
            A("s_add_u32 s34, s34, s5")
            A(f"s_cmp_gt_i32 s5, 0\ns_cselect_b32 s7, {self.gup}, {self.gdn}\ns_cselect_b32 s5, 1, -1")
            A(f"s_mul_i32 s6, s6, s7\ns_lshl4_add_u32 s6, s4, s6\ns_add_u32 s6, s6, {5 * 64 + 32}\ns_lshr_b32 s6, s6, 6")
            A(f"s_min_u32 s6, s6, {lim}\ns_mul_i32 s6, s6, s5")
            A(f"v_mov_b32 v57, s6\nds_write_b32 v58, v57 offset:{L_CTL - L_PRG}")
            A(f"L_cn{k}:")

    def helper(self):
        A = self.A
        A("s_setprio 3")
        A("s_sub_u32 s66, s3, 4")
        A("s_mov_b32 s29, 0xffffff00\ns_mov_b32 s30, 0x0c0c0400\ns_mov_b32 s31, 0x04000c0c")
        A("s_cmp_ge_u32 s66, 2\ns_cbranch_scc1 L_noprod")
        A("s_cmp_eq_u32 s66, 0\ns_cbranch_scc1 L_prio_b\ns_setprio 2\nL_prio_b:")
        A("s_cselect_b32 s12, s46, s36\ns_cselect_b32 s13, s47, s37")
        self.srd_sel(8, 42, 52, 0x400000)
        A("s_and_b32 s13, s13, 0xffff\ns_mov_b32 s14, 0x2000\ns_mov_b32 s15, 0x20000")
        A("v_lshrrev_b32 v3, 4, v0\nv_and_b32 v4, 7, v0")
        A("v_lshlrev_b32 v5, 10, v4\nv_lshl_add_u32 v5, v3, 4, v5")
        A("s_lshl_b32 s72, s65, 8")
        A("v_lshrrev_b32 v6, 3, v0\nv_lshlrev_b32 v6, 13, v6")
        A("v_and_b32 v7, 1, v3\nv_lshlrev_b32 v7, 1, v7\nv_xor_b32 v7, v7, v4")
        A("v_lshl_add_u32 v6, v7, 4, v6\nv_xor_b32 v7, 64, v6")
        A("s_lshr_b32 s70, s62, 2")
        A("s_lshl_b32 s73, s65, 20\ns_lshl_b32 s4, s63, 8\ns_add_u32 s73, s73, s4")
        A("s_lshl_b32 s4, s70, 7\ns_add_u32 s73, s73, s4")
        A(f"s_lshl_b32 s74, s66, 14\ns_add_u32 s74, s74, {L_ST}")
        A("s_mov_b32 m0, s74")
        for ks in range(4):
            A(f"buffer_load_dwordx4 v[{16 + 4 * ks}:{19 + 4 * ks}], v5, s[12:15], s72 offen offset:{64 * ks}")
        for i in range(16):
            if 'nowq' in self.dbg:
                A("s_mov_b32 s73, 0x10000000")
            A(f"buffer_load_dwordx4 v{6 + (i & 1)}, s[8:11], s73 offen {self.nt} lds")
            if i < 15:
                A("s_add_u32 m0, m0, 0x400\ns_add_u32 s73, s73, 0x10000")
        A("s_barrier")
        A("v_bfe_u32 v4, v0, 2, 2\nv_and_b32 v5, 3, v0")
        A("v_lshl_add_u32 v6, v3, 3, v4\nv_lshlrev_b32 v6, 7, v6\nv_lshl_add_u32 v6, v5, 3, v6")
        A("v_lshrrev_b32 v4, 1, v4\nv_and_b32 v5, 1, v3\nv_lshl_add_u32 v4, v5, 1, v4")
        A("v_lshl_add_u32 v6, v4, 5, v6\nv_add_u32 v8, s74, v6")
        for nb in range(1, 4):
            A(f"v_xor_b32 v{8 + nb}, {nb << 5}, v8")
        P, M = self.PSH, self.M
        PQ, QM = P, M
        if self.qlin == 1:
            PQ, QM = 12, lambda lam: self.M(lam, [128 << b for b in range(5)] + [1 << 20])
        if self.qlin == 2:
            PQ, QM = 8, lambda lam: self.M(lam, [128, 1 << 16, 1 << 17, 1 << 18, 1 << 19, 1 << 20])
        if self.qmap:
            PQ, QM = self.qmap[0], lambda lam: self.M(lam, list(self.qmap[1]) + [1 << 20])
        A("v_and_b32 v4, 7, v0\nv_lshlrev_b32 v4, 4, v4")
        A(self.vx(4, 5, [(3, QM(1)), (5, QM(4)), (4, QM(8))]))
        A(f"s_lshl_b32 s5, s2, {PQ}\ns_xor_b32 s5, s5, {QM(48):#x}")
        self.sx(5, [(66, 0, QM(16))])
        A(f"v_xor_b32 v4, s5, v4\nv_xor_b32 v5, {QM(2):#x}, v4\ns_mov_b32 s72, {RY}")
        A("s_mov_b32 s32, 0\ns_mov_b32 s33, -1")
        for ks in range(4):
            A(f"s_waitcnt vmcnt({12 - 4 * ks})")
            for nb in range(4):
                for hf in range(2):
                    r = 64 + 16 * ks + 4 * nb + 2 * hf
                    A(f"ds_read_b64_tr_b16 v[{r}:{r + 1}], v{8 + nb} offset:{ks * 4096 + hf * 512}")
            A("s_waitcnt lgkmcnt(0)")
            for nb in range(4):
                r = 64 + 16 * ks + 4 * nb
                c = "0" if ks == 0 else f"v[{32 + 4 * nb}:{35 + 4 * nb}]"
                A(f"v_mfma_f32_16x16x32_bf16 v[{32 + 4 * nb}:{35 + 4 * nb}], v[{16 + 4 * ks}:{19 + 4 * ks}], v[{r}:{r + 3}], {c}")
        self.stamp(4)
        self.lds_wait(L_TAG, "lg", 0, 6, 7, sleep=0, sd=28)
        for r in range(4):
            A(f"s_bfe_u32 s4, s28, {(8 << 16) | (8 * r):#x}\nv_mov_b32 v{12 + r}, s4")
        for u in range(2):
            for r in range(4):
                A(f"v_cndmask_b32 v{48 + 4 * u + r}, v{32 + 4 * r + u}, v{34 + 4 * r + u}, s[32:33]")
        for u in range(2):
            for r in range(4):
                A(f"v_and_or_b32 v{48 + 4 * u + r}, v{48 + 4 * u + r}, s29, v{12 + r}")
        if 'noqw' in self.dbg:
            A("s_mov_b32 s72, 0x10000000")
        if 'halfq' in self.dbg:
            A("buffer_store_dwordx4 v[48:51], v4, s[24:27], s72 offen sc1\ns_mov_b32 s72, 0x10000000")
        if 'quartq' in self.dbg:
            A("s_mov_b32 exec_hi, 0\nbuffer_store_dwordx4 v[48:51], v4, s[24:27], s72 offen sc1\ns_mov_b32 s72, 0x10000000\ns_mov_b64 exec, -1")
        A(f"buffer_store_dwordx4 v[48:51], v4, s[24:27], s72 offen {self.qpol}")
        A(f"buffer_store_dwordx4 v[52:55], v5, s[24:27], s72 offen {self.qpol}")
        self.stamp(1)
        A("s_cmp_lg_u32 s66, 0\ns_cbranch_scc1 L_h_b3")
        def qcons(d, t):
            A(f"v_and_b32 v{d}, 7, v0\nv_lshlrev_b32 v{d}, 4, v{d}")
            A(self.vx(d, t, [(3, QM(1)), (4, 4 << PQ), (5, 1 << PQ)]))
            A(f"v_and_b32 v6, 15, v0\nv_lshlrev_b32 v6, 1, v6")
            A(self.vx(6, t, [(4, 128), (5, 64)]))
        qcons(8, 7)
        A(f"s_lshl_b32 s5, s63, {PQ + 3}\ns_xor_b32 s5, s5, {QM(48):#x}")
        self.sx(5, [(62, b, QM(2 << b)) for b in range(3)])
        A(f"v_xor_b32 v8, s5, v8\nv_xor_b32 v9, {2 << PQ:#x}, v8")
        NP = self.npoll
        if 'nopoll' in self.dbg:
            A("s_mov_b32 s72, 0x10000000")

        def issue(k):
            A(f"buffer_load_dwordx4 v[{64 + 8 * k}:{67 + 8 * k}], v8, s[24:27], s72 offen sc1")
            A(f"buffer_load_dwordx4 v[{68 + 8 * k}:{71 + 8 * k}], v9, s[24:27], s72 offen sc1")
        for k in range(NP):
            issue(k)
            if k < NP - 1:
                A(f"s_sleep {self.pollgap}")
        A("L_qp_loop:")
        for k in range(NP):
            if self.stamps:
                A("s_add_u32 s98, s98, 1")
            A(f"s_waitcnt vmcnt({2 * (NP - 1)})")
            self.tagdiff(64 + 8 * k, "s28", 20, 22, True)
            self.tagdiff(68 + 8 * k, "s28", 20, 22, False)
            A(f"v_cmp_ne_u32 vcc, 0, v22\ns_cbranch_vccz L_qp_ok{k}")
            if 'noqw' in self.dbg or 'nopoll' in self.dbg:
                A(f"s_branch L_qp_ok{k}")
            issue(k)
        self.budget("L_qp_loop")
        for k in range(NP):
            A(f"L_qp_ok{k}:")
            self.qrow(64 + 8 * k, 6, L_QOWN)
            if k < NP - 1:
                A("s_branch L_qp_ok")
        A("L_qp_ok:")
        self.lds_set(L_QOWN_F, 20, 21)
        self.stamp(2)
        self.line8(6, 7)
        A(f"s_lshl2_add_u32 s4, s68, s69\ns_lshl3_add_u32 s4, s4, s67\ns_lshl_b32 s4, s4, {P}\ns_xor_b32 s4, s4, {M(32):#x}")
        A("v_xor_b32 v12, s4, v6")
        A("v_bfe_u32 v8, v0, 2, 2\nv_lshlrev_b32 v8, 4, v8")
        A(f"s_lshl3_add_u32 s73, s68, s67\ns_lshl2_add_u32 s4, s73, s69\ns_lshl_b32 s4, s4, {P}")
        A(f"s_xor_b32 s5, s4, {M(16):#x}\nv_xor_b32 v7, s5, v6\ns_xor_b32 s5, s4, {M(8):#x}\nv_xor_b32 v6, s5, v6")
        A(f"s_xor_b32 s5, s4, {M(24):#x}\nv_xor_b32 v8, s5, v8")
        A(f"v_lshrrev_b32 v11, 4, v0\nv_lshlrev_b32 v11, {P}, v11\nv_and_b32 v9, 3, v0\nv_lshl_add_u32 v9, v9, 4, v11")
        A(self.vx(9, 10, [(2, M(2)), (3, M(4))]))
        A(f"s_lshl_b32 s73, s73, {P + 2}\ns_lshl_b32 s5, s69, 4\ns_xor_b32 s5, s5, s73\ns_xor_b32 s5, s5, {M(24):#x}\nv_xor_b32 v11, s5, v11")
        self.sx(73, [(69, 0, 64), (69, 1, M(1))])
        A(f"s_xor_b32 s5, s73, {M(16):#x}\nv_xor_b32 v10, s5, v9\ns_xor_b32 s5, s73, {M(8):#x}\nv_xor_b32 v9, s5, v9")
        A(f"s_mov_b32 s72, {RR}")
        self.lds_wait(L_FLA, "eq", 4, 20, 21, sleep=8)
        A(f"ds_read_b32 v20, v2 offset:{L_LOC}\ns_waitcnt lgkmcnt(0)\nv_readfirstlane_b32 s75, v20")
        if self.hmaj:
            A("s_mov_b32 s75, 1")
        self.combine(128, 6, 8, 72, 72)
        A("L_mg:")
        A("buffer_load_dwordx3 v[32:34], v11, s[24:27], s72 offen sc1\ns_waitcnt vmcnt(0)")
        A(f"v_cmp_ne_u32 vcc, s28, v34\ns_cbranch_vccz L_mg_ok\ns_sleep {self.msl}")
        self.budget("L_mg")
        A("L_mg_ok:")
        A("buffer_load_dwordx4 v[36:39], v9, s[24:27], s72 offen sc1\nbuffer_load_dwordx4 v[40:43], v10, s[24:27], s72 offen sc1")
        A("v_mov_b32 v34, v32")
        self.rows("v_max_f32", 34, 35)
        A("v_sub_f32 v32, v32, v34\nv_exp_f32 v32, v32\ns_nop 0\nv_mul_f32 v33, v33, v32")
        self.rows("v_add_f32", 33, 35)
        A("v_rcp_f32 v33, v33\ns_nop 0\nv_mul_f32 v32, v32, v33\ns_waitcnt vmcnt(0)")
        for r in range(36, 44):
            A(f"v_mul_f32 v{r}, v{r}, v32")
        for r in range(36, 44):
            self.rows("v_add_f32", r, 35)
        for k in range(4):
            A(f"v_cvt_pk_bf16_f32 v{36 + k}, v{36 + 2 * k}, v{37 + 2 * k}")
        for k in range(4):
            A(f"v_min_u32 v{36 + k}, -2, v{36 + k}")
        A("s_mov_b64 exec, 0xffff\nbuffer_store_dwordx4 v[36:39], v12, s[24:27], s72 offen sc1\ns_mov_b64 exec, -1")
        A("s_branch L_h_b3")
        A("L_noprod:")
        A("s_cmp_lg_u32 s66, 2\ns_cbranch_scc1 L_w7")
        A("s_mul_i32 s28, s84, 0x9e3779b1\ns_or_b32 s28, s28, 1")
        A("v_lshlrev_b32 v20, 7, v0\nv_mov_b32 v21, s28")
        A("s_cmp_lg_u32 s2, 0\ns_cbranch_scc1 L_notag")
        A("s_mov_b64 exec, 3\nglobal_store_dword v20, v21, s[58:59] sc1\ns_mov_b64 exec, -1")
        A("L_notag:")
        self.line8(26, 27)
        A(f"s_lshl_b32 s5, s2, {P}\nv_xor_b32 v26, s5, v26\ns_mov_b32 s80, {RR}")
        for r in range(28, 32):
            A(f"v_mov_b32 v{r}, -1")
        if 'noclr' in self.dbg:
            A("s_mov_b32 s80, 0x10000000")
        A("buffer_store_dwordx4 v[28:31], v26, s[24:27], s80 offen sc1")
        A(f"v_xor_b32 v27, {M(32):#x}, v26\ns_mov_b64 exec, 0xffff")
        A("buffer_store_dwordx4 v[28:31], v27, s[24:27], s80 offen sc1\ns_mov_b64 exec, -1")
        A("s_barrier")
        A("s_cmp_eq_u32 s2, 0\ns_cbranch_scc1 L_tag_ok")
        A(f"s_and_b32 s4, s63, 1\ns_lshl_b32 s4, s4, 7\nv_mov_b32 v20, s4\ns_mov_b64 exec, 1\ns_sleep {self.tdel}")
        A("L_tag:")
        A("global_load_dword v21, v20, s[58:59] sc1")
        if self.stamps:
            A("s_add_u32 s98, s98, 0x100")
        A("s_waitcnt vmcnt(0)\nv_readfirstlane_b32 s28, v21\ns_nop 0")
        A(f"s_cmp_lg_u32 s28, 0\ns_cbranch_scc1 L_tag_ok\ns_sleep {self.tsl}")
        self.budget("L_tag")
        A("L_tag_ok:")
        A("s_waitcnt vmcnt(0)")
        self.lds_set(L_TAG, 20, 21, val="s28")
        self.stamp(4)
        A("s_branch L_gather")
        A("L_w7:")

        def touch(which):
            if not which:
                return
            A("s_lshl_b32 s4, s62, 5\ns_add_u32 s4, s4, s63\ns_lshl_b32 s4, s4, 20\nv_lshlrev_b32 v12, 16, v0\nv_add_u32 v12, s4, v12")
            A("s_lshl_b32 s4, s63, 17\nv_mov_b32 v13, s4\nv_lshlrev_b32 v14, 20, v0")
            if 'V' in which:
                A("s_mov_b64 exec, 0xffff\nglobal_load_dword v16, v12, s[50:51] nt")
            A("s_mov_b64 exec, 1")
            if 'v' in which:
                A("global_load_dword v16, v12, s[50:51] nt")
            if 'w' in which:
                A("global_load_dword v17, v13, s[44:45] nt\nglobal_load_dword v18, v13, s[54:55] nt")
            if 'o' in which:
                A("global_load_dword v19, v2, s[56:57] sc1")
            if 's' in which:
                A("s_mov_b64 exec, 0x3c4\nglobal_load_dword v15, v14, s[60:61] offset:2048 sc1")
            A("s_mov_b64 exec, -1")
        touch(self.tpre)
        if self.qpre:
            assert self.qlin == 1
            A(f"v_lshlrev_b32 v24, 4, v0\ns_lshl_b32 s72, s2, 12\ns_add_u32 s72, s72, {RY + (1 << 20)}")
            for k in range(4):
                op = 'load' if self.qpre[0] == 'r' else 'store'
                A(f"buffer_{op}_dwordx4 v[28:31], v24, s[24:27], s72 offen offset:{1024 * k} {self.qpre[1:]}")
        A("s_barrier")
        if self.codepf:
            A("s_cmp_ge_u32 s63, 2\ns_cbranch_scc1 L_nopf")
            A("s_getpc_b64 s[4:5]")
            A("L_pc:")
            A(f"s_sub_u32 s4, s4, L_pc-{NAME}_kernel\ns_subb_u32 s5, s5, 0")
            A("s_lshl_b32 s6, s63, 13")
            A("v_lshlrev_b32 v3, 7, v0\nv_mov_b32 v5, s5\nv_add_u32 v3, s6, v3")
            A(f"v_min_u32 v3, L_code_end-{NAME}_kernel-4, v3")
            A("v_add_co_u32 v4, vcc, s4, v3\ns_nop 1\nv_addc_co_u32 v5, vcc, 0, v5, vcc")
            A("global_load_dword v10, v[4:5], off")
            A("L_nopf:")
        self.lds_wait(L_TAG, "lg", 0, 6, 7, sleep=4, sd=28)
        self.stamp(2)
        A("s_getreg_b32 s4, hwreg(HW_REG_XCC_ID)\ns_and_b32 s4, s4, 15\ns_lshl_b32 s4, s4, 1\ns_xor_b32 s75, s28, s4")
        A(f"s_lshl_b32 s72, s62, 7\ns_add_u32 s72, s72, {XR}\ns_lshl_b32 s4, s63, 2")
        A("v_mov_b32 v24, s4\nv_mov_b32 v25, s75\ns_mov_b64 exec, 1")
        A(f"buffer_store_dword v25, v24, s[24:27], s72 offen\ns_mov_b64 exec, -1")
        A("v_and_b32 v24, 31, v0\nv_lshlrev_b32 v24, 2, v24")
        self.lds_wait(L_PRG, "ge", self.xat, 20, 21, sleep=16)
        A("buffer_load_dword v25, v24, s[24:27], s72 offen sc1\ns_waitcnt vmcnt(0)")
        A("v_cmp_ne_u32 vcc, s75, v25\ns_cbranch_vccnz L_h_b3")
        self.lds_set(L_LOC, 20, 21)
        if self.tpre2:
            self.lds_wait(L_PRG, "ge", self.tat2, 20, 21, sleep=16)
            touch(self.tpre2)
            A("s_waitcnt vmcnt(0)")
        A("s_branch L_h_b3")
        A("L_gather:")
        qcons(24, 7)
        A(f"s_lshl_b32 s5, s68, {PQ + 5}\ns_xor_b32 s5, s5, {QM(32):#x}\ns_mov_b32 s72, {RY}")
        self.sx(5, [(67, b, QM(2 << b)) for b in range(3)])
        A("v_xor_b32 v24, s5, v24")
        for k in range(1, 8):
            A(f"v_xor_b32 v{24 + k}, {((k >> 1) << 3 | (k & 1) << 1) << PQ:#x}, v24")
        self.lds_wait(L_QOWN_F, "lg", 0, 20, 21, sleep=4)
        if 'noqw' in self.dbg or 'nopoll' in self.dbg:
            A("s_mov_b32 s72, 0x10000000")
        A("L_g_loop:")
        for j in range(4):
            A(f"buffer_load_dwordx4 v[{64 + 8 * j}:{67 + 8 * j}], v{24 + 2 * j}, s[24:27], s72 offen sc1")
            A(f"buffer_load_dwordx4 v[{68 + 8 * j}:{71 + 8 * j}], v{25 + 2 * j}, s[24:27], s72 offen sc1")
        if self.stamps:
            A("s_add_u32 s98, s98, 1")
        A("s_waitcnt vmcnt(0)")
        for j in range(4):
            self.tagdiff(64 + 8 * j, "s28", 20, 22, j == 0)
            self.tagdiff(68 + 8 * j, "s28", 20, 22, False)
        A("v_cmp_ne_u32 vcc, 0, v22\ns_cbranch_vccz L_g_ok")
        if 'noqw' in self.dbg or 'nopoll' in self.dbg:
            A("s_branch L_g_ok")
        self.budget("L_g_loop")
        A("L_g_ok:")
        for j in range(4):
            self.qrow(64 + 8 * j, 6, L_QA + 256 * j)
        self.lds_set(L_QA_F, 20, 21)
        self.stamp(2)
        A("L_h_b3:")
        A("s_setprio 3")
        A("s_lshr_b32 s70, s66, 1\ns_xor_b32 s70, s70, 1\ns_and_b32 s71, s66, 1")
        A("s_cmp_eq_u32 s70, 1")
        self.srd_sel(8, 44, 54, 0x400000)
        self.srd(12, 56, 0x4000)
        A("v_lshrrev_b32 v4, 3, v0\nv_and_b32 v5, 7, v0\nv_lshlrev_b32 v4, 10, v4\nv_lshl_add_u32 v4, v5, 4, v4")
        for k in range(1, 4):
            A(f"v_xor_b32 v{4 + k}, {k << 5}, v4")
        A("s_lshl_b32 s72, s63, 17\ns_lshl_b32 s4, s71, 16\ns_add_u32 s72, s72, s4")
        A("s_lshl_b32 s4, s62, 7\ns_add_u32 s72, s72, s4")
        A(f"s_mul_i32 s73, s70, {L_WOB - L_WOA}\ns_add_u32 s73, s73, {L_WOA}")
        A("s_lshl_b32 s4, s71, 13\ns_add_u32 s4, s4, s73\ns_mov_b32 m0, s4")
        A("v_lshrrev_b32 v3, 4, v0\nv_bfe_u32 v12, v0, 2, 2\nv_and_b32 v13, 3, v0")
        A("v_lshl_add_u32 v8, v12, 3, v3\nv_lshlrev_b32 v8, 7, v8\nv_lshl_add_u32 v8, v13, 3, v8")
        A("v_lshl_add_u32 v8, v12, 5, v8\nv_add_u32 v8, s73, v8")
        for nb in range(1, 4):
            A(f"v_xor_b32 v{8 + nb}, {nb << 5}, v8")
        A(f"s_mov_b32 s74, {RR}\ns_mov_b32 s76, {RY}")
        A(f"v_lshlrev_b32 v136, {P}, v12\nv_lshl_add_u32 v136, v3, 4, v136")
        A(f"s_lshl1_add_u32 s5, s63, s71\ns_lshl_b32 s5, s5, {P + 2}")
        A(self.vx(136, 137, [(0, M(2)), (1, M(4))]))
        self.sx(5, [(66, 1, M(32))])
        A("v_xor_b32 v136, s5, v136")
        for ks in range(1, 4):
            A(f"v_xor_b32 v{136 + ks}, {M(ks >> 1) ^ (ks & 1) << 6:#x}, v136")
        self.line8(60, 61)
        A(f"s_lshl_b32 s5, s2, {P}")
        self.sx(5, [(71, 0, M(8)), (70, 0, M(16))])
        A("v_xor_b32 v60, s5, v60")
        A(f"v_lshrrev_b32 v61, 2, v0\nv_lshlrev_b32 v61, {P + 3}, v61\nv_lshl_add_u32 v61, v13, 4, v61")
        A(f"s_lshl_b32 s5, s62, {P}")
        self.sx(5, [(63, 0, 64)] + [(63, 1 + b, M(1 << b)) for b in range(4)] + [(70, 0, M(16))])
        A(f"v_xor_b32 v61, s5, v61\nv_xor_b32 v14, {128 << P:#x}, v61")
        A("s_lshr_b32 s4, s63, 2\ns_lshl_b32 s79, s4, 11\ns_and_b32 s4, s63, 3")
        A("s_lshl_b32 s5, s4, 3\ns_add_u32 s79, s79, s5\ns_lshl_b32 s5, s70, 10\ns_add_u32 s79, s79, s5")
        A("s_lshl_b32 s5, s62, 7\ns_add_u32 s79, s79, s5")
        A("v_lshlrev_b32 v62, 5, v3\nv_lshl_add_u32 v62, v13, 1, v62")
        A(f"s_lshl_b32 s4, s70, 2\ns_add_u32 s4, s4, {L_WOC}\nv_mov_b32 v63, s4\nv_mov_b32 v59, 1")
        for r in range(4):
            A(f"s_bfe_u32 s4, s28, {(8 << 16) | (8 * r):#x}\nv_mov_b32 v{128 + r}, s4")
        A("s_cmp_eq_u32 s66, 1\ns_cbranch_scc1 L_ctl")
        A("s_cmp_eq_u32 s66, 0\ns_cbranch_scc1 L_trig")
        self.lds_wait(L_PRG, "ge", 4 * self.apre, 58, 57, sleep=32)
        def rows_issue():
            for ks in range(4):
                A(f"buffer_load_dwordx4 v[{16 + 4 * ks}:{19 + 4 * ks}], v{136 + ks}, s[24:27], s74 offen sc1")

        def rows_poll(n, sleep):
            A(f"L_{n}:")
            rows_issue()
            A(f"L_{n}a:")
            if self.stamps:
                A("s_add_u32 s98, s98, 0x100")
            A("s_waitcnt vmcnt(0)")
            A("v_max3_u32 v34, v16, v17, v18\nv_max3_u32 v35, v19, v20, v21\nv_max3_u32 v36, v22, v23, v24")
            A("v_max3_u32 v37, v25, v26, v27\nv_max3_u32 v34, v34, v28, v29\nv_max3_u32 v35, v35, v30, v31")
            A("v_max3_u32 v34, v34, v35, v37\nv_max_u32 v34, v34, v36")
            A(f"v_cmp_eq_u32 vcc, -1, v34\ns_cbranch_vccz L_{n}_ok")
            if self.h1mask:
                A("s_mov_b64 exec, vcc")
            if sleep:
                A(f"s_sleep {sleep}")
            self.budget(f"L_{n}")
            A(f"L_{n}_ok:")
            A("s_mov_b64 exec, -1")
        for r in range(16, 32):
            A(f"v_mov_b32 v{r}, 0")
        A("s_mov_b32 exec_lo, 0x11111111\ns_mov_b32 exec_hi, 0x11111111")
        rows_poll("ar", 16)
        A("s_branch L_trig")
        self.control()
        A("L_trig:")
        solo = self.trigB < 450
        ystore = "buffer_store_dwordx4 v[36:39], v60, s[24:27], s76 offen"

        def ypre():
            if self.ypre:
                lb = self.lab("np")
                A("v_not_b32 v36, v128\ns_cmp_eq_u32 s75, 0")
                A(f"s_cbranch_scc1 {lb}\n{ystore}\n{lb}:")
        A(f"s_mul_i32 s5, s70, {self.trigB - self.trigA}\ns_add_u32 s5, s5, {self.trigA}\ns_sub_u32 s6, s5, 8")
        self.lds_wait(L_PRG, "ge", "s6", 58, 57, sleep=16)
        A(f"ds_read_b32 v57, v2 offset:{L_LOC}\ns_waitcnt lgkmcnt(0)\nv_readfirstlane_b32 s75, v57")
        if solo:
            A("s_cmp_eq_u32 s70, 1\ns_cbranch_scc1 L_trig1")
        ypre()
        A("L_trig1:")
        self.lds_wait(None, "ge", "s5", 58, 57, sleep=1)
        self.stamp(5)

        def wo(w, n=8):
            for i in range(n):
                if w is not None and i > w:
                    A(f"s_waitcnt vmcnt({w})")
                A(f"buffer_load_dwordx4 v{4 + (i & 3)}, s[8:11], s72 offen {self.nt} lds")
                if i < n - 1:
                    A("s_add_u32 m0, m0, 0x400\ns_add_u32 s72, s72, 0x2000")
        A("s_cmp_eq_u32 s70, 0\ns_cbranch_scc1 L_woa")
        if solo:
            A("v_mov_b32 v59, 0\ns_cmp_eq_u32 s71, 1\ns_cbranch_scc1 L_nar\nv_mov_b32 v59, 2")
        wo(self.wob, 16 if solo else 8)
        if solo:
            A("s_waitcnt vmcnt(0)")
        else:
            self.lds_wait(None, "ge", self.ptrig, 58, 57, sleep=1)
            if self.pdel:
                A(f"s_sleep {self.pdel}")
            rows_issue()
            A("s_waitcnt vmcnt(4)")
        A("s_branch L_nar")
        A("L_woa:")
        if self.adel:
            A(f"s_sleep {self.adel}")
        wo(self.woa)
        A("s_waitcnt vmcnt(0)")
        A("L_nar:")
        A("s_mov_b64 exec, 1\nds_add_u32 v63, v59\ns_mov_b64 exec, -1")
        A("L_wo_spin:")
        A("ds_read_b32 v59, v63\ns_waitcnt lgkmcnt(0)\nv_readfirstlane_b32 s4, v59\ns_nop 0")
        A("s_cmp_eq_u32 s4, 2\ns_cbranch_scc1 L_wo_ok")
        self.budget("L_wo_spin")
        A("L_wo_ok:")
        for ks in range(4):
            if ks >= 1:
                A("s_waitcnt lgkmcnt(7)")
            for nb in range(4):
                for hf in range(2):
                    r = 64 + 16 * ks + 4 * nb + 2 * hf
                    A(f"ds_read_b64_tr_b16 v[{r}:{r + 1}], v{8 + nb} offset:{ks * 4096 + hf * 512}")
        self.stamp(3)
        A("s_cmp_eq_u32 s70, 0\ns_cbranch_scc1 L_h1_ok")
        if solo:
            self.lds_wait(L_PRG, "ge", self.ptrig - 12, 58, 57, sleep=16)
            ypre()
            self.lds_wait(None, "ge", self.ptrig, 58, 57, sleep=1)
            if self.pdel:
                A(f"s_sleep {self.pdel}")
        else:
            A("s_branch L_h1a")
        rows_poll("h1", 0)
        A("s_waitcnt lgkmcnt(0)")
        for ks in range(4):
            for nb in range(4):
                r = 64 + 16 * ks + 4 * nb
                c = "0" if ks == 0 else f"v[{40 + 4 * nb}:{43 + 4 * nb}]"
                A(f"v_mfma_f32_16x16x32_bf16 v[{40 + 4 * nb}:{43 + 4 * nb}], v[{16 + 4 * ks}:{19 + 4 * ks}], v[{r}:{r + 3}], {c}")
        A("s_nop 5")
        for nb in range(4):
            A(f"v_add_f32 v{36 + nb}, v{40 + 4 * nb}, v{41 + 4 * nb}")
        for s in range(2, 4):
            for nb in range(4):
                A(f"v_add_f32 v{36 + nb}, v{36 + nb}, v{40 + 4 * nb + s}")
        for nb in range(4):
            A(f"v_and_or_b32 v{36 + nb}, v{36 + nb}, s29, v{128 + nb}")
        self.near([ystore])
        self.stamp(6)
        A("s_cmp_lg_u32 s71, 0\ns_cbranch_scc1 L_hfin")
        A("L_h2:")
        A("buffer_load_dwordx4 v[16:19], v61, s[24:27], s76 offen sc1")
        A("buffer_load_dwordx4 v[20:23], v14, s[24:27], s76 offen sc1")
        if self.stamps:
            A("s_add_u32 s98, s98, 0x10000")
        A("s_waitcnt vmcnt(0)")
        self.tagdiff(16, "s28", 24, 26, True)
        self.tagdiff(20, "s28", 24, 26, False)
        A("v_cmp_ne_u32 vcc, 0, v26\ns_cbranch_vccz L_h2_ok")
        if self.h1mask:
            A("s_mov_b64 exec, vcc")
        self.budget("L_h2")
        A("L_h2_ok:")
        A("s_mov_b64 exec, -1")
        for r in range(8):
            A(f"v_and_b32 v{16 + r}, s29, v{16 + r}")
        for r in range(4):
            A(f"v_add_f32 v{16 + r}, v{16 + r}, v{20 + r}")
        A("s_nop 1\nv_permlane32_swap_b32 v16, v18\nv_permlane32_swap_b32 v17, v19\ns_nop 0")
        A("v_add_f32 v16, v16, v18\nv_add_f32 v17, v17, v19")
        A("s_nop 1\nv_permlane16_swap_b32 v16, v17\ns_nop 0\nv_add_f32 v16, v16, v17\ns_nop 1")
        A("v_add_f32_dpp v17, v16, v16 row_ror:4 row_mask:0xf bank_mask:0xf\ns_nop 1")
        A("v_add_f32_dpp v16, v17, v17 row_ror:8 row_mask:0xf bank_mask:0xf")
        A("v_cvt_pk_bf16_f32 v16, v16, v16")
        A("s_mov_b32 exec_lo, 0x000f000f\ns_mov_b32 exec_hi, 0x000f000f")
        A("buffer_store_short v16, v62, s[12:15], s79 offen")
        if self.calib is not None:
            wg, k = self.calib
            A(f"s_cmp_lg_u32 s2, {wg}\ns_cbranch_scc1 L_cal_end\ns_cmp_lg_u32 s66, 0\ns_cbranch_scc1 L_cal_end")
            if k == 'end':
                A("s_memrealtime s[6:7]\ns_waitcnt lgkmcnt(0)\ns_sub_u32 s5, s6, s84")
            elif k is None:
                A("s_mov_b32 s5, 0")
            else:
                A(f"s_sub_u32 s5, s{84 + 2 * k}, s84")
            A("s_add_u32 s5, s5, 15000")
            A("L_cal:\ns_memrealtime s[6:7]\ns_waitcnt lgkmcnt(0)\ns_sub_u32 s6, s6, s84\ns_cmp_lt_u32 s6, s5\ns_cbranch_scc1 L_cal")
            A("L_cal_end:")
        if self.stamps:
            A("s_cmp_lg_u32 s66, 0\ns_cbranch_scc1 L_hfin")
            A("s_waitcnt vmcnt(0)")
            self.write_stamps(with_main=True)
            A("s_endpgm")
        A("L_hfin:")
        self.write_stamps()


if __name__ == "__main__":
    out = sys.argv[1]
    kw = eval("dict(" + (sys.argv[2] if len(sys.argv) > 2 else "") + ")")
    open(out, "w").write(G(**kw).gen())
```
